```python
import torch

def _softmax(x, axis=-1):
    return torch.softmax(x, dim=axis)
def _gelu(x):
    return torch.nn.functional.gelu(x, approximate="tanh")
def _silu(x):
    return torch.nn.functional.silu(x)
def _sigmoid(x):
    return torch.sigmoid(x)
def _layernorm(x, axis=-1, eps=1e-5):
    m = x.mean(dim=axis, keepdim=True)
    v = x.var(dim=axis, keepdim=True, unbiased=False)
    return (x - m) / torch.sqrt(v + eps)
def _scatter_add(tgt, idx, src, axis=0):
    return tgt.clone().index_add_(axis, idx, src)
def _segment_sum(src, seg, n):
    out = torch.zeros((n,) + src.shape[1:], dtype=src.dtype)
    return out.index_add_(0, seg, src)
def _pad(x, pw):
    flat = tuple(v for pair in reversed(pw) for v in pair)
    return torch.nn.functional.pad(x, flat)

kernel_name = 'concat_heads__compressed_kv_cla__ssm_conv_s5__prompt'

def setup_inputs():

    _w = (lambda a: (lambda t: t.to(torch.bfloat16) if t.is_floating_point() else t)(torch.as_tensor(a)))
    def _A_setup():
        B, H, Sq, Sk, D, M = 1, 32, 2048, 2048, 128, 512
        Dc = 4 * D
        return {
            "x": _w((lambda *s: torch.randn(*s, dtype=torch.bfloat16) * 3.2)(B, Sq, M)),
            "c_kv": _w((lambda *s: torch.randn(*s, dtype=torch.bfloat16) * 0.1)(B, Sk, Dc)),
            "w_q": _w((lambda *s: torch.randn(*s, dtype=torch.bfloat16) * 6.4)(M, H, D) * (M ** -0.5)),
            "w_uk": _w((lambda *s: torch.randn(*s, dtype=torch.bfloat16) * 6.4)(Dc, H, D) * (Dc ** -0.5)),
            "w_uv": _w((lambda *s: torch.randn(*s, dtype=torch.bfloat16) * 0.1)(Dc, H, D) * (Dc ** -0.5)),
            "w_o": _w((lambda *s: torch.randn(*s, dtype=torch.bfloat16) * 0.1)(H, D, M) * ((H * D) ** -0.5)),
        }
    _A_in = _A_setup()

    def _B_setup():
        B, S, D = 1, 2048, 512
        P = D
        Lambda_re = -0.5 * (lambda _x: torch.exp(torch.as_tensor(_x)))((lambda *s: torch.randn(*s, dtype=torch.bfloat16) * 0.2)(P))
        Lambda_im = (lambda *s: torch.randn(*s, dtype=torch.bfloat16) * 0.4)(P) * 1.0
        B_re = (lambda *s: torch.randn(*s, dtype=torch.bfloat16) * 0.2)(P, D) * (D ** -0.5)
        B_im = (lambda *s: torch.randn(*s, dtype=torch.bfloat16) * 0.2)(P, D) * (D ** -0.5)
        C_re = (lambda *s: torch.randn(*s, dtype=torch.bfloat16) * 0.2)(D, P) * (P ** -0.5)
        C_im = (lambda *s: torch.randn(*s, dtype=torch.bfloat16) * 0.2)(D, P) * (P ** -0.5)
        log_dt = (lambda *s: torch.randn(*s, dtype=torch.bfloat16) * 0.2)(P) * 0.3 - 2.0
        Dskip = (lambda *s: torch.randn(*s, dtype=torch.bfloat16) * 0.05)(D)
        return {
            "x": _w((lambda *s: torch.randn(*s, dtype=torch.bfloat16) * 0.05)(B, S, D)),
            "Lambda_re": _w(Lambda_re),
            "Lambda_im": _w(Lambda_im),
            "B_re": _w(B_re),
            "B_im": _w(B_im),
            "C_re": _w(C_re),
            "C_im": _w(C_im),
            "log_dt": _w(log_dt),
            "Dskip": _w(Dskip),
        }
    _B_in = _B_setup()

    return {
        "A_x": _A_in["x"],
        "A_c_kv": _A_in["c_kv"],
        "A_w_q": _A_in["w_q"],
        "A_w_uk": _A_in["w_uk"],
        "A_w_uv": _A_in["w_uv"],
        "A_w_o": _A_in["w_o"],
        "B_x": _B_in["x"],
        "B_Lambda_re": _B_in["Lambda_re"],
        "B_Lambda_im": _B_in["Lambda_im"],
        "B_B_re": _B_in["B_re"],
        "B_B_im": _B_in["B_im"],
        "B_C_re": _B_in["C_re"],
        "B_C_im": _B_in["C_im"],
        "B_log_dt": _B_in["log_dt"],
        "B_Dskip": _B_in["Dskip"],
    }

def reference(A_x, A_c_kv, A_w_q, A_w_uk, A_w_uv, A_w_o, B_x, B_Lambda_re, B_Lambda_im, B_B_re, B_B_im, B_C_re, B_C_im, B_log_dt, B_Dskip):
    def _A_ref(x, c_kv, w_q, w_uk, w_uv, w_o):
        B, Sq, M = x.shape[0], x.shape[1], x.shape[2]
        Sk = c_kv.shape[1]
        H, D = w_q.shape[1], w_q.shape[2]
        q = torch.einsum("bqm,mhd->bhqd", x, w_q)
        k = torch.einsum("bkc,chd->bhkd", c_kv, w_uk)
        v = torch.einsum("bkc,chd->bhkd", c_kv, w_uv)
        scores = torch.einsum("bhqd,bhkd->bhqk", q, k) * (D ** -0.5)
        off = Sk - Sq
        qi = torch.arange(Sq)[:, None]
        kj = torch.arange(Sk)[None, :]
        cmask = kj <= (qi + off)
        scores = torch.where(cmask[None, None], scores, -1e9)
        p = _softmax(scores, axis=-1)
        ctx = torch.einsum("bhqk,bhkd->bhqd", p, v)
        return torch.einsum("bhqd,hdm->bqm", ctx, w_o)

    def _B_ref(x, Lambda_re, Lambda_im, B_re, B_im, C_re, C_im, log_dt, Dskip):
        Bsz, L, H = x.shape
        Lam = Lambda_re + 1j * Lambda_im
        Bmat = B_re + 1j * B_im
        Cmat = C_re + 1j * C_im
        dt = torch.exp(log_dt)
        Lam_bar = torch.exp(dt * Lam)
        B_bar = ((Lam_bar - 1.0) / Lam)[:, None] * Bmat
        Bu = torch.einsum("bld,pd->blp", x + 0j, B_bar)
        h = torch.zeros_like(Bu[:, 0, :])
        hs = []
        for t in range(L):
            h = Lam_bar[None, :] * h + Bu[:, t, :]
            hs.append(h)
        hseq = torch.stack(hs, 1)
        y = 2.0 * torch.einsum("blp,dp->bld", hseq, Cmat).real + x * Dskip[None, None, :]
        return y

    a = _A_ref(A_x, A_c_kv, A_w_q, A_w_uk, A_w_uv, A_w_o)
    b = _B_ref(B_x, B_Lambda_re, B_Lambda_im, B_B_re, B_B_im, B_C_re, B_C_im, B_log_dt, B_Dskip)
    return torch.concatenate([a, b], axis=-1)
```

```python
class KB:
    def __init__(self, name):
        self.name = name
        self.lines = []
        self.lg = []
        self.vm = []
        self.uid = 0
    def e(self, s):
        self.lines.append("    " + s)
    def c(self, s):
        self.lines.append("    ; " + s)
    def label(self, l):
        self.lines.append(l + ":")
    def newlabel(self, base):
        self.uid += 1
        return "L_%s_%s_%d" % (self.name, base, self.uid)
    def ds(self, s, tag):
        self.e(s); self.lg.append(tag)
    def wait_ds(self, tag):
        if tag not in self.lg:
            return
        idx = len(self.lg) - 1 - self.lg[::-1].index(tag)
        n = len(self.lg) - 1 - idx
        n = min(n, 15)
        self.e("s_waitcnt lgkmcnt(%d)" % n)
        self.lg = self.lg[len(self.lg) - n:] if n > 0 else []
    def wait_ds_all(self):
        self.e("s_waitcnt lgkmcnt(0)"); self.lg = []
    def vmem(self, s, tag):
        self.e(s); self.vm.append(tag)
    def wait_vm(self, tag):
        if tag not in self.vm:
            return
        idx = len(self.vm) - 1 - self.vm[::-1].index(tag)
        n = len(self.vm) - 1 - idx
        n = min(n, 63)
        self.e("s_waitcnt vmcnt(%d)" % n)
        self.vm = self.vm[len(self.vm) - n:] if n > 0 else []
    def wait_vm_all(self):
        self.e("s_waitcnt vmcnt(0)"); self.vm = []
    def wait_all(self):
        self.e("s_waitcnt vmcnt(0) lgkmcnt(0)"); self.vm = []; self.lg = []
    def nop(self, n):
        while n > 0:
            k = min(n, 16)
            self.e("s_nop %d" % (k - 1)); n -= k
    def srd(self, sd, sptr, nbytes):
        self.e("s_mov_b32 s%d, s%d" % (sd, sptr))
        self.e("s_mov_b32 s%d, s%d" % (sd + 1, sptr + 1))
        self.e("s_mov_b32 s%d, 0x%x" % (sd + 2, nbytes))
        self.e("s_mov_b32 s%d, 0x00020000" % (sd + 3))
    def text(self):
        return "\n".join(self.lines) + "\n"

def vr(a, n):
    return "v[%d:%d]" % (a, a + n - 1)
def sr(a, n):
    return "s[%d:%d]" % (a, a + n - 1)

def kernel_wrap(name, body, vgpr, sgpr):
    head = (".globl %s\n.p2align 8\n.type %s,@function\n%s:\n" % (name, name, name))
    return head + body + "    s_endpgm\n"

def kernel_desc(name, vgpr, sgpr):
    acc = (vgpr + 3) // 4 * 4
    return (""".p2align 6
.amdhsa_kernel %s
  .amdhsa_next_free_vgpr %d
  .amdhsa_next_free_sgpr %d
  .amdhsa_accum_offset %d
  .amdhsa_group_segment_fixed_size 0
  .amdhsa_kernarg_size 144
  .amdhsa_user_sgpr_count 2
  .amdhsa_user_sgpr_kernarg_segment_ptr 1
  .amdhsa_system_sgpr_workgroup_id_x 1
.end_amdhsa_kernel
""" % (name, vgpr, sgpr, acc))
```

```python
from asmlib import *
from layout import *

def gen_k1():
    kb = KB("k1")
    e = kb.e
    sW_ID, sM, sH = 3, 4, 5
    SRD_CKV, SRD_X, SRD_W1, SRD_WQ, SRD_XB, SRD_BM, SRD_WS = 32, 36, 40, 44, 48, 52, 56
    sA, sW, sMA, sMW, sCnt, sT, sT2 = 60, 61, 62, 63, 64, 65, 66
    sA2, sW2 = 67, 68
    sGX, sGB = 69, 70
    sGT_, sGC = 71, 72
    sEp = 73
    vL, vR, vHI, vI16, vG4 = 1, 2, 3, 4, 5
    vOffA = 8
    vOffW = 12
    vGB = 13
    vL16 = 14
    vGst = 15
    vA = 16
    vW = 20
    vPA = 24
    vA2 = 28
    vW2 = 22
    TMP = 32
    FA = 64
    FW = 96
    vGacc = 112
    ACC = 128

    e("s_cmp_ge_u32 s2, 256")
    e("s_cbranch_scc1 L_k1_end")
    e("s_load_dwordx16 s[8:23], s[0:1], 0")
    e("s_load_dwordx4 s[24:27], s[0:1], %d" % KA['bre'])
    e("s_load_dwordx2 s[28:29], s[0:1], %d" % KA['ws'])
    e("v_and_b32 v%d, 63, v0" % vL)
    e("v_lshrrev_b32 v2, 6, v0")
    e("s_nop 0")
    e("v_readfirstlane_b32 s%d, v2" % sW_ID)
    e("v_and_b32 v%d, 31, v%d" % (vR, vL))
    e("v_lshrrev_b32 v%d, 5, v%d" % (vHI, vL))
    e("v_and_b32 v%d, 15, v%d" % (vI16, vL))
    e("v_lshrrev_b32 v%d, 4, v%d" % (vG4, vL))
    e("v_lshlrev_b32 v%d, 4, v%d" % (vL16, vL))
    e("s_and_b32 s%d, s2, 7" % sT)
    e("s_lshl_b32 s%d, s%d, 2" % (sT, sT))
    e("s_lshr_b32 s%d, s2, 3" % sT2)
    e("s_and_b32 s%d, s%d, 3" % (sT2, sT2))
    e("s_add_u32 s%d, s%d, s%d" % (sH, sT, sT2))
    e("s_lshr_b32 s%d, s2, 5" % sM)
    e("s_and_b32 s%d, s2, 15" % sGT_)
    e("s_lshr_b32 s%d, s2, 4" % sGC)
    e("v_lshrrev_b32 v32, 3, v%d" % vL)
    e("v_lshlrev_b32 v32, 10, v32")
    e("v_and_b32 v33, 7, v%d" % vL)
    e("v_xor_b32 v34, v33, v%d" % vG4)
    e("v_xor_b32 v35, 4, v34")
    e("v_lshl_add_u32 v%d, v34, 4, v32" % (vOffA + 0))
    e("v_lshl_add_u32 v%d, v35, 4, v32" % (vOffA + 1))
    e("v_add_u32 v%d, %d, v%d" % (vOffA + 2, 2 * 7168, vOffA + 0))
    e("v_add_u32 v%d, %d, v%d" % (vOffA + 3, 3 * 7168, vOffA + 1))
    e("s_and_b32 s%d, s%d, 1" % (sT, sW_ID))
    e("s_cmp_eq_u32 s%d, 1" % sT)
    e("s_cselect_b64 vcc, -1, 0")
    e("v_cndmask_b32 v%d, v%d, v%d, vcc" % (vGB, vOffA + 0, vOffA + 1))
    e("v_add_u32 v%d, %d, v%d" % (vOffA + 1, 7168, vOffA + 1))
    e("v_lshrrev_b32 v32, 2, v%d" % vL)
    e("v_and_b32 v32, 3, v32")
    e("v_xor_b32 v32, v32, v%d" % vG4)
    e("v_lshlrev_b32 v32, 6, v32")
    e("v_lshl_add_u32 v32, v%d, 13, v32" % vG4)
    e("v_and_b32 v33, 3, v%d" % vL)
    e("v_lshl_add_u32 v%d, v33, 4, v32" % vOffW)
    e("v_lshrrev_b32 v32, 1, v%d" % vR)
    e("v_and_b32 v32, 7, v32")
    for ks in range(4):
        e("v_add_u32 v33, %d, v%d" % (2 * ks, vHI))
        e("v_xor_b32 v33, v33, v32")
        e("v_lshlrev_b32 v33, 4, v33")
        e("v_lshl_add_u32 v%d, v%d, 7, v33" % (vPA + ks, vR))
    e("v_lshrrev_b32 v34, 2, v%d" % vI16)
    e("v_lshl_add_u32 v35, v%d, 3, v34" % vHI)
    e("v_lshlrev_b32 v35, 8, v35")
    e("v_and_b32 v36, 1, v%d" % vG4)
    e("v_lshl_add_u32 v35, v36, 5, v35")
    e("v_and_b32 v36, 3, v%d" % vI16)
    e("v_lshl_add_u32 v35, v36, 3, v35")
    e("s_lshr_b32 s%d, s%d, 1" % (sT, sW_ID))
    e("s_and_b32 s%d, s%d, 1" % (sT, sT))
    e("s_lshl_b32 s%d, s%d, 1" % (sT, sT))
    e("s_lshr_b32 s%d, s%d, 2" % (sT2, sW_ID))
    e("s_lshl_b32 s%d, s%d, 14" % (sT2, sT2))
    e("s_add_u32 s%d, s%d, 32768" % (sT2, sT2))
    for nb in range(2):
        e("v_add_u32 v36, %d, v34" % 0)
        e("v_xor_b32 v36, s%d, v36" % sT)
        if nb:
            e("v_xor_b32 v36, 1, v36")
        e("v_lshl_add_u32 v36, v36, 6, v35")
        e("v_add_u32 v%d, s%d, v36" % (vW + nb, sT2))
    e("s_lshr_b32 s%d, s%d, 2" % (sT, sW_ID))
    e("s_lshl_b32 s%d, s%d, 1" % (sT, sT))
    for nb in range(2):
        e("v_xor_b32 v36, s%d, v34" % sT)
        if nb:
            e("v_xor_b32 v36, 1, v36")
        e("v_lshl_add_u32 v36, v36, 6, v35")
        e("v_add_u32 v%d, 0x8000, v36" % (vW2 + nb))
    e("s_and_b32 s%d, s%d, 1" % (sT, sW_ID))
    e("s_lshl_b32 s%d, s%d, 14" % (sT, sT))
    e("s_and_b32 s%d, s%d, 3" % (sT2, sW_ID))
    e("s_lshl_b32 s%d, s%d, 13" % (sT2, sT2))
    for ks in range(4):
        e("v_add_u32 v%d, s%d, v%d" % (vA + ks, sT, vPA + ks))
        e("v_add_u32 v%d, s%d, v%d" % (vA2 + ks, sT2, vPA + ks))
    e("v_lshlrev_b32 v36, 4, v%d" % vHI)
    e("v_lshl_add_u32 v%d, v%d, 13, v36" % (vGst, vR))
    for i in range(128):
        e("v_mov_b32 v%d, 0" % (ACC + i))
    for i in range(16):
        e("v_mov_b32 v%d, 0" % (vGacc + i))
    e("s_waitcnt lgkmcnt(0)")
    kb.srd(SRD_X, 8, 2048 * 1024)
    kb.srd(SRD_CKV, 10, 2048 * 1024)
    kb.srd(SRD_WQ, 12, 512 * 8192)
    e("s_cmp_lt_u32 s%d, 4" % sW_ID)
    e("s_cselect_b32 s%d, s14, s16" % SRD_W1)
    e("s_cselect_b32 s%d, s15, s17" % (SRD_W1 + 1))
    e("s_mov_b32 s%d, 0x%x" % (SRD_W1 + 2, 512 * 8192))
    e("s_mov_b32 s%d, 0x00020000" % (SRD_W1 + 3))
    kb.srd(SRD_XB, 20, 2048 * 1024)
    e("s_and_b32 s%d, s%d, 1" % (sT, sGC))
    e("s_cmp_eq_u32 s%d, 0" % sT)
    e("s_cselect_b32 s%d, s24, s26" % SRD_BM)
    e("s_cselect_b32 s%d, s25, s27" % (SRD_BM + 1))
    e("s_mov_b32 s%d, 0x%x" % (SRD_BM + 2, 512 * 1024))
    e("s_mov_b32 s%d, 0x00020000" % (SRD_BM + 3))
    kb.srd(SRD_WS, 28, WS_BYTES)
    e("s_lshl_b32 s%d, s%d, 18" % (sA, sM))
    e("s_lshl_b32 s%d, s%d, 15" % (sT, sW_ID))
    e("s_add_u32 s%d, s%d, s%d" % (sA, sA, sT))
    e("s_mov_b32 s%d, s%d" % (sA2, sA))
    e("s_and_b32 s%d, s%d, 3" % (sT, sW_ID))
    e("s_lshl_b32 s%d, s%d, 17" % (sT, sT))
    e("s_lshl_b32 s%d, s%d, 8" % (sT2, sH))
    e("s_add_u32 s%d, s%d, s%d" % (sW, sT, sT2))
    e("s_lshl_b32 s%d, s%d, 16" % (sT, sW_ID))
    e("s_add_u32 s%d, s%d, s%d" % (sW2, sT, sT2))
    e("s_lshl_b32 s%d, s%d, 17" % (sGX, sGT_))
    e("s_lshl_b32 s%d, s%d, 14" % (sT, sW_ID))
    e("s_add_u32 s%d, s%d, s%d" % (sGX, sGX, sT))
    e("s_lshr_b32 s%d, s%d, 1" % (sT, sGC))
    e("s_lshl_b32 s%d, s%d, 16" % (sGB, sT))
    e("s_lshl_b32 s%d, s%d, 13" % (sT, sW_ID))
    e("s_add_u32 s%d, s%d, s%d" % (sGB, sGB, sT))
    e("s_lshl_b32 s%d, s%d, 12" % (sMA, sW_ID))
    e("s_add_u32 s%d, s%d, 32768" % (sMW, sMA))

    def dma_p1(tag):
        e("s_mov_b32 m0, s%d" % sMA)
        e("s_nop 0")
        for n in range(4):
            kb.vmem("buffer_load_dwordx4 v%d, %s, s%d offen offset:%d lds" % (vOffA + n, sr(SRD_CKV, 4), sA, 1024 * n), tag)
        e("s_mov_b32 m0, s%d" % sMW)
        for n in range(4):
            if n:
                e("s_add_u32 s%d, s%d, %d" % (sT, sW, n * 31744))
            else:
                e("s_nop 0")
            kb.vmem("buffer_load_dwordx4 v%d, %s, s%d offen offset:%d lds" % (vOffW, sr(SRD_W1, 4), sT if n else sW, 1024 * n), tag)
        e("s_add_u32 s%d, s%d, 128" % (sA, sA))
        e("s_add_u32 s%d, s%d, %d" % (sW, sW, 64 * 8192))
        e("s_xor_b32 s%d, s%d, 0x10000" % (sMA, sMA))
        e("s_xor_b32 s%d, s%d, 0x10000" % (sMW, sMW))
    def dma_p2(tag):
        e("s_mov_b32 m0, s%d" % sMA)
        e("s_nop 0")
        for n in range(4):
            kb.vmem("buffer_load_dwordx4 v%d, %s, s%d offen offset:%d lds" % (vOffA + n, sr(SRD_X, 4), sA2, 1024 * n), tag)
        e("s_lshl_b32 s%d, s%d, 11" % (sT, sW_ID))
        e("s_sub_u32 s%d, s%d, s%d" % (sT, sMW, sT))
        e("s_mov_b32 m0, s%d" % sT)
        for n in range(2):
            if n:
                e("s_add_u32 s%d, s%d, %d" % (sT, sW2, n * 31744))
            else:
                e("s_nop 0")
            kb.vmem("buffer_load_dwordx4 v%d, %s, s%d offen offset:%d lds" % (vOffW, sr(SRD_WQ, 4), sT if n else sW2, 1024 * n), tag)
        e("s_add_u32 s%d, s%d, 128" % (sA2, sA2))
        e("s_add_u32 s%d, s%d, %d" % (sW2, sW2, 64 * 8192))
        e("s_xor_b32 s%d, s%d, 0x10000" % (sMA, sMA))
        e("s_xor_b32 s%d, s%d, 0x10000" % (sMW, sMW))
    def dma_g(didx, dbase, tag):
        for q in range(2):
            koff = (2 * didx + q) * 128
            e("s_lshl_b32 s%d, s%d, 11" % (sT, sW_ID))
            e("s_add_u32 s%d, s%d, %d" % (sT, sT, dbase + q * 24576))
            e("s_mov_b32 m0, s%d" % sT)
            e("s_add_u32 s%d, s%d, %d" % (sT2, sGX, koff))
            for n in range(2):
                kb.vmem("buffer_load_dwordx4 v%d, %s, s%d offen offset:%d lds" % (vOffA + n, sr(SRD_XB, 4), sT2, 1024 * n), tag)
            e("s_lshl_b32 s%d, s%d, 10" % (sT, sW_ID))
            e("s_add_u32 s%d, s%d, %d" % (sT, sT, dbase + q * 24576 + 16384))
            e("s_mov_b32 m0, s%d" % sT)
            e("s_add_u32 s%d, s%d, %d" % (sT2, sGB, koff))
            kb.vmem("buffer_load_dwordx4 v%d, %s, s%d offen lds" % (vGB, sr(SRD_BM, 4), sT2), tag)

    def g_half(d0, d1):
        areas = [FA, TMP]
        subs = [(d0, 0), (d0, 1), (d1, 0), (d1, 1)]
        e("s_and_b32 s%d, s%d, 3" % (sT, sW_ID))
        e("s_lshl_b32 s%d, s%d, 12" % (sT, sT))
        e("s_lshr_b32 s%d, s%d, 2" % (sT2, sW_ID))
        e("s_lshl_b32 s%d, s%d, 12" % (sT2, sT2))
        e("s_add_u32 s%d, s%d, 16384" % (sT2, sT2))
        def reads(si):
            d, q = subs[si]
            ar = areas[si & 1]
            for ks in range(4):
                e("v_add_u32 v6, s%d, v%d" % (sT, vPA + ks))
                e("v_add_u32 v7, s%d, v%d" % (sT2, vPA + ks))
                e("v_add_u32 v6, 0x%x, v6" % d)
                e("v_add_u32 v7, 0x%x, v7" % d)
                kb.ds("ds_read_b128 %s, v6 offset:%d" % (vr(ar + 8 * ks, 4), q * 24576), ("g", si, ks))
                kb.ds("ds_read_b128 %s, v7 offset:%d" % (vr(ar + 8 * ks + 4, 4), q * 24576), ("g", si, ks))
        def mf(si):
            ar = areas[si & 1]
            for ks in range(4):
                kb.wait_ds(("g", si, ks))
                e("v_mfma_f32_32x32x16_bf16 %s, %s, %s, %s" % (vr(vGacc, 16), vr(ar + 8 * ks, 4), vr(ar + 8 * ks + 4, 4), vr(vGacc, 16)))
        reads(0); reads(1); mf(0); reads(2); mf(1); reads(3); mf(2); mf(3)

    class Cfg: pass
    def mkcfg(nA, va, vw, ktype):
        c = Cfg(); c.nA = nA; c.va = va; c.vw = vw; c.ktype = ktype; return c
    def frag_reads(cfg, ks, st):
        fa = FA + 16 * st; fw = FW + 8 * st
        kb.ds("ds_read_b128 %s, v%d" % (vr(fa, 4), cfg.va + ks), ("A", st, 0))
        for nb in range(2):
            for j in range(2):
                kb.ds("ds_read_b64_tr_b16 %s, v%d offset:%d" % (vr(fw + 4 * nb + 2 * j, 2), cfg.vw + nb, 4096 * ks + 1024 * j), ("W", st, nb))
        for rb in range(1, cfg.nA):
            kb.ds("ds_read_b128 %s, v%d offset:%d" % (vr(fa + 4 * rb, 4), cfg.va + ks, 4096 * rb), ("A", st, rb))
    def toggle(cfg):
        for ks in range(4):
            e("v_xor_b32 v%d, 0x10000, v%d" % (cfg.va + ks, cfg.va + ks))
        for nb in range(2):
            e("v_xor_b32 v%d, 0x10000, v%d" % (cfg.vw + nb, cfg.vw + nb))
    def mfmas(cfg, st, zero=False):
        fa = FA + 16 * st; fw = FW + 8 * st
        for rb in range(cfg.nA):
            for nb in range(2):
                kb.wait_ds(("A", st, rb)); kb.wait_ds(("W", st, nb))
                acc = vr(ACC + 16 * (2 * rb + nb), 16)
                a, b = vr(fa + 4 * rb, 4), vr(fw + 4 * nb, 4)
                if cfg.ktype:
                    a, b = b, a
                e("v_mfma_f32_32x32x16_bf16 %s, %s, %s, %s" % (acc, a, b, "0" if zero else acc))
    def stage(cfg, need_tag, sync_action, next_reads, zero=False):
        for ks in range(4):
            cur = ks & 1
            if ks < 3:
                frag_reads(cfg, ks + 1, cur ^ 1)
            else:
                kb.wait_ds_all()
                if need_tag is None:
                    kb.wait_vm_all()
                else:
                    kb.wait_vm(need_tag)
                e("s_barrier")
                sync_action()
                next_reads()
            mfmas(cfg, cur, zero and ks == 0)

    def pack_store(acc, soff_sgpr, off0, tset):
        for half in range(2):
            t = TMP + 4 * ((2 * tset + half) % 8)
            for k in range(4):
                e("v_cvt_pk_bf16_f32 v%d, v%d, v%d" % (t + k, acc + 8 * half + 2 * k, acc + 8 * half + 2 * k + 1))
            kb.vmem("buffer_store_dwordx4 %s, v%d, %s, s%d offen offset:%d" % (vr(t, 4), vL16, sr(SRD_WS, 4), soff_sgpr, off0 + 1024 * half), "st")

    dma_g(0, 65536, "g01")
    dma_g(1, 114688, "g01")
    dma_p1("p1s0")
    kb.wait_vm("g01")
    e("s_barrier")
    g_half(65536, 114688)
    kb.wait_ds_all()
    kb.wait_vm_all()
    e("s_barrier")
    dma_p1("p1")
    save_lg, save_vm = None, None

    def body(ktype):
        c1 = mkcfg(4, vA, vW, ktype)
        c2 = mkcfg(2, vA2, vW2, True)
        kb.lg = []; kb.vm = ["p1"] * 8
        frag_reads(c1, 0, 0)
        e("s_mov_b32 s%d, 0" % sCnt)
        lab = kb.newlabel("p1loop")
        st_lg = list(kb.lg)
        kb.label(lab)
        def act():
            dma_p1("p1"); toggle(c1)
        stage(c1, None, act, lambda: frag_reads(c1, 0, 0))
        e("s_add_u32 s%d, s%d, 1" % (sCnt, sCnt))
        e("s_cmp_lt_u32 s%d, 6" % sCnt)
        e("s_cbranch_scc1 %s" % lab)
        assert kb.lg == st_lg, (kb.lg, st_lg)
        def act6():
            dma_p2("p2s0"); toggle(c1)
        stage(c1, None, act6, lambda: frag_reads(c1, 0, 0))
        def act7():
            dma_p2("p2s1"); dma_g(2, 114688, "g2")
        stage(c1, None, act7, lambda: frag_reads(c2, 0, 0))
        kb.nop(16)
        e("s_lshl_b32 s%d, s%d, 19" % (sEp, sH))
        e("s_and_b32 s%d, s%d, 1" % (sT, sW_ID))
        e("s_lshr_b32 s%d, s%d, 1" % (sT2, sW_ID))
        e("s_and_b32 s%d, s%d, 1" % (sT2, sT2))
        if ktype:
            e("s_lshl_b32 s%d, s%d, 15" % (sT, sT))
            e("s_add_u32 s%d, s%d, s%d" % (sEp, sEp, sT))
            e("s_lshl_b32 s%d, s%d, 16" % (sT, sM))
            e("s_add_u32 s%d, s%d, s%d" % (sEp, sEp, sT))
            e("s_lshl_b32 s%d, s%d, 12" % (sT2, sT2))
            e("s_add_u32 s%d, s%d, s%d" % (sEp, sEp, sT2))
            e("s_add_u32 s%d, s%d, 0x%x" % (sEp, sEp, KF))
            for rb in range(4):
                e("s_add_u32 s%d, s%d, %d" % (sT, sEp, rb * 8192))
                for nb in range(2):
                    pack_store(ACC + 16 * (2 * rb + nb), sT, nb * 2048, 2 * rb + nb)
        else:
            e("s_lshl_b32 s%d, s%d, 15" % (sT, sT))
            e("s_add_u32 s%d, s%d, s%d" % (sEp, sEp, sT))
            e("s_lshl_b32 s%d, s%d, 16" % (sT, sM))
            e("s_add_u32 s%d, s%d, s%d" % (sEp, sEp, sT))
            e("s_lshl_b32 s%d, s%d, 13" % (sT2, sT2))
            e("s_add_u32 s%d, s%d, s%d" % (sEp, sEp, sT2))
            e("s_add_u32 s%d, s%d, 0x%x" % (sEp, sEp, VF))
            for rb in range(4):
                for nb in range(2):
                    e("s_add_u32 s%d, s%d, %d" % (sT, sEp, (rb >> 1) * 16384 + nb * 4096))
                    pack_store(ACC + 16 * (2 * rb + nb), sT, (rb & 1) * 2048, 2 * rb + nb)
        e("s_branch L_k1_phase2")

    e("s_cmp_lt_u32 s%d, 4" % sW_ID)
    e("s_cbranch_scc0 L_k1_vtype")
    body(True)
    lgA, vmA = list(kb.lg), list(kb.vm)
    kb.label("L_k1_vtype")
    body(False)
    assert kb.lg == lgA and kb.vm == vmA
    kb.label("L_k1_phase2")
    c2 = mkcfg(2, vA2, vW2, True)
    def act2():
        dma_p2("p2"); toggle(c2)
    stage(c2, "p2s1", act2, lambda: frag_reads(c2, 0, 0), zero=True)
    e("s_mov_b32 s%d, 0" % sCnt)
    lab = kb.newlabel("p2loop")
    st_lg = list(kb.lg)
    kb.label(lab)
    stage(c2, None, act2, lambda: frag_reads(c2, 0, 0))
    e("s_add_u32 s%d, s%d, 1" % (sCnt, sCnt))
    e("s_cmp_lt_u32 s%d, 5" % sCnt)
    e("s_cbranch_scc1 %s" % lab)
    assert kb.lg == st_lg
    def act26():
        dma_g(3, 0, "g3"); toggle(c2)
    stage(c2, None, act26, lambda: frag_reads(c2, 0, 0))
    stage(c2, None, lambda: None, lambda: None)
    kb.nop(16)
    e("s_lshl_b32 s%d, s%d, 19" % (sEp, sH))
    e("s_lshl_b32 s%d, s%d, 16" % (sT, sM))
    e("s_add_u32 s%d, s%d, s%d" % (sEp, sEp, sT))
    e("s_and_b32 s%d, s%d, 3" % (sT, sW_ID))
    e("s_lshl_b32 s%d, s%d, 14" % (sT, sT))
    e("s_add_u32 s%d, s%d, s%d" % (sEp, sEp, sT))
    e("s_lshr_b32 s%d, s%d, 2" % (sT, sW_ID))
    e("s_lshl_b32 s%d, s%d, 12" % (sT, sT))
    e("s_add_u32 s%d, s%d, s%d" % (sEp, sEp, sT))
    if QF:
        e("s_add_u32 s%d, s%d, 0x%x" % (sEp, sEp, QF))
    for rb in range(2):
        e("s_add_u32 s%d, s%d, %d" % (sT, sEp, rb * 8192))
        for nb in range(2):
            pack_store(ACC + 16 * (2 * rb + nb), sT, nb * 2048, 2 * rb + nb)
    kb.wait_vm_all()
    g_half(114688, 0)
    kb.nop(16)
    e("s_and_b32 s%d, s%d, 1" % (sT, sGC))
    e("s_lshl_b32 s%d, s%d, 22" % (sEp, sT))
    e("s_lshr_b32 s%d, s%d, 1" % (sT, sGC))
    e("s_lshl_b32 s%d, s%d, 19" % (sT, sT))
    e("s_add_u32 s%d, s%d, s%d" % (sEp, sEp, sT))
    e("s_lshr_b32 s%d, s%d, 2" % (sT, sW_ID))
    e("s_lshl_b32 s%d, s%d, 18" % (sT, sT))
    e("s_add_u32 s%d, s%d, s%d" % (sEp, sEp, sT))
    e("s_lshl_b32 s%d, s%d, 9" % (sT, sGT_))
    e("s_add_u32 s%d, s%d, s%d" % (sEp, sEp, sT))
    e("s_and_b32 s%d, s%d, 3" % (sT, sW_ID))
    e("s_lshl_b32 s%d, s%d, 7" % (sT, sT))
    e("s_add_u32 s%d, s%d, s%d" % (sEp, sEp, sT))
    e("s_add_u32 s%d, s%d, 0x%x" % (sEp, sEp, GT))
    for q in range(4):
        e("buffer_store_dwordx4 %s, v%d, %s, s%d offen offset:%d" % (vr(vGacc + 4 * q, 4), vGst, sr(SRD_WS, 4), sEp, 32 * q))
    kb.label("L_k1_end")
    return kb.text()
```

```python
from asmlib import *
from layout import *
import struct, math

def f32bits(x):
    return struct.unpack("<I", struct.pack("<f", x))[0]

RESCALE_T = 30.0

def gen_k2():
    kb = KB("k2")
    e = kb.e
    sW_ID, sWQ, sH, sI, sGRP = 3, 4, 5, 6, 7
    SRD_WS = 32
    sKb, sVb, sNext, sWrap, sLeft, sMK, sMV, sC, sThr, sCnt, sD, sT, sT2, sT3 = range(36, 50)
    sCm = 52
    sLre, sLim, sLdt = 60, 61, 62
    sP = 64
    sCtx = 80
    vL, vR, vHI, vL16, vF, vDMA, vM, vLs, vT, vT2, vNeg, vThr, vRm = range(1, 14)
    Q, S, P, POOL, O = 16, 48, 80, 96, 160
    LOG2E = 1.4426950408889634
    CSC = (128.0 ** -0.5) * LOG2E

    e("s_cmp_ge_u32 s2, 256")
    e("s_cbranch_scc1 L_k2_end")
    e("s_load_dwordx2 s[28:29], s[0:1], %d" % KA['ws'])
    e("s_load_dwordx4 s[8:11], s[0:1], %d" % KA['lre'])
    e("s_load_dwordx2 s[12:13], s[0:1], %d" % KA['logdt'])
    e("v_and_b32 v%d, 63, v0" % vL)
    e("v_lshrrev_b32 v2, 6, v0")
    e("s_nop 0")
    e("v_readfirstlane_b32 s%d, v2" % sW_ID)
    e("v_and_b32 v%d, 31, v%d" % (vR, vL))
    e("v_lshrrev_b32 v%d, 5, v%d" % (vHI, vL))
    e("v_lshlrev_b32 v%d, 4, v%d" % (vL16, vL))
    e("v_lshlrev_b32 v14, 2, v%d" % vHI)
    e("v_sub_u32 v%d, v%d, v14" % (vRm, vR))
    e("v_mov_b32 v%d, 0xff800000" % vNeg)
    e("s_and_b32 s%d, s%d, 3" % (sWQ, sW_ID))
    e("s_lshr_b32 s%d, s%d, 2" % (sGRP, sW_ID))
    e("s_and_b32 s%d, s2, 7" % sT)
    e("s_lshl_b32 s%d, s%d, 2" % (sT, sT))
    e("s_lshr_b32 s%d, s2, 3" % sT2)
    e("s_and_b32 s%d, s%d, 3" % (sT2, sT2))
    e("s_add_u32 s%d, s%d, s%d" % (sH, sT, sT2))
    e("s_lshr_b32 s%d, s2, 5" % sI)
    e("s_mov_b32 s%d, 0x%x" % (sC, f32bits(CSC)))
    e("s_mov_b32 s%d, 0x%x" % (sThr, f32bits(RESCALE_T)))
    e("s_lshl_b32 s%d, s%d, 16" % (sT, sGRP))
    e("v_add_u32 v%d, s%d, v%d" % (vF, sT, vL16))
    e("s_lshl_b32 s%d, s%d, 12" % (sT2, sWQ))
    e("v_add_u32 v%d, s%d, v%d" % (vDMA, sT2, vL16))
    e("s_add_u32 s%d, s%d, s%d" % (sMK, sT, sT2))
    e("s_add_u32 s%d, s%d, 16384" % (sMV, sMK))
    e("s_lshl_b32 s%d, s%d, 19" % (sT, sH))
    e("s_add_u32 s%d, s%d, 0x%x" % (sKb, sT, KF))
    e("s_add_u32 s%d, s%d, 0x%x" % (sVb, sT, VF))
    e("s_lshl_b32 s%d, s%d, 1" % (sT, sI))
    e("s_add_u32 s%d, s%d, 2" % (sT2, sT))
    e("s_sub_u32 s%d, 15, s%d" % (sT3, sT))
    e("s_cmp_eq_u32 s%d, 0" % sGRP)
    e("s_cselect_b32 s%d, 0, s%d" % (sNext, sT3))
    e("s_cselect_b32 s%d, s%d, 999" % (sWrap, sT2))
    e("s_mov_b32 s%d, 17" % sLeft)
    e("s_waitcnt lgkmcnt(0)")
    kb.srd(SRD_WS, 28, WS_BYTES)
    e("s_lshl_b32 s%d, s2, 2" % sT)
    e("s_load_dword s%d, s[8:9], s%d" % (sLre, sT))
    e("s_load_dword s%d, s[10:11], s%d" % (sLim, sT))
    e("s_load_dword s%d, s[12:13], s%d" % (sLdt, sT))

    def dma_tile(tag):
        lab = kb.newlabel("nodma")
        e("s_cmp_eq_u32 s%d, 0" % sLeft)
        e("s_cbranch_scc1 %s" % lab)
        e("s_lshl_b32 s%d, s%d, 14" % (sT, sNext))
        e("s_add_u32 s%d, s%d, s%d" % (sT2, sT, sKb))
        e("s_mov_b32 m0, s%d" % sMK)
        e("s_add_u32 s%d, s%d, s%d" % (sT, sT, sVb))
        for n in range(4):
            kb.vmem("buffer_load_dwordx4 v%d, %s, s%d offen offset:%d lds" % (vDMA, sr(SRD_WS, 4), sT2, 1024 * n), tag)
        e("s_mov_b32 m0, s%d" % sMV)
        e("s_sub_u32 s%d, s%d, 1" % (sLeft, sLeft))
        for n in range(4):
            kb.vmem("buffer_load_dwordx4 v%d, %s, s%d offen offset:%d lds" % (vDMA, sr(SRD_WS, 4), sT, 1024 * n), tag)
        e("s_add_u32 s%d, s%d, 1" % (sNext, sNext))
        e("s_cmp_eq_u32 s%d, s%d" % (sNext, sWrap))
        e("s_cselect_b32 s%d, 0, s%d" % (sNext, sNext))
        e("s_cselect_b32 s%d, 999, s%d" % (sWrap, sWrap))
        kb.label(lab)
        e("s_xor_b32 s%d, s%d, 0x8000" % (sMK, sMK))
        e("s_xor_b32 s%d, s%d, 0x8000" % (sMV, sMV))

    GR = POOL
    e("v_lshlrev_b32 v14, 4, v0")
    e("s_lshl_b32 s%d, s2, 14" % sT)
    e("s_add_u32 s%d, s%d, 0x%x" % (sT, sT, GT))
    for ch in range(2):
        for pl in range(2):
            e("s_add_u32 s%d, s%d, %d" % (sT2, sT, pl * 512 * 8192 + ch * 8192))
            kb.vmem("buffer_load_dwordx4 %s, v14, %s, s%d offen" % (vr(GR + 8 * ch + 4 * pl, 4), sr(SRD_WS, 4), sT2), "G")
    dma_tile("t0")
    e("s_sub_u32 s%d, 15, s%d" % (sT, sI))
    e("s_cmp_eq_u32 s%d, 0" % sGRP)
    e("s_cselect_b32 s%d, s%d, s%d" % (sT, sI, sT))
    e("s_lshl_b32 s%d, s%d, 2" % (sT, sT))
    e("s_add_u32 s%d, s%d, s%d" % (sT, sT, sWQ))
    e("s_lshl_b32 s%d, s%d, 6" % (sT2, sH))
    e("s_add_u32 s%d, s%d, s%d" % (sT, sT, sT2))
    e("s_lshl_b32 s%d, s%d, 13" % (sT, sT))
    if QF:
        e("s_add_u32 s%d, s%d, 0x%x" % (sT, sT, QF))
    e("s_add_u32 s%d, s%d, 4096" % (sT2, sT))
    for s in range(8):
        kb.vmem("buffer_load_dwordx4 %s, v%d, %s, s%d offen offset:%d" % (vr(Q + 4 * s, 4), vL16, sr(SRD_WS, 4), sT if s < 4 else sT2, 1024 * (s & 3)), "Q")
    dma_tile("t1")

    e("s_waitcnt lgkmcnt(0)")
    e("s_lshl_b32 s%d, s%d, 16" % (sP + 0, sLre)); e("s_and_b32 s%d, s%d, 0xffff0000" % (sP + 1, sLre))
    e("s_lshl_b32 s%d, s%d, 16" % (sP + 2, sLim)); e("s_and_b32 s%d, s%d, 0xffff0000" % (sP + 3, sLim))
    e("s_lshl_b32 s%d, s%d, 16" % (sP + 4, sLdt)); e("s_and_b32 s%d, s%d, 0xffff0000" % (sP + 5, sLdt))
    e("s_mov_b32 s%d, 0x%x" % (sP + 6, f32bits(LOG2E)))
    e("s_mov_b32 s%d, 0x%x" % (sP + 7, f32bits(1.0 / (2 * math.pi))))
    e("v_cvt_f32_u32 v15, v%d" % vL)
    e("v_mul_f32 v15, 4.0, v15")
    def cmul(dr, di, ar, ai, br, bi, t):
        e("v_mul_f32 v%d, v%d, v%d" % (t, ai, bi))
        e("v_fma_f32 v%d, v%d, v%d, -v%d" % (dr, ar, br, t))
        e("v_mul_f32 v%d, v%d, v%d" % (t, ai, br))
        e("v_fma_f32 v%d, v%d, v%d, v%d" % (di, ar, bi, t))
    def cfma(dr, di, ar, ai, br, bi):
        e("v_fma_f32 v%d, v%d, v%d, v%d" % (dr, ar, br, dr))
        e("v_fma_f32 v%d, -v%d, v%d, v%d" % (dr, ai, bi, dr))
        e("v_fma_f32 v%d, v%d, v%d, v%d" % (di, ar, bi, di))
        e("v_fma_f32 v%d, v%d, v%d, v%d" % (di, ai, br, di))
    CH = []
    for ch in range(2):
        B = 112 + 56 * ch
        R = dict(lr=B, li=B + 1, dt=B + 2, a=B + 3, b=B + 4, t=B + 5, t2=B + 6, cr=B + 7, ci=B + 8,
                 L1=B + 9, L2=B + 11, L3=B + 13, MU=B + 15,
                 PL=B + 29, H=B + 31,
                 X=B + 39, Y=B + 41, CW=B + 43, WC=B + 45)
        CH.append(R)
        e("v_mov_b32 v%d, s%d" % (R['lr'], sP + ch))
        e("v_mov_b32 v%d, s%d" % (R['li'], sP + 2 + ch))
        e("v_mov_b32 v%d, s%d" % (R['t'], sP + 4 + ch))
        e("v_mul_f32 v%d, s%d, v%d" % (R['t'], sP + 6, R['t']))
        e("v_exp_f32 v%d, v%d" % (R['t'], R['t']))
        e("s_nop 0")
        e("v_cvt_pk_bf16_f32 v%d, v%d, v%d" % (R['t'], R['t'], R['t']))
        e("v_lshlrev_b32 v%d, 16, v%d" % (R['dt'], R['t']))
        e("v_mul_f32 v%d, v%d, v%d" % (R['a'], R['dt'], R['lr']))
        e("v_mul_f32 v%d, v%d, v%d" % (R['b'], R['dt'], R['li']))
        e("v_mul_f32 v%d, s%d, v%d" % (R['a'], sP + 6, R['a']))
        e("v_mul_f32 v%d, s%d, v%d" % (R['b'], sP + 7, R['b']))
        def cexp(dr, di, va, vb):
            e("v_exp_f32 v%d, v%d" % (R['t'], va))
            e("v_fract_f32 v%d, v%d" % (R['t2'], vb))
            e("v_cos_f32 v%d, v%d" % (dr, R['t2']))
            e("v_sin_f32 v%d, v%d" % (di, R['t2']))
            e("s_nop 0")
            e("v_mul_f32 v%d, v%d, v%d" % (dr, dr, R['t']))
            e("v_mul_f32 v%d, v%d, v%d" % (di, di, R['t']))
        cexp(R['L1'], R['L1'] + 1, R['a'], R['b'])
        e("v_mul_f32 v%d, v15, v%d" % (R['X'], R['a']))
        e("v_mul_f32 v%d, v15, v%d" % (R['X'] + 1, R['b']))
        cexp(R['PL'], R['PL'] + 1, R['X'], R['X'] + 1)
        e("v_add_f32 v%d, -1.0, v%d" % (R['X'], R['L1']))
        e("v_mul_f32 v%d, v%d, v%d" % (R['t'], R['lr'], R['lr']))
        e("v_fma_f32 v%d, v%d, v%d, v%d" % (R['t'], R['li'], R['li'], R['t']))
        e("v_rcp_f32 v%d, v%d" % (R['t'], R['t']))
        e("v_mul_f32 v%d, v%d, v%d" % (R['cr'], R['X'], R['lr']))
        e("v_fma_f32 v%d, v%d, v%d, v%d" % (R['cr'], R['L1'] + 1, R['li'], R['cr']))
        e("v_mul_f32 v%d, v%d, v%d" % (R['ci'], R['L1'] + 1, R['lr']))
        e("v_fma_f32 v%d, -v%d, v%d, v%d" % (R['ci'], R['X'], R['li'], R['ci']))
        e("v_mul_f32 v%d, v%d, v%d" % (R['cr'], R['cr'], R['t']))
        e("v_mul_f32 v%d, v%d, v%d" % (R['ci'], R['ci'], R['t']))
        cmul(R['L2'], R['L2'] + 1, R['L1'], R['L1'] + 1, R['L1'], R['L1'] + 1, R['t'])
        cmul(R['L3'], R['L3'] + 1, R['L2'], R['L2'] + 1, R['L1'], R['L1'] + 1, R['t'])
        cmul(R['MU'], R['MU'] + 1, R['L2'], R['L2'] + 1, R['L2'], R['L2'] + 1, R['t'])
        for k in range(1, 7):
            a = R['MU'] + 2 * (k - 1)
            cmul(a + 2, a + 3, a, a + 1, a, a + 1, R['t'])
    kb.wait_vm("G")
    for ch in range(2):
        R = CH[ch]
        gr, gi = GR + 8 * ch, GR + 8 * ch + 4
        for i in range(4):
            hr, hi_ = R['H'] + 2 * i, R['H'] + 2 * i + 1
            cmul(hr, hi_, R['cr'], R['ci'], gr + i, gi + i, R['t'])
            if i:
                cfma(hr, hi_, R['L1'], R['L1'] + 1, hr - 2, hi_ - 2)
        e("v_mov_b32 v%d, v%d" % (R['X'], R['H'] + 6))
        e("v_mov_b32 v%d, v%d" % (R['X'] + 1, R['H'] + 7))
    def shifted(d, dst_key):
        e("v_subrev_u32 v14, %d, v%d" % (d, vL))
        e("v_and_b32 v14, 63, v14")
        e("v_lshlrev_b32 v14, 2, v14")
        for ch in range(2):
            R = CH[ch]
            for c in range(2):
                kb.ds("ds_bpermute_b32 v%d, v14, v%d" % (R[dst_key] + c, R['X'] + c), "bp")
        e("v_cmp_le_u32 vcc, %d, v%d" % (d, vL))
        kb.wait_ds_all()
        e("s_nop 1")
        for ch in range(2):
            R = CH[ch]
            for c in range(2):
                e("v_cndmask_b32 v%d, 0, v%d, vcc" % (R[dst_key] + c, R[dst_key] + c))
    for k in range(6):
        shifted(1 << k, 'Y')
        for ch in range(2):
            R = CH[ch]
            cfma(R['X'], R['X'] + 1, R['MU'] + 2 * k, R['MU'] + 2 * k + 1, R['Y'], R['Y'] + 1)
    shifted(1, 'CW')
    e("s_nop 1")
    for ch in range(2):
        for c in range(2):
            e("v_readlane_b32 s%d, v%d, 63" % (sP + 8 + 2 * ch + c, CH[ch]['X'] + c))
    e("s_lshl_b32 s%d, s%d, 4" % (sT, sW_ID))
    e("s_add_u32 s%d, s%d, 131072" % (sT, sT))
    e("v_mov_b32 v14, s%d" % sT)
    for k in range(4):
        e("v_mov_b32 v%d, s%d" % (96 + k, sP + 8 + k))
    e("ds_write_b128 v14, v[96:99]")
    e("s_waitcnt lgkmcnt(0)")
    e("s_barrier")
    e("v_mov_b32 v14, 0x20000")
    TOT = 48
    for j in range(7):
        e("ds_read_b128 %s, v14 offset:%d" % (vr(TOT + 4 * j, 4), 16 * j))
    for ch in range(2):
        e("v_mov_b32 v%d, 0" % CH[ch]['WC']); e("v_mov_b32 v%d, 0" % (CH[ch]['WC'] + 1))
    e("s_waitcnt lgkmcnt(0)")
    for j in range(7):
        e("s_cmp_gt_u32 s%d, %d" % (sW_ID, j))
        e("s_cbranch_scc0 L_k2_horner_done")
        for ch in range(2):
            R = CH[ch]
            e("v_mov_b32 v%d, v%d" % (R['Y'], TOT + 4 * j + 2 * ch))
            e("v_mov_b32 v%d, v%d" % (R['Y'] + 1, TOT + 4 * j + 2 * ch + 1))
            cfma(R['Y'], R['Y'] + 1, R['WC'], R['WC'] + 1, R['MU'] + 12, R['MU'] + 13)
            e("v_mov_b32 v%d, v%d" % (R['WC'], R['Y']))
            e("v_mov_b32 v%d, v%d" % (R['WC'] + 1, R['Y'] + 1))
    kb.label("L_k2_horner_done")
    for ch in range(2):
        R = CH[ch]
        cfma(R['CW'], R['CW'] + 1, R['PL'], R['PL'] + 1, R['WC'], R['WC'] + 1)
        for i, key in enumerate(['L1', 'L2', 'L3', 'MU']):
            cfma(R['H'] + 2 * i, R['H'] + 2 * i + 1, R[key], R[key] + 1, R['CW'], R['CW'] + 1)
    e("v_lshrrev_b32 v14, 3, v0")
    e("v_lshlrev_b32 v14, 16, v14")
    e("v_and_b32 v15, 7, v0")
    e("v_lshl_add_u32 v14, v15, 6, v14")
    e("s_lshr_b32 s%d, s2, 3" % sT)
    e("s_lshl_b32 s%d, s%d, 10" % (sT, sT))
    e("s_lshr_b32 s%d, s2, 2" % sT2)
    e("s_and_b32 s%d, s%d, 1" % (sT2, sT2))
    e("s_lshl_b32 s%d, s%d, 9" % (sT2, sT2))
    e("s_add_u32 s%d, s%d, s%d" % (sT, sT, sT2))
    e("s_and_b32 s%d, s2, 3" % sT2)
    e("s_lshl_b32 s%d, s%d, 2" % (sT2, sT2))
    e("s_add_u32 s%d, s%d, s%d" % (sT, sT, sT2))
    e("s_add_u32 s%d, s%d, 0x%x" % (sT, sT, HF))
    e("s_add_u32 s%d, s%d, 32768" % (sT2, sT))
    for i in range(4):
        e("v_cvt_pk_bf16_f32 v%d, v%d, v%d" % (96 + 2 * i, CH[0]['H'] + 2 * i, CH[1]['H'] + 2 * i))
        e("v_cvt_pk_bf16_f32 v%d, -v%d, -v%d" % (97 + 2 * i, CH[0]['H'] + 2 * i + 1, CH[1]['H'] + 2 * i + 1))
        kb.vmem("buffer_store_dword v%d, v14, %s, s%d offen offset:%d" % (96 + 2 * i, sr(SRD_WS, 4), sT, 16 * i), "Hst")
        kb.vmem("buffer_store_dword v%d, v14, %s, s%d offen offset:%d" % (97 + 2 * i, sr(SRD_WS, 4), sT2, 16 * i), "Hst")

    def reset_state():
        for i in range(64):
            e("v_mov_b32 v%d, 0" % (O + i))
        e("v_mov_b32 v%d, 0x%x" % (vM, f32bits(-1e30)))
        e("v_mov_b32 v%d, 0" % vLs)
    kb.wait_vm("Q")
    e("s_waitcnt lgkmcnt(0)")
    e("s_barrier")
    e("s_cmp_eq_u32 s%d, 0" % sGRP)
    e("s_cbranch_scc0 L_k2_noqh")
    e("s_sub_u32 s%d, 15, s%d" % (sT, sI))
    e("s_lshl_b32 s%d, s%d, 2" % (sT, sT))
    e("s_add_u32 s%d, s%d, s%d" % (sT, sT, sWQ))
    e("s_lshl_b32 s%d, s%d, 6" % (sT2, sH))
    e("s_add_u32 s%d, s%d, s%d" % (sT, sT, sT2))
    e("s_lshl_b32 s%d, s%d, 13" % (sT, sT))
    if QF:
        e("s_add_u32 s%d, s%d, 0x%x" % (sT, sT, QF))
    e("s_lshl_b32 s%d, s%d, 13" % (sT2, sWQ))
    e("s_add_u32 s%d, s%d, 131072" % (sT2, sT2))
    e("s_mov_b32 m0, s%d" % sT2)
    e("s_add_u32 s%d, s%d, 4096" % (sT3, sT))
    for n in range(4):
        e("buffer_load_dwordx4 v%d, %s, s%d offen offset:%d lds" % (vL16, sr(SRD_WS, 4), sT, 1024 * n))
    e("s_add_u32 s%d, s%d, 4096" % (sT2, sT2))
    e("s_mov_b32 m0, s%d" % sT2)
    e("s_nop 0")
    for n in range(4):
        e("buffer_load_dwordx4 v%d, %s, s%d offen offset:%d lds" % (vL16, sr(SRD_WS, 4), sT3, 1024 * n))
    kb.label("L_k2_noqh")
    reset_state()
    kb.lg = []
    for f in range(16):
        kb.ds("ds_read_b128 %s, v%d offset:%d" % (vr(POOL + 4 * f, 4), vF, 1024 * f), ("K", f))
    ENTRY_LG = list(kb.lg)

    rare_blocks = []
    def sync_block():
        kb.wait_all()
        e("s_barrier")
        dma_tile("t")
        e("v_xor_b32 v%d, 0x8000, v%d" % (vF, vF))

    def iter_body(sync_pre, masked):
        assert kb.lg == ENTRY_LG, kb.lg
        for f in range(16):
            u, s = f >> 3, f & 7
            kb.wait_ds(("K", f))
            e("v_mfma_f32_32x32x16_bf16 %s, %s, %s, %s" % (vr(S + 16 * u, 16), vr(POOL + 4 * f, 4), vr(Q + 4 * s, 4), "0" if s == 0 else vr(S + 16 * u, 16)))
            s4, dt = f >> 2, f & 3
            kb.ds("ds_read_b128 %s, v%d offset:%d" % (vr(POOL + 4 * f, 4), vF, 16384 + 1024 * (dt * 4 + s4)), ("V", f))
        if sync_pre:
            sync_block()
        if masked:
            e("v_add_u32 v%d, s%d, v%d" % (vThr, sD, vRm))
            kb.nop(12)
            for b in range(8):
                for k in range(4):
                    idx = 4 * b + k; u, r = idx >> 4, idx & 15
                    c = 32 * u + (r & 3) + 8 * (r >> 2)
                    e("v_cmp_gt_i32 %s, %d, v%d" % (sr(sCm + 2 * k, 2), c, vThr))
                for k in range(4):
                    idx = 4 * b + k
                    e("v_cndmask_b32 v%d, v%d, v%d, %s" % (S + idx, S + idx, vNeg, sr(sCm + 2 * k, 2)))
        e("v_max3_f32 v%d, v%d, v%d, v%d" % (vT, S, S + 1, S + 2))
        for k in range(3, 15, 2):
            e("v_max3_f32 v%d, v%d, v%d, v%d" % (vT, vT, S + k, S + k + 1))
        if not masked and not sync_pre:
            kb.nop(5)
        e("v_max3_f32 v%d, v%d, v%d, v%d" % (vT, vT, S + 15, S + 16))
        for k in range(17, 31, 2):
            e("v_max3_f32 v%d, v%d, v%d, v%d" % (vT, vT, S + k, S + k + 1))
        e("v_max_f32 v%d, v%d, v%d" % (vT, vT, S + 31))
        e("v_mov_b32 v%d, v%d" % (vT2, vT))
        e("s_nop 1")
        e("v_permlane32_swap_b32 v%d, v%d" % (vT, vT2))
        e("v_max_f32 v%d, v%d, v%d" % (vT, vT, vT2))
        e("v_fma_f32 v%d, v%d, s%d, -v%d" % (vT2, vT, sC, vM))
        e("v_cmp_lt_f32 vcc, s%d, v%d" % (sThr, vT2))
        lr = kb.newlabel("rare"); lb = kb.newlabel("back")
        e("s_cbranch_vccnz %s" % lr)
        kb.label(lb)
        rare_blocks.append((lr, lb))
        N = 32
        for k in range(N + 3):
            if k < N:
                e("v_fma_f32 v%d, v%d, s%d, -v%d" % (S + k, S + k, sC, vM))
            if 0 <= k - 1 < N:
                e("v_exp_f32 v%d, v%d" % (S + k - 1, S + k - 1))
            if 0 <= k - 3 < N:
                e("v_add_f32 v%d, v%d, v%d" % (vLs, vLs, S + k - 3))
                if (k - 3) & 1:
                    j = (k - 3) >> 1
                    e("v_cvt_pk_bf16_f32 v%d, v%d, v%d" % (P + j, S + k - 4, S + k - 3))
        if not sync_pre:
            sync_block()
        else:
            e("s_nop 1")
        for k in range(16):
            s4, dt = k >> 2, k & 3
            kb.wait_ds(("V", k))
            e("v_mfma_f32_32x32x16_bf16 %s, %s, %s, %s" % (vr(O + 16 * dt, 16), vr(POOL + 4 * k, 4), vr(P + 4 * s4, 4), vr(O + 16 * dt, 16)))
            kb.ds("ds_read_b128 %s, v%d offset:%d" % (vr(POOL + 4 * k, 4), vF, 1024 * k), ("K", k))
        assert kb.lg == ENTRY_LG, kb.lg

    def loop(n_sgpr_setup, sync_pre, masked, may_be_zero):
        n_sgpr_setup()
        lab = kb.newlabel("loop"); done = kb.newlabel("loopdone")
        if may_be_zero:
            e("s_cmp_eq_u32 s%d, 0" % sCnt)
            e("s_cbranch_scc1 %s" % done)
        kb.label(lab)
        iter_body(sync_pre, masked)
        if masked:
            e("s_sub_u32 s%d, s%d, 64" % (sD, sD))
        e("s_sub_u32 s%d, s%d, 1" % (sCnt, sCnt))
        e("s_cmp_lg_u32 s%d, 0" % sCnt)
        e("s_cbranch_scc1 %s" % lab)
        kb.label(done)

    def lsum_reduce():
        e("v_mov_b32 v%d, v%d" % (vT2, vLs))
        e("s_nop 1")
        e("v_permlane32_swap_b32 v%d, v%d" % (vLs, vT2))
        e("v_add_f32 v%d, v%d, v%d" % (vLs, vLs, vT2))

    def ctx_base(high):
        if high:
            e("s_sub_u32 s%d, 15, s%d" % (sT, sI))
        else:
            e("s_mov_b32 s%d, s%d" % (sT, sI))
        e("s_lshl_b32 s%d, s%d, 2" % (sT, sT))
        e("s_add_u32 s%d, s%d, s%d" % (sT, sT, sWQ))
        e("s_lshl_b32 s%d, s%d, 5" % (sT, sT))
        e("s_add_u32 s%d, s%d, s%d" % (sT, sT, sH))
        e("s_lshl_b32 s%d, s%d, 13" % (sT, sT))
        e("s_add_u32 s%d, s%d, 0x%x" % (sCtx, sT, CF))
        e("s_add_u32 s%d, s%d, 4096" % (sCtx + 1, sCtx))

    def masked_setup():
        e("s_mov_b32 s%d, 2" % sCnt)
        e("s_lshl_b32 s%d, s%d, 5" % (sD, sWQ))

    e("s_cmp_eq_u32 s%d, 0" % sGRP)
    e("s_cbranch_scc0 L_k2_groupB")
    loop(lambda: e("s_lshl_b32 s%d, s%d, 1" % (sCnt, sI)), False, False, True)
    loop(masked_setup, False, True, False)
    e("s_lshl_b32 s%d, s%d, 13" % (sT2, sWQ))
    e("s_add_u32 s%d, s%d, 131072" % (sT2, sT2))
    e("v_add_u32 v14, s%d, v%d" % (sT2, vL16))
    for s in range(8):
        kb.ds("ds_read_b128 %s, v14 offset:%d" % (vr(Q + 4 * s, 4), 1024 * s), ("Qh", s))
    ctx_base(False)
    kb.nop(8)
    lsum_reduce()
    e("v_rcp_f32 v%d, v%d" % (vT, vLs))
    e("s_nop 0")
    for s in range(8):
        t = S + 8 * (s & 3)
        for k in range(8):
            e("v_mul_f32 v%d, v%d, v%d" % (t + k, O + 8 * s + k, vT))
        for k in range(4):
            e("v_cvt_pk_bf16_f32 v%d, v%d, v%d" % (t + k, t + 2 * k, t + 2 * k + 1))
        kb.vmem("buffer_store_dwordx4 %s, v%d, %s, s%d offen offset:%d" % (vr(t, 4), vL16, sr(SRD_WS, 4), sCtx + (s >> 2), 1024 * (s & 3)), "cst")
    reset_state()
    kb.wait_ds_all()
    kb.lg = list(ENTRY_LG)
    def n2():
        e("s_lshl_b32 s%d, s%d, 1" % (sT, sI))
        e("s_sub_u32 s%d, 15, s%d" % (sCnt, sT))
    loop(n2, False, False, False)
    e("s_branch L_k2_merge")
    kb.label("L_k2_groupB")
    kb.lg = list(ENTRY_LG)
    loop(lambda: e("s_mov_b32 s%d, 15" % sCnt), True, False, False)
    loop(masked_setup, True, True, False)
    kb.label("L_k2_merge")
    kb.wait_ds_all()
    ctx_base(True)
    kb.nop(8)
    lsum_reduce()
    MST = 8704
    e("s_mul_i32 s%d, s%d, %d" % (sT, sW_ID, MST))
    e("v_add_u32 v14, s%d, v%d" % (sT, vL16))
    e("s_xor_b32 s%d, s%d, 4" % (sT2, sW_ID))
    e("s_mul_i32 s%d, s%d, %d" % (sT2, sT2, MST))
    e("v_add_u32 v15, s%d, v%d" % (sT2, vL16))
    e("v_lshlrev_b32 v%d, 2, v%d" % (vThr, vL))
    e("v_add_u32 v%d, s%d, v%d" % (vRm, sT, vThr))
    e("v_add_u32 v%d, s%d, v%d" % (vThr, sT2, vThr))
    e("ds_write_b32 v%d, v%d offset:8192" % (vRm, vM))
    e("ds_write_b32 v%d, v%d offset:8448" % (vRm, vLs))
    def merge_side(keep):
        give = 32 - keep
        for q in range(8):
            e("ds_write_b128 v14, %s offset:%d" % (vr(O + give + 4 * q, 4), 1024 * q))
        e("s_waitcnt lgkmcnt(0)")
        e("s_barrier")
        e("ds_read_b32 v%d, v%d offset:8192" % (S, vThr))
        e("ds_read_b32 v%d, v%d offset:8448" % (S + 1, vThr))
        for q in range(8):
            e("ds_read_b128 %s, v15 offset:%d" % (vr(POOL + 4 * q, 4), 1024 * q))
        e("s_waitcnt lgkmcnt(8)")
        e("v_max_f32 v%d, v%d, v%d" % (vT, vM, S))
        e("v_sub_f32 v%d, v%d, v%d" % (S + 2, vM, vT))
        e("v_sub_f32 v%d, v%d, v%d" % (S + 3, S, vT))
        e("v_exp_f32 v%d, v%d" % (S + 2, S + 2))
        e("v_exp_f32 v%d, v%d" % (S + 3, S + 3))
        e("s_nop 0")
        e("v_mul_f32 v%d, v%d, v%d" % (vT, vLs, S + 2))
        e("v_fma_f32 v%d, v%d, v%d, v%d" % (vT, S + 1, S + 3, vT))
        e("v_rcp_f32 v%d, v%d" % (vT, vT))
        e("s_nop 0")
        e("v_mul_f32 v%d, v%d, v%d" % (S + 2, S + 2, vT))
        e("v_mul_f32 v%d, v%d, v%d" % (S + 3, S + 3, vT))
        e("s_waitcnt lgkmcnt(0)")
        for s in range(4):
            t = S + 8 + 8 * (s & 1)
            for k in range(8):
                e("v_mul_f32 v%d, v%d, v%d" % (t + k, O + keep + 8 * s + k, S + 2))
                e("v_fma_f32 v%d, v%d, v%d, v%d" % (t + k, POOL + 8 * s + k, S + 3, t + k))
            for k in range(4):
                e("v_cvt_pk_bf16_f32 v%d, v%d, v%d" % (t + k, t + 2 * k, t + 2 * k + 1))
            e("buffer_store_dwordx4 %s, v%d, %s, s%d offen offset:%d" % (vr(t, 4), vL16, sr(SRD_WS, 4), sCtx + (keep >> 5), 1024 * s))
        e("s_branch L_k2_end")
    e("s_cmp_eq_u32 s%d, 0" % sGRP)
    e("s_cbranch_scc0 L_k2_mergeB")
    merge_side(0)
    kb.label("L_k2_mergeB")
    merge_side(32)
    for lr, lb in rare_blocks:
        kb.label(lr)
        e("v_mul_f32 v%d, s%d, v%d" % (vT2, sC, vT))
        e("v_max_f32 v%d, v%d, v%d" % (vT2, vT2, vM))
        e("v_sub_f32 v%d, v%d, v%d" % (vT, vM, vT2))
        e("v_exp_f32 v%d, v%d" % (vT, vT))
        e("v_mov_b32 v%d, v%d" % (vM, vT2))
        e("v_mul_f32 v%d, v%d, v%d" % (vLs, vLs, vT))
        for i in range(64):
            e("v_mul_f32 v%d, v%d, v%d" % (O + i, O + i, vT))
        e("s_branch %s" % lb)
    kb.label("L_k2_end")
    return kb.text()
```

```python
from asmlib import *
from layout import *

def gen_k3():
    kb = KB("k3")
    e = kb.e
    sW_ID, sQT, sNT = 3, 4, 5
    SRD_WS, SRD_WO, SRD_C, SRD_XB, SRD_DSK, SRD_OUT = 32, 36, 40, 44, 48, 52
    sT, sT2, sCx0, sCx1, sWo, sH0, sH1, sC0, sC1, sMb, sOut = range(56, 67)
    vL, vR, vHI, vI16, vG4, vL16, vWo0, vWo1, vTr0, vTr1, vC, vO = range(1, 13)
    XD, WF, RING, ACC, ACC2 = 16, 24, 64, 128, 192
    D = 8

    e("s_cmp_ge_u32 s2, 256")
    e("s_cbranch_scc1 L_k3_end")
    e("s_load_dwordx4 s[8:11], s[0:1], %d" % KA['wo'])
    e("s_load_dwordx4 s[12:15], s[0:1], %d" % KA['cre'])
    e("s_load_dwordx4 s[16:19], s[0:1], %d" % KA['dskip'])
    e("s_load_dwordx2 s[28:29], s[0:1], %d" % KA['ws'])
    e("v_and_b32 v%d, 63, v0" % vL)
    e("v_lshrrev_b32 v2, 6, v0")
    e("s_nop 0")
    e("v_readfirstlane_b32 s%d, v2" % sW_ID)
    e("v_and_b32 v%d, 31, v%d" % (vR, vL))
    e("v_lshrrev_b32 v%d, 5, v%d" % (vHI, vL))
    e("v_and_b32 v%d, 15, v%d" % (vI16, vL))
    e("v_lshrrev_b32 v%d, 4, v%d" % (vG4, vL))
    e("v_lshlrev_b32 v%d, 4, v%d" % (vL16, vL))
    e("s_and_b32 s%d, s2, 7" % sT)
    e("s_lshl_b32 s%d, s%d, 2" % (sT, sT))
    e("s_lshr_b32 s%d, s2, 3" % sT2)
    e("s_and_b32 s%d, s%d, 3" % (sT2, sT2))
    e("s_add_u32 s%d, s%d, s%d" % (sQT, sT, sT2))
    e("s_lshr_b32 s%d, s2, 5" % sNT)
    e("v_lshrrev_b32 v13, 2, v%d" % vL)
    e("v_xor_b32 v13, v13, v%d" % vG4)
    e("v_and_b32 v13, 1, v13")
    e("v_lshlrev_b32 v13, 6, v13")
    e("v_lshrrev_b32 v14, 3, v%d" % vL)
    e("v_lshl_add_u32 v13, v14, 10, v13")
    e("v_and_b32 v14, 3, v%d" % vL)
    e("v_lshl_add_u32 v%d, v14, 4, v13" % vWo0)
    e("v_add_u32 v%d, %d, v%d" % (vWo1, 7168, vWo0))
    e("v_lshrrev_b32 v13, 2, v%d" % vI16)
    e("v_lshl_add_u32 v13, v%d, 2, v13" % vHI)
    e("v_lshlrev_b32 v13, 7, v13")
    e("v_and_b32 v14, 1, v%d" % vG4)
    e("v_lshl_add_u32 v13, v14, 5, v13")
    e("v_and_b32 v14, 3, v%d" % vI16)
    e("v_lshl_add_u32 v13, v14, 3, v13")
    e("s_lshl_b32 s%d, s%d, 14" % (sMb, sW_ID))
    e("v_add_u32 v13, s%d, v13" % sMb)
    e("v_lshrrev_b32 v14, 3, v%d" % vI16)
    e("v_lshl_add_u32 v%d, v14, 6, v13" % vTr0)
    e("v_xor_b32 v14, 1, v14")
    e("v_lshl_add_u32 v%d, v14, 6, v13" % vTr1)
    e("v_lshlrev_b32 v13, 4, v%d" % vHI)
    e("v_lshl_add_u32 v%d, v%d, 10, v13" % (vC, vR))
    e("v_lshl_add_u32 v%d, v%d, 12, v13" % (vO, vR))
    e("s_waitcnt lgkmcnt(0)")
    kb.srd(SRD_WS, 28, WS_BYTES)
    kb.srd(SRD_WO, 8, 4096 * 1024)
    kb.srd(SRD_XB, 10, 2048 * 1024)
    e("s_cmp_lt_u32 s%d, 4" % sW_ID)
    e("s_cselect_b32 s%d, s12, s14" % SRD_C)
    e("s_cselect_b32 s%d, s13, s15" % (SRD_C + 1))
    e("s_mov_b32 s%d, 0x%x" % (SRD_C + 2, 512 * 1024))
    e("s_mov_b32 s%d, 0x00020000" % (SRD_C + 3))
    kb.srd(SRD_DSK, 16, 1024)
    kb.srd(SRD_OUT, 18, 2048 * 4096)
    e("s_lshl_b32 s%d, s%d, 19" % (sT, sQT))
    e("s_lshl_b32 s%d, s%d, 15" % (sT2, sW_ID))
    e("s_add_u32 s%d, s%d, s%d" % (sT, sT, sT2))
    e("s_add_u32 s%d, s%d, 0x%x" % (sCx0, sT, CF))
    e("s_add_u32 s%d, s%d, 0x40000" % (sCx1, sCx0))
    e("s_lshl_b32 s%d, s%d, 19" % (sT, sW_ID))
    e("s_lshl_b32 s%d, s%d, 7" % (sT2, sNT))
    e("s_add_u32 s%d, s%d, s%d" % (sWo, sT, sT2))
    e("s_lshl_b32 s%d, s%d, 17" % (sT, sQT))
    e("s_lshr_b32 s%d, s%d, 2" % (sT2, sW_ID))
    e("s_lshl_b32 s%d, s%d, 15" % (sT2, sT2))
    e("s_add_u32 s%d, s%d, s%d" % (sT, sT, sT2))
    e("s_and_b32 s%d, s%d, 3" % (sT2, sW_ID))
    e("s_lshl_b32 s%d, s%d, 13" % (sT2, sT2))
    e("s_add_u32 s%d, s%d, s%d" % (sT, sT, sT2))
    e("s_add_u32 s%d, s%d, 0x%x" % (sH0, sT, HF))
    e("s_add_u32 s%d, s%d, 0x10000" % (sH1, sH0))
    e("s_lshl_b32 s%d, s%d, 16" % (sT, sNT))
    e("s_and_b32 s%d, s%d, 3" % (sT2, sW_ID))
    e("s_lshl_b32 s%d, s%d, 8" % (sT2, sT2))
    e("s_add_u32 s%d, s%d, s%d" % (sC0, sT, sT2))
    e("s_add_u32 s%d, s%d, 0x8000" % (sC1, sC0))

    for j in range(8):
        for qb in range(2):
            base = (sH0, sH1)[qb]
            if j >= 4:
                e("s_add_u32 s%d, s%d, 4096" % (sT, base)); base = sT
            kb.vmem("buffer_load_dwordx4 %s, v%d, %s, s%d offen offset:%d" % (vr(RING + 8 * j + 4 * qb, 4), vL16, sr(SRD_WS, 4), base, 1024 * (j & 3)), ("S", j))
        for nb in range(2):
            kb.vmem("buffer_load_dwordx4 %s, v%d, %s, s%d offen offset:%d" % (vr(ACC + 8 * j + 4 * nb, 4), vC, sr(SRD_C, 4), (sC0, sC1)[nb], 32 * j), ("S", j))
    def wo_dma(j):
        e("s_add_u32 s%d, s%d, %d" % (sT, sMb, (j % D) * 2048))
        e("s_mov_b32 m0, s%d" % sT)
        e("s_add_u32 s%d, s%d, %d" % (sT2, sWo, j * 16384))
        kb.vmem("buffer_load_dwordx4 v%d, %s, s%d offen lds" % (vWo0, sr(SRD_WO, 4), sT2), ("W", j))
        kb.vmem("buffer_load_dwordx4 v%d, %s, s%d offen offset:1024 lds" % (vWo1, sr(SRD_WO, 4), sT2), ("W", j))
    def ctx_load(j):
        for qb in range(2):
            e("s_add_u32 s%d, s%d, %d" % (sT, (sCx0, sCx1)[qb], j * 1024))
            kb.vmem("buffer_load_dwordx4 %s, v%d, %s, s%d offen" % (vr(RING + 8 * (j % D) + 4 * qb, 4), vL16, sr(SRD_WS, 4), sT), ("X", j))
    for j in range(D):
        wo_dma(j)
    e("s_lshl_b32 s%d, s%d, 6" % (sT, sQT))
    e("s_lshr_b32 s%d, s%d, 2" % (sT2, sW_ID))
    e("s_lshl_b32 s%d, s%d, 5" % (sT2, sT2))
    e("s_add_u32 s%d, s%d, s%d" % (sT, sT, sT2))
    e("s_and_b32 s%d, s%d, 3" % (sT2, sW_ID))
    e("s_lshl_b32 s%d, s%d, 4" % (sT2, sT2))
    e("s_lshl_b32 s%d, s%d, 6" % (sOut, sNT))
    e("s_add_u32 s%d, s%d, s%d" % (sT2, sT2, sOut))
    e("s_lshl_b32 s%d, s%d, 12" % (sOut, sT))
    e("s_lshl_b32 s%d, s%d, 2" % (67, sT2))
    e("s_add_u32 s%d, s%d, s67" % (sOut, sOut))
    e("s_lshl_b32 s%d, s%d, 10" % (sT, sT))
    e("s_lshl_b32 s%d, s%d, 1" % (sT2, sT2))
    e("s_add_u32 s%d, s%d, s%d" % (sT, sT, sT2))
    e("v_lshlrev_b32 v13, 3, v%d" % vHI)
    e("v_lshl_add_u32 v14, v%d, 10, v13" % vR)
    for ee in range(2):
        kb.vmem("buffer_load_dwordx2 %s, v14, %s, s%d offen offset:%d" % (vr(XD + 2 * ee, 2), sr(SRD_XB, 4), sT, 16 * ee), "xd")
        kb.vmem("buffer_load_dwordx2 %s, v13, %s, s%d offen offset:%d" % (vr(XD + 4 + 2 * ee, 2), sr(SRD_DSK, 4), sT2, 16 * ee), "xd")
    for j in range(8):
        kb.wait_vm(("S", j))
        for qb in range(2):
            for nb in range(2):
                acc = vr(ACC2 + 16 * (2 * qb + nb), 16)
                e("v_mfma_f32_32x32x16_bf16 %s, %s, %s, %s" % (acc, vr(ACC + 8 * j + 4 * nb, 4), vr(RING + 8 * j + 4 * qb, 4), "0" if j == 0 else acc))
        ctx_load(j)
    def tr_reads(j):
        st = j & 1
        for nb in range(2):
            for jj in range(2):
                kb.ds("ds_read_b64_tr_b16 %s, v%d offset:%d" % (vr(WF + 8 * st + 4 * nb + 2 * jj, 2), (vTr0, vTr1)[nb], (j % D) * 2048 + 1024 * jj), ("T", j))
    kb.wait_vm(("W", 0))
    tr_reads(0)
    for j in range(32):
        if j + 1 < 32:
            kb.wait_vm(("W", j + 1))
            tr_reads(j + 1)
        kb.wait_vm(("X", j))
        kb.wait_ds(("T", j))
        st = j & 1
        for qb in range(2):
            for nb in range(2):
                acc = vr(ACC + 16 * (2 * qb + nb), 16)
                e("v_mfma_f32_32x32x16_bf16 %s, %s, %s, %s" % (acc, vr(WF + 8 * st + 4 * nb, 4), vr(RING + 8 * (j % D) + 4 * qb, 4), "0" if j == 0 else acc))
        if j + D < 32:
            ctx_load(j + D)
            wo_dma(j + D)
    e("v_add_u32 v13, s%d, v%d" % (sMb, vL16))
    e("s_lshl_b32 s%d, s%d, 11" % (sT, sW_ID))
    e("v_add_u32 v14, s%d, v%d" % (sT, vL16))
    e("v_add_u32 v15, 0x10000, v14")
    def reduce_round(acc, ssm):
        for q in range(16):
            e("ds_write_b128 v13, %s offset:%d" % (vr(acc + 4 * q, 4), 1024 * q))
        e("s_waitcnt lgkmcnt(0)")
        e("s_barrier")
        for p in range(8):
            for ee in range(2):
                e("ds_read_b128 %s, v%d offset:%d" % (vr(RING + 8 * p + 4 * ee, 4), 14 if p < 4 else 15, (p & 3) * 16384 + 1024 * ee))
        for p in range(1, 8):
            e("s_waitcnt lgkmcnt(%d)" % (14 - 2 * p))
            for k in range(8):
                e("v_add_f32 v%d, v%d, v%d" % (RING + k, RING + k, RING + 8 * p + k))
        if not ssm:
            for k in range(4):
                e("v_cvt_pk_bf16_f32 v%d, v%d, v%d" % (RING + 8 + k, RING + 2 * k, RING + 2 * k + 1))
            for k in range(4):
                e("v_lshlrev_b32 v%d, 16, v%d" % (RING + 2 * k, RING + 8 + k))
                e("v_and_b32 v%d, 0xffff0000, v%d" % (RING + 2 * k + 1, RING + 8 + k))
        else:
            kb.wait_vm("xd")
            for ee in range(2):
                for k in range(2):
                    xx, dd = XD + 2 * ee + k, XD + 4 + 2 * ee + k
                    t = RING + 8
                    e("v_lshlrev_b32 v%d, 16, v%d" % (t, xx))
                    e("v_and_b32 v%d, 0xffff0000, v%d" % (t + 1, xx))
                    e("v_lshlrev_b32 v%d, 16, v%d" % (t + 2, dd))
                    e("v_and_b32 v%d, 0xffff0000, v%d" % (t + 3, dd))
                    e("v_mul_f32 v%d, v%d, v%d" % (t, t, t + 2))
                    e("v_mul_f32 v%d, v%d, v%d" % (t + 1, t + 1, t + 3))
                    e("v_cvt_pk_bf16_f32 v%d, v%d, v%d" % (t, t, t + 1))
                    e("v_and_b32 v%d, 0xffff0000, v%d" % (t + 1, t))
                    e("v_lshlrev_b32 v%d, 16, v%d" % (t, t))
                    o = RING + 4 * ee + 2 * k
                    e("v_fma_f32 v%d, 2.0, v%d, v%d" % (o, o, t))
                    e("v_fma_f32 v%d, 2.0, v%d, v%d" % (o + 1, o + 1, t + 1))
        for ee in range(2):
            e("buffer_store_dwordx4 %s, v%d, %s, s%d offen offset:%d" % (vr(RING + 4 * ee, 4), vO, sr(SRD_OUT, 4), sOut, 32 * ee + (2048 if ssm else 0)))
    kb.wait_ds_all()
    reduce_round(ACC2, True)
    e("s_barrier")
    e("s_nop 7")
    reduce_round(ACC, False)
    kb.label("L_k3_end")
    return kb.text()
```

```python
MB = 1 << 20
QF = 0
KF = 16 * MB
VF = 32 * MB
CF = 48 * MB
GT = 64 * MB
HF = 72 * MB
CFR = 76 * MB
WOF = 80 * MB
WS_BYTES = 268435456
KA = dict(x=0, ckv=8, wq=16, wuk=24, wuv=32, wo=40, xb=48, lre=56, lim=64, bre=72, bim=80,
          cre=88, cim=96, logdt=104, dskip=112, out=120, dbg=128, ws=136)
```

```python
import sys
from asmlib import *
from layout import *
import k1
NAME = "concat_heads__compressed_kv_cla__ssm_conv_s5__prompt"
def build(which=("k1","k2","k3")):
    kernels = []
    if "k1" in which:
        kernels.append(("proj_kernel", k1.gen_k1(), 256, 102, (256,1,1), (512,1,1), 163840))
    if "k2" in which:
        import k2
        kernels.append(("attn_kernel", k2.gen_k2(), 256, 102, (256,1,1), (512,1,1), 163840))
    if "k3" in which:
        import k3
        kernels.append(("outp_kernel", k3.gen_k3(), 256, 102, (256,1,1), (512,1,1), 163840))
    out = ["; generated by gen/gen.py"]
    for (n, b, vg, sg, g, bl, lds) in kernels:
        out.append("; @launch kernel=%s grid=(%d,%d,%d) block=(%d,%d,%d) lds=%d" % ((n,) + g + bl + (lds,)))
    out.append('.amdgcn_target "amdgcn-amd-amdhsa--gfx950"')
    out.append(".text")
    s = "\n".join(out) + "\n"
    for (n, b, vg, sg, g, bl, lds) in kernels:
        s += kernel_wrap(n, b, vg, sg)
    s += '.section .rodata,"a"\n'
    for (n, b, vg, sg, g, bl, lds) in kernels:
        s += kernel_desc(n, vg, sg)
    return s
if __name__ == "__main__":
    which = sys.argv[2].split(",") if len(sys.argv) > 2 else ("k1","k2","k3")
    open(sys.argv[1], "w").write(build(which))
```

```python
class KB:
    def __init__(self, name):
        self.name = name
        self.lines = []
        self.lg = []
        self.vm = []
        self.uid = 0
    def e(self, s):
        self.lines.append("    " + s)
    def c(self, s):
        self.lines.append("    ; " + s)
    def label(self, l):
        self.lines.append(l + ":")
    def newlabel(self, base):
        self.uid += 1
        return "L_%s_%s_%d" % (self.name, base, self.uid)
    def ds(self, s, tag):
        self.e(s); self.lg.append(tag)
    def wait_ds(self, tag):
        if tag not in self.lg:
            return
        idx = len(self.lg) - 1 - self.lg[::-1].index(tag)
        n = len(self.lg) - 1 - idx
        n = min(n, 15)
        self.e("s_waitcnt lgkmcnt(%d)" % n)
        self.lg = self.lg[len(self.lg) - n:] if n > 0 else []
    def wait_ds_all(self):
        self.e("s_waitcnt lgkmcnt(0)"); self.lg = []
    def vmem(self, s, tag):
        self.e(s); self.vm.append(tag)
    def wait_vm(self, tag):
        if tag not in self.vm:
            return
        idx = len(self.vm) - 1 - self.vm[::-1].index(tag)
        n = len(self.vm) - 1 - idx
        n = min(n, 63)
        self.e("s_waitcnt vmcnt(%d)" % n)
        self.vm = self.vm[len(self.vm) - n:] if n > 0 else []
    def wait_vm_all(self):
        self.e("s_waitcnt vmcnt(0)"); self.vm = []
    def wait_all(self):
        self.e("s_waitcnt vmcnt(0) lgkmcnt(0)"); self.vm = []; self.lg = []
    def nop(self, n):
        while n > 0:
            k = min(n, 16)
            self.e("s_nop %d" % (k - 1)); n -= k
    def srd(self, sd, sptr, nbytes):
        self.e("s_mov_b32 s%d, s%d" % (sd, sptr))
        self.e("s_mov_b32 s%d, s%d" % (sd + 1, sptr + 1))
        self.e("s_mov_b32 s%d, 0x%x" % (sd + 2, nbytes))
        self.e("s_mov_b32 s%d, 0x00020000" % (sd + 3))
    STAMP0 = 82
    def stamp(self, k, real=False, cond=None):
        import os
        if os.environ.get("STAMPS"):
            if cond is not None:
                lab = self.newlabel("st")
                self.e("s_cmp_eq_u32 s%d, %d" % cond)
                self.e("s_cbranch_scc0 %s" % lab)
                self.e("s_memtime s[%d:%d]" % (self.STAMP0 + 2 * k, self.STAMP0 + 2 * k + 1))
                self.label(lab)
                return
            self.e("%s s[%d:%d]" % ("s_memrealtime" if real else "s_memtime", self.STAMP0 + 2 * k, self.STAMP0 + 2 * k + 1))
    def dump_stamps(self, n, swave, wg=0):
        import os
        if not os.environ.get("STAMPS"):
            return
        e = self.e
        lab = self.newlabel("nostamp")
        e("s_cmp_lg_u32 s2, %d" % wg)
        e("s_cbranch_scc1 %s" % lab)
        e("s_load_dwordx2 s[28:29], s[0:1], 128")
        e("s_waitcnt lgkmcnt(0)")
        e("s_mov_b32 s24, s28"); e("s_mov_b32 s25, s29"); e("s_mov_b32 s26, 256"); e("s_mov_b32 s27, 0x00020000")
        e("s_lshl_b32 s30, s%d, 5" % swave)
        e("v_mov_b32 v1, s30")
        for kk, k in enumerate(n):
            e("v_mov_b32 v2, s%d" % (self.STAMP0 + 2 * k))
            e("s_nop 1")
            e("buffer_store_dword v2, v1, s[24:27], 0 offen offset:%d" % (4 * kk))
            e("s_nop 1")
        self.label(lab)
    def wgtime_begin(self):
        import os
        if os.environ.get("WGT"):
            self.e("s_memrealtime s[98:99]")
    def wgtime_end(self, srd_ws, slot):
        import os
        if not os.environ.get("WGT"):
            return
        e = self.e
        e("s_waitcnt vmcnt(0)")
        e("s_memrealtime s[100:101]")
        e("s_waitcnt lgkmcnt(0)")
        e("v_lshrrev_b32 v2, 6, v0")
        e("v_lshlrev_b32 v2, 3, v2")
        e("s_lshl_b32 s97, s2, 6")
        e("s_add_u32 s97, s97, 0x%x" % (100 * (1 << 20) + slot * 65536))
        e("v_mov_b32 v4, s98")
        e("v_mov_b32 v5, s100")
        e("buffer_store_dwordx2 v[4:5], v2, %s, s97 offen" % sr(srd_ws, 4))
    def text(self):
        return "\n".join(self.lines) + "\n"

def vr(a, n):
    return "v[%d:%d]" % (a, a + n - 1)
def sr(a, n):
    return "s[%d:%d]" % (a, a + n - 1)

def kernel_wrap(name, body, vgpr, sgpr):
    head = (".globl %s\n.p2align 8\n.type %s,@function\n%s:\n" % (name, name, name))
    return head + body + "    s_endpgm\n"

def kernel_desc(name, vgpr, sgpr):
    acc = (vgpr + 3) // 4 * 4
    return (""".p2align 6
.amdhsa_kernel %s
  .amdhsa_next_free_vgpr %d
  .amdhsa_next_free_sgpr %d
  .amdhsa_accum_offset %d
  .amdhsa_group_segment_fixed_size 0
  .amdhsa_kernarg_size 144
  .amdhsa_user_sgpr_count 2
  .amdhsa_user_sgpr_kernarg_segment_ptr 1
  .amdhsa_system_sgpr_workgroup_id_x 1
.end_amdhsa_kernel
""" % (name, vgpr, sgpr, acc))
```

```python
from asmlib import *
from layout import *

def gen_k1():
    kb = KB("k1")
    e = kb.e
    sW_ID, sM, sH = 3, 4, 5
    SRD_CKV, SRD_X, SRD_W1, SRD_WQ, SRD_XB, SRD_BM, SRD_WS = 32, 36, 40, 44, 48, 52, 56
    sA, sW, sMA, sMW, sCnt, sT, sT2 = 60, 61, 62, 63, 64, 65, 66
    sA2, sW2 = 67, 68
    sGX, sGB = 69, 70
    sGT_, sGC = 71, 72
    sEp = 73
    vL, vR, vHI, vI16, vG4 = 1, 2, 3, 4, 5
    vOffA = 8
    vOffW = 12
    vGB = 13
    vL16 = 14
    vGst = 15
    vA = 16
    vW = 20
    vPA = 24
    vA2 = 28
    vW2 = 22
    TMP = 32
    FA = 64
    FW = 96
    vGacc = 112
    ACC = 128

    e("s_cmp_ge_u32 s2, 256")
    e("s_cbranch_scc1 L_k1_end")
    kb.stamp(0)
    kb.wgtime_begin()
    e("s_load_dwordx16 s[8:23], s[0:1], 0")
    e("s_load_dwordx4 s[24:27], s[0:1], %d" % KA['bre'])
    e("s_load_dwordx2 s[28:29], s[0:1], %d" % KA['ws'])
    e("s_load_dwordx4 s[76:79], s[0:1], %d" % KA['cre'])
    e("v_and_b32 v%d, 63, v0" % vL)
    e("v_lshrrev_b32 v2, 6, v0")
    e("s_nop 0")
    e("v_readfirstlane_b32 s%d, v2" % sW_ID)
    e("v_and_b32 v%d, 31, v%d" % (vR, vL))
    e("v_lshrrev_b32 v%d, 5, v%d" % (vHI, vL))
    e("v_and_b32 v%d, 15, v%d" % (vI16, vL))
    e("v_lshrrev_b32 v%d, 4, v%d" % (vG4, vL))
    e("v_lshlrev_b32 v%d, 4, v%d" % (vL16, vL))
    e("s_and_b32 s%d, s2, 7" % sT)
    e("s_lshl_b32 s%d, s%d, 2" % (sT, sT))
    e("s_lshr_b32 s%d, s2, 3" % sT2)
    e("s_and_b32 s%d, s%d, 3" % (sT2, sT2))
    e("s_add_u32 s%d, s%d, s%d" % (sH, sT, sT2))
    e("s_lshr_b32 s%d, s2, 5" % sM)
    e("s_and_b32 s%d, s2, 15" % sGT_)
    e("s_lshr_b32 s%d, s2, 4" % sGC)
    e("v_lshrrev_b32 v32, 3, v%d" % vL)
    e("v_lshlrev_b32 v32, 10, v32")
    e("v_and_b32 v33, 7, v%d" % vL)
    e("v_xor_b32 v34, v33, v%d" % vG4)
    e("v_xor_b32 v35, 4, v34")
    e("v_lshl_add_u32 v%d, v34, 4, v32" % (vOffA + 0))
    e("v_lshl_add_u32 v%d, v35, 4, v32" % (vOffA + 1))
    e("v_add_u32 v%d, %d, v%d" % (vOffA + 2, 2 * 7168, vOffA + 0))
    e("v_add_u32 v%d, %d, v%d" % (vOffA + 3, 3 * 7168, vOffA + 1))
    e("s_and_b32 s%d, s%d, 1" % (sT, sW_ID))
    e("s_cmp_eq_u32 s%d, 1" % sT)
    e("s_cselect_b64 vcc, -1, 0")
    e("v_cndmask_b32 v%d, v%d, v%d, vcc" % (vGB, vOffA + 0, vOffA + 1))
    e("v_add_u32 v%d, %d, v%d" % (vOffA + 1, 7168, vOffA + 1))
    e("v_lshrrev_b32 v32, 2, v%d" % vL)
    e("v_and_b32 v32, 3, v32")
    e("v_xor_b32 v32, v32, v%d" % vG4)
    e("v_lshlrev_b32 v32, 6, v32")
    e("v_lshl_add_u32 v32, v%d, 13, v32" % vG4)
    e("v_and_b32 v33, 3, v%d" % vL)
    e("v_lshl_add_u32 v%d, v33, 4, v32" % vOffW)
    e("v_lshrrev_b32 v32, 1, v%d" % vR)
    e("v_and_b32 v32, 7, v32")
    for ks in range(4):
        e("v_add_u32 v33, %d, v%d" % (2 * ks, vHI))
        e("v_xor_b32 v33, v33, v32")
        e("v_lshlrev_b32 v33, 4, v33")
        e("v_lshl_add_u32 v%d, v%d, 7, v33" % (vPA + ks, vR))
    e("v_lshrrev_b32 v34, 2, v%d" % vI16)
    e("v_lshl_add_u32 v35, v%d, 3, v34" % vHI)
    e("v_lshlrev_b32 v35, 8, v35")
    e("v_and_b32 v36, 1, v%d" % vG4)
    e("v_lshl_add_u32 v35, v36, 5, v35")
    e("v_and_b32 v36, 3, v%d" % vI16)
    e("v_lshl_add_u32 v35, v36, 3, v35")
    e("s_lshr_b32 s%d, s%d, 1" % (sT, sW_ID))
    e("s_and_b32 s%d, s%d, 1" % (sT, sT))
    e("s_lshl_b32 s%d, s%d, 1" % (sT, sT))
    e("s_lshr_b32 s%d, s%d, 2" % (sT2, sW_ID))
    e("s_lshl_b32 s%d, s%d, 14" % (sT2, sT2))
    e("s_add_u32 s%d, s%d, 32768" % (sT2, sT2))
    for nb in range(2):
        e("v_add_u32 v36, %d, v34" % 0)
        e("v_xor_b32 v36, s%d, v36" % sT)
        if nb:
            e("v_xor_b32 v36, 1, v36")
        e("v_lshl_add_u32 v36, v36, 6, v35")
        e("v_add_u32 v%d, s%d, v36" % (vW + nb, sT2))
    e("s_lshr_b32 s%d, s%d, 2" % (sT, sW_ID))
    e("s_lshl_b32 s%d, s%d, 1" % (sT, sT))
    for nb in range(2):
        e("v_xor_b32 v36, s%d, v34" % sT)
        if nb:
            e("v_xor_b32 v36, 1, v36")
        e("v_lshl_add_u32 v36, v36, 6, v35")
        e("v_add_u32 v%d, 0x8000, v36" % (vW2 + nb))
    e("s_and_b32 s%d, s%d, 1" % (sT, sW_ID))
    e("s_lshl_b32 s%d, s%d, 14" % (sT, sT))
    e("s_and_b32 s%d, s%d, 3" % (sT2, sW_ID))
    e("s_lshl_b32 s%d, s%d, 13" % (sT2, sT2))
    for ks in range(4):
        e("v_add_u32 v%d, s%d, v%d" % (vA + ks, sT, vPA + ks))
        e("v_add_u32 v%d, s%d, v%d" % (vA2 + ks, sT2, vPA + ks))
    e("v_lshlrev_b32 v36, 4, v%d" % vHI)
    e("v_lshl_add_u32 v%d, v%d, 13, v36" % (vGst, vR))
    for i in range(128):
        e("v_mov_b32 v%d, 0" % (ACC + i))
    for i in range(16):
        e("v_mov_b32 v%d, 0" % (vGacc + i))
    e("s_waitcnt lgkmcnt(0)")
    kb.srd(SRD_X, 8, 2048 * 1024)
    kb.srd(SRD_CKV, 10, 2048 * 1024)
    kb.srd(SRD_WQ, 12, 512 * 8192)
    e("s_cmp_lt_u32 s%d, 4" % sW_ID)
    e("s_cselect_b32 s%d, s14, s16" % SRD_W1)
    e("s_cselect_b32 s%d, s15, s17" % (SRD_W1 + 1))
    e("s_mov_b32 s%d, 0x%x" % (SRD_W1 + 2, 512 * 8192))
    e("s_mov_b32 s%d, 0x00020000" % (SRD_W1 + 3))
    kb.srd(SRD_XB, 20, 2048 * 1024)
    e("s_and_b32 s%d, s%d, 1" % (sT, sGC))
    e("s_cmp_eq_u32 s%d, 0" % sT)
    e("s_cselect_b32 s%d, s24, s26" % SRD_BM)
    e("s_cselect_b32 s%d, s25, s27" % (SRD_BM + 1))
    e("s_mov_b32 s%d, 0x%x" % (SRD_BM + 2, 512 * 1024))
    e("s_mov_b32 s%d, 0x00020000" % (SRD_BM + 3))
    kb.srd(SRD_WS, 28, WS_BYTES)
    e("s_cmp_lt_u32 s%d, 4" % sW_ID)
    e("s_cbranch_scc1 L_k1_nocf")
    e("s_lshl_b32 s%d, s2, 2" % sT)
    e("s_add_u32 s%d, s%d, s%d" % (sT, sT, sW_ID))
    e("s_sub_u32 s%d, s%d, 4" % (sT, sT))
    e("s_lshl_b32 s75, s%d, 10" % sT)
    e("s_add_u32 s75, s75, 0x%x" % CFR)
    e("s_and_b32 s%d, s%d, 63" % (sT2, sT))
    e("s_lshl_b32 s%d, s%d, 4" % (sT2, sT2))
    e("s_lshr_b32 s%d, s%d, 6" % (sT, sT))
    e("s_lshl_b32 s%d, s%d, 15" % (sT, sT))
    e("s_add_u32 s%d, s%d, s%d" % (sT, sT, sT2))
    e("v_lshlrev_b32 v6, 3, v%d" % vHI)
    e("v_lshl_add_u32 v6, v%d, 10, v6" % vR)
    e("s_mov_b32 s28, s76"); e("s_mov_b32 s29, s77"); e("s_mov_b32 s30, 0x80000"); e("s_mov_b32 s31, 0x00020000")
    e("buffer_load_dwordx2 v[96:97], v6, s[28:31], s%d offen" % sT)
    e("s_mov_b32 s28, s78"); e("s_mov_b32 s29, s79")
    e("s_nop 0")
    e("buffer_load_dwordx2 v[98:99], v6, s[28:31], s%d offen" % sT)
    kb.label("L_k1_nocf")
    e("s_lshl_b32 s%d, s%d, 18" % (sA, sM))
    e("s_lshl_b32 s%d, s%d, 15" % (sT, sW_ID))
    e("s_add_u32 s%d, s%d, s%d" % (sA, sA, sT))
    e("s_mov_b32 s%d, s%d" % (sA2, sA))
    e("s_and_b32 s%d, s%d, 3" % (sT, sW_ID))
    e("s_lshl_b32 s%d, s%d, 17" % (sT, sT))
    e("s_lshl_b32 s%d, s%d, 8" % (sT2, sH))
    e("s_add_u32 s%d, s%d, s%d" % (sW, sT, sT2))
    e("s_lshl_b32 s%d, s%d, 16" % (sT, sW_ID))
    e("s_add_u32 s%d, s%d, s%d" % (sW2, sT, sT2))
    e("s_lshl_b32 s%d, s%d, 17" % (sGX, sGT_))
    e("s_lshl_b32 s%d, s%d, 14" % (sT, sW_ID))
    e("s_add_u32 s%d, s%d, s%d" % (sGX, sGX, sT))
    e("s_lshr_b32 s%d, s%d, 1" % (sT, sGC))
    e("s_lshl_b32 s%d, s%d, 16" % (sGB, sT))
    e("s_lshl_b32 s%d, s%d, 13" % (sT, sW_ID))
    e("s_add_u32 s%d, s%d, s%d" % (sGB, sGB, sT))
    e("s_lshl_b32 s%d, s%d, 12" % (sMA, sW_ID))
    e("s_add_u32 s%d, s%d, 32768" % (sMW, sMA))

    pending = []
    sDT = 74
    def drain(n=1):
        for _ in range(n):
            if pending:
                pending.pop(0)()
    def drain_all():
        while pending:
            pending.pop(0)()
    def pieces_p1(tag):
        out = []
        for n in range(4):
            def f(n=n):
                if n == 0:
                    e("s_mov_b32 m0, s%d" % sMA)
                    e("s_nop 0")
                kb.vmem("buffer_load_dwordx4 v%d, %s, s%d offen offset:%d lds" % (vOffA + n, sr(SRD_CKV, 4), sA, 1024 * n), tag)
            out.append(f)
        for n in range(4):
            def f(n=n):
                if n == 0:
                    e("s_mov_b32 m0, s%d" % sMW)
                e("s_add_u32 s%d, s%d, %d" % (sDT, sW, n * 31744))
                kb.vmem("buffer_load_dwordx4 v%d, %s, s%d offen offset:%d lds" % (vOffW, sr(SRD_W1, 4), sDT, 1024 * n), tag)
                if n == 3:
                    e("s_add_u32 s%d, s%d, 128" % (sA, sA))
                    e("s_add_u32 s%d, s%d, %d" % (sW, sW, 64 * 8192))
                    e("s_xor_b32 s%d, s%d, 0x10000" % (sMA, sMA))
                    e("s_xor_b32 s%d, s%d, 0x10000" % (sMW, sMW))
            out.append(f)
        return out
    PB = [0, 65536, 114688]
    def pieces_p2(tag, buf):
        out = []
        for n in range(4):
            def f(n=n):
                if n == 0:
                    e("s_lshl_b32 s%d, s%d, 12" % (sDT, sW_ID))
                    e("s_add_u32 s%d, s%d, %d" % (sDT, sDT, buf))
                    e("s_mov_b32 m0, s%d" % sDT)
                    e("s_nop 0")
                kb.vmem("buffer_load_dwordx4 v%d, %s, s%d offen offset:%d lds" % (vOffA + n, sr(SRD_X, 4), sA2, 1024 * n), tag)
            out.append(f)
        for n in range(2):
            def f(n=n):
                if n == 0:
                    e("s_lshl_b32 s%d, s%d, 11" % (sDT, sW_ID))
                    e("s_add_u32 s%d, s%d, %d" % (sDT, sDT, buf + 32768))
                    e("s_mov_b32 m0, s%d" % sDT)
                e("s_add_u32 s%d, s%d, %d" % (sDT, sW2, n * 31744))
                kb.vmem("buffer_load_dwordx4 v%d, %s, s%d offen offset:%d lds" % (vOffW, sr(SRD_WQ, 4), sDT, 1024 * n), tag)
                if n == 1:
                    e("s_add_u32 s%d, s%d, 128" % (sA2, sA2))
                    e("s_add_u32 s%d, s%d, %d" % (sW2, sW2, 64 * 8192))
            out.append(f)
        return out
    def dma_p1(tag, now=False):
        pending.extend(pieces_p1(tag))
        if now: drain_all()
    def dma_p2(j, now=False):
        pending.extend(pieces_p2(("p2", j), PB[j % 3]))
        if now: drain_all()
    def dma_g(didx, dbase, tag, now=False):
        for q in range(2):
            koff = (2 * didx + q) * 128
            for n in range(2):
                def f(n=n, q=q, koff=koff):
                    if n == 0:
                        e("s_lshl_b32 s%d, s%d, 11" % (sDT, sW_ID))
                        e("s_add_u32 s%d, s%d, %d" % (sDT, sDT, dbase + q * 24576))
                        e("s_mov_b32 m0, s%d" % sDT)
                    e("s_add_u32 s%d, s%d, %d" % (sDT, sGX, koff))
                    kb.vmem("buffer_load_dwordx4 v%d, %s, s%d offen offset:%d lds" % (vOffA + n, sr(SRD_XB, 4), sDT, 1024 * n), tag)
                pending.append(f)
            def f2(q=q, koff=koff):
                e("s_lshl_b32 s%d, s%d, 10" % (sDT, sW_ID))
                e("s_add_u32 s%d, s%d, %d" % (sDT, sDT, dbase + q * 24576 + 16384))
                e("s_mov_b32 m0, s%d" % sDT)
                e("s_add_u32 s%d, s%d, %d" % (sDT, sGB, koff))
                kb.vmem("buffer_load_dwordx4 v%d, %s, s%d offen lds" % (vGB, sr(SRD_BM, 4), sDT), tag)
            pending.append(f2)
        if now: drain_all()

    def g_half(d0, d1):
        areas = [FA, TMP]
        subs = [(d0, 0), (d0, 1), (d1, 0), (d1, 1)]
        e("s_and_b32 s%d, s%d, 3" % (sT, sW_ID))
        e("s_lshl_b32 s%d, s%d, 12" % (sT, sT))
        e("s_lshr_b32 s%d, s%d, 2" % (sT2, sW_ID))
        e("s_lshl_b32 s%d, s%d, 12" % (sT2, sT2))
        e("s_add_u32 s%d, s%d, 16384" % (sT2, sT2))
        def reads(si):
            d, q = subs[si]
            ar = areas[si & 1]
            for ks in range(4):
                e("v_add_u32 v6, s%d, v%d" % (sT, vPA + ks))
                e("v_add_u32 v7, s%d, v%d" % (sT2, vPA + ks))
                e("v_add_u32 v6, 0x%x, v6" % d)
                e("v_add_u32 v7, 0x%x, v7" % d)
                kb.ds("ds_read_b128 %s, v6 offset:%d" % (vr(ar + 8 * ks, 4), q * 24576), ("g", si, ks))
                kb.ds("ds_read_b128 %s, v7 offset:%d" % (vr(ar + 8 * ks + 4, 4), q * 24576), ("g", si, ks))
        def mf(si):
            ar = areas[si & 1]
            for ks in range(4):
                kb.wait_ds(("g", si, ks))
                e("v_mfma_f32_32x32x16_bf16 %s, %s, %s, %s" % (vr(vGacc, 16), vr(ar + 8 * ks, 4), vr(ar + 8 * ks + 4, 4), vr(vGacc, 16)))
        reads(0); reads(1); mf(0); reads(2); mf(1); reads(3); mf(2); mf(3)

    class Cfg: pass
    def mkcfg(nA, va, vw, ktype):
        c = Cfg(); c.nA = nA; c.va = va; c.vw = vw; c.ktype = ktype; return c
    def frag_reads(cfg, ks, st):
        fa = FA + 16 * st; fw = FW + 8 * st
        kb.ds("ds_read_b128 %s, v%d" % (vr(fa, 4), cfg.va + ks), ("A", st, 0))
        for nb in range(2):
            for j in range(2):
                kb.ds("ds_read_b64_tr_b16 %s, v%d offset:%d" % (vr(fw + 4 * nb + 2 * j, 2), cfg.vw + nb, 4096 * ks + 1024 * j), ("W", st, nb))
        for rb in range(1, cfg.nA):
            kb.ds("ds_read_b128 %s, v%d offset:%d" % (vr(fa + 4 * rb, 4), cfg.va + ks, 4096 * rb), ("A", st, rb))
    def toggle(cfg):
        for ks in range(4):
            e("v_xor_b32 v%d, 0x10000, v%d" % (cfg.va + ks, cfg.va + ks))
        for nb in range(2):
            e("v_xor_b32 v%d, 0x10000, v%d" % (cfg.vw + nb, cfg.vw + nb))
    def mfmas(cfg, st, zero=False):
        fa = FA + 16 * st; fw = FW + 8 * st
        for rb in range(cfg.nA):
            for nb in range(2):
                kb.wait_ds(("A", st, rb)); kb.wait_ds(("W", st, nb))
                acc = vr(ACC + 16 * (2 * rb + nb), 16)
                a, b = vr(fa + 4 * rb, 4), vr(fw + 4 * nb, 4)
                if cfg.ktype:
                    a, b = b, a
                e("v_mfma_f32_32x32x16_bf16 %s, %s, %s, %s" % (acc, a, b, "0" if zero else acc))
                if cfg.nA == 2 or nb == 1:
                    drain()
    def stage(cfg, need_tag, sync_action, next_reads, zero=False, allow_pending=False):
        for ks in range(4):
            cur = ks & 1
            if ks < 3:
                frag_reads(cfg, ks + 1, cur ^ 1)
            else:
                assert not pending or allow_pending, pending
                kb.wait_ds_all()
                if need_tag is None:
                    kb.wait_vm_all()
                else:
                    kb.wait_vm(need_tag)
                e("s_barrier")
                sync_action()
                next_reads()
            mfmas(cfg, cur, zero and ks == 0)

    def pack_store(acc, soff_sgpr, off0, tset, scale=None):
        for half in range(2):
            t = TMP + 4 * ((2 * tset + half) % 8)
            if scale is not None:
                for k in range(8):
                    e("v_mul_f32 v%d, s%d, v%d" % (acc + 8 * half + k, scale, acc + 8 * half + k))
            for k in range(4):
                e("v_cvt_pk_bf16_f32 v%d, v%d, v%d" % (t + k, acc + 8 * half + 2 * k, acc + 8 * half + 2 * k + 1))
            kb.vmem("buffer_store_dwordx4 %s, v%d, %s, s%d offen offset:%d" % (vr(t, 4), vL16, sr(SRD_WS, 4), soff_sgpr, off0 + 1024 * half), "st")

    dma_g(0, 65536, "g01", now=True)
    dma_g(1, 114688, "g01", now=True)
    dma_p1("p1s0", now=True)
    kb.stamp(1)
    kb.wait_vm("g01")
    e("s_barrier")
    kb.stamp(2)
    g_half(65536, 114688)
    kb.wait_ds_all()
    kb.wait_vm_all()
    e("s_barrier")
    kb.stamp(3)
    e("s_cmp_lt_u32 s%d, 4" % sW_ID)
    e("s_cbranch_scc1 L_k1_nocf2")
    e("v_swap_b32 v97, v98")
    e("buffer_store_dwordx4 v[96:99], v%d, %s, s75 offen" % (vL16, sr(SRD_WS, 4)))
    e("s_nop 1")
    kb.label("L_k1_nocf2")
    dma_p1("p1", now=True)
    save_lg, save_vm = None, None

    def body(ktype):
        c1 = mkcfg(4, vA, vW, ktype)
        c2 = mkcfg(2, vA2, vW2, True)
        kb.lg = []; kb.vm = ["p1"] * 8
        frag_reads(c1, 0, 0)
        def act():
            dma_p1("p1"); toggle(c1)
        stage(c1, None, act, lambda: frag_reads(c1, 0, 0))
        e("s_mov_b32 s%d, 0" % sCnt)
        lab = kb.newlabel("p1loop")
        st_lg = list(kb.lg); st_p = len(pending)
        kb.label(lab)
        stage(c1, None, act, lambda: frag_reads(c1, 0, 0))
        e("s_add_u32 s%d, s%d, 1" % (sCnt, sCnt))
        e("s_cmp_lt_u32 s%d, 5" % sCnt)
        e("s_cbranch_scc1 %s" % lab)
        assert kb.lg == st_lg and len(pending) == st_p, (kb.lg, st_lg)
        def act6():
            dma_p2(0); toggle(c1)
        stage(c1, None, act6, lambda: frag_reads(c1, 0, 0))
        def act7():
            dma_p2(1); dma_p2(2)
        stage(c1, None, act7, lambda: frag_reads(c2, 0, 0))
        kb.stamp(4)
        drain_all()
        kb.nop(16)
        e("s_lshl_b32 s%d, s%d, 19" % (sEp, sH))
        e("s_and_b32 s%d, s%d, 1" % (sT, sW_ID))
        e("s_lshr_b32 s%d, s%d, 1" % (sT2, sW_ID))
        e("s_and_b32 s%d, s%d, 1" % (sT2, sT2))
        if ktype:
            e("s_lshl_b32 s%d, s%d, 15" % (sT, sT))
            e("s_add_u32 s%d, s%d, s%d" % (sEp, sEp, sT))
            e("s_lshl_b32 s%d, s%d, 16" % (sT, sM))
            e("s_add_u32 s%d, s%d, s%d" % (sEp, sEp, sT))
            e("s_lshl_b32 s%d, s%d, 12" % (sT2, sT2))
            e("s_add_u32 s%d, s%d, s%d" % (sEp, sEp, sT2))
            e("s_add_u32 s%d, s%d, 0x%x" % (sEp, sEp, KF))
            for rb in range(4):
                e("s_add_u32 s%d, s%d, %d" % (sT, sEp, rb * 8192))
                for nb in range(2):
                    pack_store(ACC + 16 * (2 * rb + nb), sT, nb * 2048, 2 * rb + nb)
        else:
            e("s_lshl_b32 s%d, s%d, 15" % (sT, sT))
            e("s_add_u32 s%d, s%d, s%d" % (sEp, sEp, sT))
            e("s_lshl_b32 s%d, s%d, 16" % (sT, sM))
            e("s_add_u32 s%d, s%d, s%d" % (sEp, sEp, sT))
            e("s_lshl_b32 s%d, s%d, 13" % (sT2, sT2))
            e("s_add_u32 s%d, s%d, s%d" % (sEp, sEp, sT2))
            e("s_add_u32 s%d, s%d, 0x%x" % (sEp, sEp, VF))
            for rb in range(4):
                for nb in range(2):
                    e("s_add_u32 s%d, s%d, %d" % (sT, sEp, (rb >> 1) * 16384 + nb * 4096))
                    pack_store(ACC + 16 * (2 * rb + nb), sT, (rb & 1) * 2048, 2 * rb + nb)
        e("s_branch L_k1_phase2")

    e("s_cmp_lt_u32 s%d, 4" % sW_ID)
    e("s_cbranch_scc0 L_k1_vtype")
    body(True)
    lgA, vmA = list(kb.lg), list(kb.vm)
    kb.label("L_k1_vtype")
    body(False)
    assert kb.lg == lgA and kb.vm == vmA
    kb.label("L_k1_phase2")
    kb.stamp(5)
    c2 = mkcfg(2, vA2, vW2, True)
    for j in range(8):
        def act2(j=j):
            if j + 3 <= 7:
                dma_p2(j + 3)
            elif j == 5:
                dma_g(2, PB[2], "g2")
            elif j == 6:
                dma_g(3, PB[0], "g3")
            if j < 7:
                d = PB[(j + 1) % 3] - PB[j % 3]
                for r in list(range(vA2, vA2 + 4)) + list(range(vW2, vW2 + 2)):
                    if d > 0:
                        e("v_add_u32 v%d, 0x%x, v%d" % (r, d, r))
                    else:
                        e("v_subrev_u32 v%d, 0x%x, v%d" % (r, -d, r))
        stage(c2, ("p2", j + 1) if j < 7 else None, act2, (lambda: frag_reads(c2, 0, 0)) if j < 7 else (lambda: None), zero=(j == 0))
    kb.stamp(6)
    kb.nop(16)
    e("s_lshl_b32 s%d, s%d, 19" % (sEp, sH))
    e("s_lshl_b32 s%d, s%d, 16" % (sT, sM))
    e("s_add_u32 s%d, s%d, s%d" % (sEp, sEp, sT))
    e("s_and_b32 s%d, s%d, 3" % (sT, sW_ID))
    e("s_lshl_b32 s%d, s%d, 14" % (sT, sT))
    e("s_add_u32 s%d, s%d, s%d" % (sEp, sEp, sT))
    e("s_lshr_b32 s%d, s%d, 2" % (sT, sW_ID))
    e("s_lshl_b32 s%d, s%d, 12" % (sT, sT))
    e("s_add_u32 s%d, s%d, s%d" % (sEp, sEp, sT))
    if QF:
        e("s_add_u32 s%d, s%d, 0x%x" % (sEp, sEp, QF))
    import k2, struct
    e("s_mov_b32 s%d, 0x%x" % (sT2, k2.f32bits(k2.QSCALE)))
    for rb in range(2):
        e("s_add_u32 s%d, s%d, %d" % (sT, sEp, rb * 8192))
        for nb in range(2):
            pack_store(ACC + 16 * (2 * rb + nb), sT, nb * 2048, 2 * rb + nb, scale=sT2)
    kb.wait_vm_all()
    g_half(114688, 0)
    kb.nop(16)
    e("s_and_b32 s%d, s%d, 1" % (sT, sGC))
    e("s_lshl_b32 s%d, s%d, 22" % (sEp, sT))
    e("s_lshr_b32 s%d, s%d, 1" % (sT, sGC))
    e("s_lshl_b32 s%d, s%d, 19" % (sT, sT))
    e("s_add_u32 s%d, s%d, s%d" % (sEp, sEp, sT))
    e("s_lshr_b32 s%d, s%d, 2" % (sT, sW_ID))
    e("s_lshl_b32 s%d, s%d, 18" % (sT, sT))
    e("s_add_u32 s%d, s%d, s%d" % (sEp, sEp, sT))
    e("s_lshl_b32 s%d, s%d, 9" % (sT, sGT_))
    e("s_add_u32 s%d, s%d, s%d" % (sEp, sEp, sT))
    e("s_and_b32 s%d, s%d, 3" % (sT, sW_ID))
    e("s_lshl_b32 s%d, s%d, 7" % (sT, sT))
    e("s_add_u32 s%d, s%d, s%d" % (sEp, sEp, sT))
    e("s_add_u32 s%d, s%d, 0x%x" % (sEp, sEp, GT))
    for q in range(4):
        e("buffer_store_dwordx4 %s, v%d, %s, s%d offen offset:%d" % (vr(vGacc + 4 * q, 4), vGst, sr(SRD_WS, 4), sEp, 32 * q))
    kb.stamp(7)
    kb.dump_stamps([0,1,2,3,4,5,6,7], sW_ID, 100)
    kb.wgtime_end(SRD_WS, 0)
    kb.label("L_k1_end")
    return kb.text()
```

```python
from asmlib import *
from layout import *
import struct, math

def f32bits(x):
    return struct.unpack("<I", struct.pack("<f", x))[0]

LOG2E = 1.4426950408889634
QSCALE = (128.0 ** -0.5) * LOG2E
SUM_T = 2.0 ** 64
import os
STC = int(os.environ.get('STC', '3'))

def gen_k2():
    kb = KB("k2")
    e = kb.e
    sW_ID, sWQ, sH, sI, sGRP = 3, 4, 5, 6, 7
    SRD_WS = 32
    sKb, sVb, sNext, sLeft, sMK, sMV, sThr, sCnt, sD, sT, sT2, sT3, sF, sFirst, sFloor = range(36, 51)
    sCm = 52
    sLre, sLim, sLdt = 60, 61, 62
    sP = 64
    sCtx = 80
    vL, vR, vHI, vL16, vF, vDMA, vM, vT, vT2, vNeg, vThr, vRm = range(1, 13)
    Q, S, P, POOL, O, CI, ONES, LT, LA, ET = 16, 48, 80, 96, 160, 224, 240, 244, 248, 250
    BREG, AREG, QST = 65536, 0, 131072

    e("s_cmp_ge_u32 s2, 256")
    e("s_cbranch_scc1 L_k2_end")
    kb.stamp(0)
    kb.wgtime_begin()
    e("s_load_dwordx2 s[28:29], s[0:1], %d" % KA['ws'])
    e("s_load_dwordx4 s[8:11], s[0:1], %d" % KA['lre'])
    e("s_load_dwordx2 s[12:13], s[0:1], %d" % KA['logdt'])
    e("v_and_b32 v%d, 63, v0" % vL)
    e("v_lshrrev_b32 v2, 6, v0")
    e("s_nop 0")
    e("v_readfirstlane_b32 s%d, v2" % sW_ID)
    e("v_and_b32 v%d, 31, v%d" % (vR, vL))
    e("v_lshrrev_b32 v%d, 5, v%d" % (vHI, vL))
    e("v_lshlrev_b32 v%d, 4, v%d" % (vL16, vL))
    e("v_lshlrev_b32 v14, 2, v%d" % vHI)
    e("v_sub_u32 v%d, v%d, v14" % (vRm, vR))
    e("v_mov_b32 v%d, 0xff800000" % vNeg)
    e("s_and_b32 s%d, s%d, 3" % (sWQ, sW_ID))
    e("s_lshr_b32 s%d, s%d, 2" % (sGRP, sW_ID))
    e("s_and_b32 s%d, s2, 7" % sT)
    e("s_lshl_b32 s%d, s%d, 2" % (sT, sT))
    e("s_lshr_b32 s%d, s2, 3" % sT2)
    e("s_and_b32 s%d, s%d, 3" % (sT2, sT2))
    e("s_add_u32 s%d, s%d, s%d" % (sH, sT, sT2))
    e("s_lshr_b32 s%d, s2, 5" % sI)
    e("s_mov_b32 s%d, 0x%x" % (sThr, f32bits(SUM_T)))
    e("v_and_b32 v13, 15, v%d" % vL)
    e("v_bfe_u32 v14, v%d, 4, 1" % vL)
    e("v_cmp_eq_u32 vcc, v13, v14")
    e("v_mov_b32 v15, 0x3f803f80")
    e("s_lshl_b32 s%d, s%d, 16" % (sT, sGRP))
    e("s_lshl_b32 s%d, s%d, 12" % (sT2, sWQ))
    for k in range(4):
        e("v_cndmask_b32 v%d, 0, v15, vcc" % (ONES + k))
    e("v_add_u32 v%d, s%d, v%d" % (vDMA, sT2, vL16))
    e("s_add_u32 s%d, s%d, s%d" % (sMK, sT, sT2))
    e("s_add_u32 s%d, s%d, 16384" % (sMV, sMK))
    e("s_lshl_b32 s%d, s%d, 19" % (sT, sH))
    e("s_add_u32 s%d, s%d, 0x%x" % (sKb, sT, KF))
    e("s_add_u32 s%d, s%d, 0x%x" % (sVb, sT, VF))
    e("s_lshl_b32 s%d, s%d, 1" % (sT, sI))
    e("s_sub_u32 s%d, 15, s%d" % (sT3, sT))
    e("s_cmp_eq_u32 s%d, 0" % sGRP)
    e("s_cselect_b32 s%d, 17, 0" % sNext)
    e("s_cselect_b32 s%d, s%d, 17" % (sLeft, sT3))
    e("s_mov_b32 s%d, 0x%x" % (sF, BREG))
    e("v_add_u32 v%d, s%d, v%d" % (vF, sF, vL16))
    e("s_waitcnt lgkmcnt(0)")
    kb.srd(SRD_WS, 28, WS_BYTES)
    e("s_lshl_b32 s%d, s2, 2" % sT)
    e("s_load_dword s%d, s[8:9], s%d" % (sLre, sT))
    e("s_load_dword s%d, s[10:11], s%d" % (sLim, sT))
    e("s_load_dword s%d, s[12:13], s%d" % (sLdt, sT))

    def dma_tile():
        lab = kb.newlabel("nodma")
        e("s_cmp_eq_u32 s%d, 0" % sLeft)
        e("s_cbranch_scc1 %s" % lab)
        e("s_lshl_b32 s%d, s%d, 14" % (sT, sNext))
        e("s_add_u32 s%d, s%d, s%d" % (sT2, sT, sKb))
        e("s_mov_b32 m0, s%d" % sMK)
        e("s_add_u32 s%d, s%d, s%d" % (sT, sT, sVb))
        for n in range(4):
            e("buffer_load_dwordx4 v%d, %s, s%d offen offset:%d lds" % (vDMA, sr(SRD_WS, 4), sT2, 1024 * n))
        e("s_mov_b32 m0, s%d" % sMV)
        e("s_sub_u32 s%d, s%d, 1" % (sLeft, sLeft))
        for n in range(4):
            e("buffer_load_dwordx4 v%d, %s, s%d offen offset:%d lds" % (vDMA, sr(SRD_WS, 4), sT, 1024 * n))
        e("s_add_u32 s%d, s%d, 1" % (sNext, sNext))
        kb.label(lab)
        e("s_xor_b32 s%d, s%d, 0x8000" % (sMK, sMK))
        e("s_xor_b32 s%d, s%d, 0x8000" % (sMV, sMV))

    def q_base(high):
        if high:
            e("s_sub_u32 s%d, 15, s%d" % (sT, sI))
        else:
            e("s_mov_b32 s%d, s%d" % (sT, sI))
        e("s_lshl_b32 s%d, s%d, 2" % (sT, sT))
        e("s_add_u32 s%d, s%d, s%d" % (sT, sT, sWQ))
        e("s_lshl_b32 s%d, s%d, 6" % (sT2, sH))
        e("s_add_u32 s%d, s%d, s%d" % (sT, sT, sT2))
        e("s_lshl_b32 s%d, s%d, 13" % (sT, sT))
        if QF:
            e("s_add_u32 s%d, s%d, 0x%x" % (sT, sT, QF))
    def q_load():
        e("s_add_u32 s%d, s%d, 4096" % (sT2, sT))
        for s in range(8):
            e("buffer_load_dwordx4 %s, v%d, %s, s%d offen offset:%d" % (vr(Q + 4 * s, 4), vL16, sr(SRD_WS, 4), sT if s < 4 else sT2, 1024 * (s & 3)))

    def reset_state():
        for i in range(64):
            e("v_mov_b32 v%d, 0" % (O + i))
        for i in range(16):
            e("v_mov_b32 v%d, 0" % (CI + i))
        e("v_mov_b32 v%d, 0" % vM)
        e("v_mov_b32 v%d, 0" % LA); e("v_mov_b32 v%d, 0" % (LA + 1))
        e("s_mov_b32 s%d, 1" % sFirst)
        e("s_mov_b32 s%d, 0x%x" % (sFloor, f32bits(-3e38)))

    e("s_cmp_eq_u32 s%d, 0" % sGRP)
    e("s_cbranch_scc0 L_k2_proB")
    q_base(False); q_load()
    reset_state()
    e("s_waitcnt vmcnt(0)")
    e("s_barrier")
    dma_tile(); dma_tile()
    q_base(True)
    e("s_lshl_b32 s%d, s%d, 13" % (sT2, sWQ))
    e("s_add_u32 s%d, s%d, %d" % (sT2, sT2, QST))
    e("s_mov_b32 m0, s%d" % sT2)
    e("s_add_u32 s%d, s%d, 4096" % (sT3, sT))
    for n in range(4):
        e("buffer_load_dwordx4 v%d, %s, s%d offen offset:%d lds" % (vL16, sr(SRD_WS, 4), sT, 1024 * n))
    e("s_add_u32 s%d, s%d, 4096" % (sT2, sT2))
    e("s_mov_b32 m0, s%d" % sT2)
    e("s_nop 0")
    for n in range(4):
        e("buffer_load_dwordx4 v%d, %s, s%d offen offset:%d lds" % (vL16, sr(SRD_WS, 4), sT3, 1024 * n))
    e("s_branch L_k2_prodone")
    kb.label("L_k2_proB")
    dma_tile()
    q_base(True); q_load()
    dma_tile()
    reset_state()
    e("s_waitcnt vmcnt(8)")
    e("s_barrier")
    kb.label("L_k2_prodone")
    kb.lg = []
    for f in range(16):
        kb.ds("ds_read_b128 %s, v%d offset:%d" % (vr(POOL + 4 * f, 4), vF, 1024 * f), ("K", f))
    ENTRY_LG = list(kb.lg)
    kb.stamp(1)

    rare_blocks = []
    def sync_block(kind):
        kb.wait_all()
        e("s_barrier")
        if kind in ("B", "A2"):
            e("s_xor_b32 s%d, s%d, 0x8000" % (sF, sF))
        elif kind == "A1":
            e("s_xor_b32 s%d, s%d, 0x8000" % (sF, sF))
        elif kind == "A1m":
            e("s_xor_b32 s%d, s%d, 0x8000" % (sF, sF))
            e("s_cmp_eq_u32 s%d, 1" % sCnt)
            e("s_cselect_b32 s%d, %d, s%d" % (sF, AREG, sF))
        e("v_add_u32 v%d, s%d, v%d" % (vF, sF, vL16))

    sDK, sDV = 62 + 1, 51
    def iter_body(kind, masked):
        sync_pre = kind == "B"
        dma = (kind in ("B", "A2")) and not masked
        assert kb.lg == ENTRY_LG, kb.lg
        if not masked: kb.stamp(2, cond=(sCnt, STC))
        for f in range(16):
            u, s = f >> 3, f & 7
            kb.wait_ds(("K", f))
            e("v_mfma_f32_32x32x16_bf16 %s, %s, %s, %s" % (vr(S + 16 * u, 16), vr(POOL + 4 * f, 4), vr(Q + 4 * s, 4), vr(CI, 16) if s == 0 else vr(S + 16 * u, 16)))
            s4, dt = f >> 2, f & 3
            kb.ds("ds_read_b128 %s, v%d offset:%d" % (vr(POOL + 4 * f, 4), vF, 16384 + 1024 * (dt * 4 + s4)), ("V", f))
        if not masked: kb.stamp(3, cond=(sCnt, STC))
        if sync_pre:
            sync_block(kind)
        if not masked: kb.stamp(4, cond=(sCnt, STC))
        e("s_setprio 3")
        lr = kb.newlabel("rare"); lx = kb.newlabel("exp")
        if masked:
            e("v_add_u32 v%d, s%d, v%d" % (vThr, sD, vRm))
            kb.nop(12)
            for b in range(8):
                for k in range(4):
                    idx = 4 * b + k; u, r = idx >> 4, idx & 15
                    c = 32 * u + (r & 3) + 8 * (r >> 2)
                    e("v_cmp_gt_i32 %s, %d, v%d" % (sr(sCm + 2 * k, 2), c, vThr))
                for k in range(4):
                    idx = 4 * b + k
                    e("v_cndmask_b32 v%d, v%d, v%d, %s" % (S + idx, S + idx, vNeg, sr(sCm + 2 * k, 2)))
        e("s_cmp_lg_u32 s%d, 0" % sFirst)
        e("s_cbranch_scc1 %s" % lr)
        kb.label(lx)
        rare_blocks.append((lr, lx))
        NT = 6
        pend_l = []
        for k in range(32):
            e("v_exp_f32 v%d, v%d" % (ET + k % NT, S + k))
            if k >= 2 and (k & 1) == 0:
                j = (k - 2) >> 1
                e("v_cvt_pk_bf16_f32 v%d, v%d, v%d" % (P + j, ET + (k - 2) % NT, ET + (k - 1) % NT))
                if (j & 3) == 3:
                    pend_l.append(j >> 2)
            elif pend_l and (k & 1) == 1 and k >= 3:
                pass
            if pend_l and (k & 1) == 1:
                h = pend_l[0]
                if k >= 8 * h + 11:
                    pend_l.pop(0)
                    e("v_mfma_f32_16x16x32_bf16 %s, %s, %s, %s" % (vr(LT, 4), vr(ONES, 4), vr(P + 4 * h, 4), "0" if h == 0 else vr(LT, 4)))
        e("s_nop 0")
        e("v_cvt_pk_bf16_f32 v%d, v%d, v%d" % (P + 15, ET + 30 % NT, ET + 31 % NT))
        e("s_nop 1")
        assert not pend_l, pend_l
        e("v_mfma_f32_16x16x32_bf16 %s, %s, %s, %s" % (vr(LT, 4), vr(ONES, 4), vr(P + 12, 4), vr(LT, 4)))
        kb.nop(8)
        e("v_max_f32 v%d, v%d, v%d" % (vT2, LT, LT + 1))
        e("v_cmp_nge_f32 vcc, s%d, v%d" % (sThr, vT2))
        e("s_cbranch_vccnz %s" % lr)
        e("v_add_f32 v%d, v%d, v%d" % (LA, LA, LT))
        e("v_add_f32 v%d, v%d, v%d" % (LA + 1, LA + 1, LT + 1))
        e("s_setprio 0")
        if not masked: kb.stamp(5, cond=(sCnt, STC))
        if not sync_pre:
            sync_block(kind)
        if not masked: kb.stamp(6, cond=(sCnt, STC))
        if dma:
            e("s_lshl_b32 s%d, s%d, 14" % (sT, sNext))
            e("s_add_u32 s%d, s%d, s%d" % (sDK, sT, sKb))
            e("s_add_u32 s%d, s%d, s%d" % (sDV, sT, sVb))
            e("s_mov_b32 m0, s%d" % sMK)
            e("s_add_u32 s%d, s%d, 1" % (sNext, sNext))
        for k in range(16):
            s4, dt = k >> 2, k & 3
            kb.wait_ds(("V", k))
            e("v_mfma_f32_32x32x16_bf16 %s, %s, %s, %s" % (vr(O + 16 * dt, 16), vr(POOL + 4 * k, 4), vr(P + 4 * s4, 4), vr(O + 16 * dt, 16)))
            kb.ds("ds_read_b128 %s, v%d offset:%d" % (vr(POOL + 4 * k, 4), vF, 1024 * k), ("K", k))
            if dma and (k & 1) == 0:
                n = k >> 1
                e("buffer_load_dwordx4 v%d, %s, s%d offen offset:%d lds" % (vDMA, sr(SRD_WS, 4), sDK if n < 4 else sDV, 1024 * (n & 3)))
                if n == 3:
                    e("s_mov_b32 m0, s%d" % sMV)
        if dma:
            e("s_xor_b32 s%d, s%d, 0x8000" % (sMK, sMK))
            e("s_xor_b32 s%d, s%d, 0x8000" % (sMV, sMV))
        if not masked: kb.stamp(7, cond=(sCnt, STC))
        assert kb.lg == ENTRY_LG, kb.lg

    def loop(setup, kind, masked, may_be_zero):
        setup()
        lab = kb.newlabel("loop"); done = kb.newlabel("loopdone")
        if may_be_zero:
            e("s_cmp_lt_i32 s%d, 1" % sCnt)
            e("s_cbranch_scc1 %s" % done)
        kb.label(lab)
        iter_body(kind, masked)
        if masked:
            e("s_sub_u32 s%d, s%d, 64" % (sD, sD))
        e("s_sub_u32 s%d, s%d, 1" % (sCnt, sCnt))
        e("s_cmp_lg_u32 s%d, 0" % sCnt)
        e("s_cbranch_scc1 %s" % lab)
        kb.label(done)

    def l_to_rows(dst):
        e("v_and_b32 v13, 15, v%d" % vL)
        e("v_lshlrev_b32 v13, 2, v13")
        e("ds_bpermute_b32 v14, v13, v%d" % LA)
        e("ds_bpermute_b32 v15, v13, v%d" % (LA + 1))
        e("v_and_b32 v13, 16, v%d" % vL)
        e("v_cmp_ne_u32 vcc, 0, v13")
        kb.wait_ds_all()
        e("s_nop 1")
        e("v_cndmask_b32 v%d, v14, v15, vcc" % dst)

    def ctx_base(high):
        if high:
            e("s_sub_u32 s%d, 15, s%d" % (sT, sI))
        else:
            e("s_mov_b32 s%d, s%d" % (sT, sI))
        e("s_lshl_b32 s%d, s%d, 2" % (sT, sT))
        e("s_add_u32 s%d, s%d, s%d" % (sT, sT, sWQ))
        e("s_lshl_b32 s%d, s%d, 5" % (sT, sT))
        e("s_add_u32 s%d, s%d, s%d" % (sT, sT, sH))
        e("s_lshl_b32 s%d, s%d, 13" % (sT, sT))
        e("s_add_u32 s%d, s%d, 0x%x" % (sCtx, sT, CF))
        e("s_add_u32 s%d, s%d, 4096" % (sCtx + 1, sCtx))

    e("s_cmp_eq_u32 s%d, 0" % sGRP)
    e("s_cbranch_scc0 L_k2_groupB")
    loop(lambda: e("s_lshl_b32 s%d, s%d, 1" % (sCnt, sI)), "A1", False, True)
    def m1():
        e("s_mov_b32 s%d, 2" % sCnt)
        e("s_lshl_b32 s%d, s%d, 5" % (sD, sWQ))
    loop(m1, "A1m", True, False)
    e("s_lshl_b32 s%d, s%d, 13" % (sT2, sWQ))
    e("s_add_u32 s%d, s%d, %d" % (sT2, sT2, QST))
    e("v_add_u32 v13, s%d, v%d" % (sT2, vL16))
    for s in range(8):
        kb.ds("ds_read_b128 %s, v13 offset:%d" % (vr(Q + 4 * s, 4), 1024 * s), ("Qh", s))
    ctx_base(False)
    l_to_rows(vT)
    e("v_rcp_f32 v%d, v%d" % (vT, vT))
    e("s_nop 0")
    for s in range(8):
        t = S + 8 * (s & 3)
        for k in range(8):
            e("v_mul_f32 v%d, v%d, v%d" % (t + k, O + 8 * s + k, vT))
        for k in range(4):
            e("v_cvt_pk_bf16_f32 v%d, v%d, v%d" % (t + k, t + 2 * k, t + 2 * k + 1))
        e("buffer_store_dwordx4 %s, v%d, %s, s%d offen offset:%d sc1" % (vr(t, 4), vL16, sr(SRD_WS, 4), sCtx + (s >> 2), 1024 * (s & 3)))
    e("s_lshl_b32 s%d, s2, 14" % sT)
    e("s_and_b32 s%d, s%d, 1" % (sT2, sWQ))
    e("s_lshl_b32 s%d, s%d, 22" % (sT2, sT2))
    e("s_add_u32 s%d, s%d, s%d" % (sT, sT, sT2))
    e("s_lshr_b32 s%d, s%d, 1" % (sT2, sWQ))
    e("s_lshl_b32 s%d, s%d, 13" % (sT2, sT2))
    e("s_add_u32 s%d, s%d, s%d" % (sT, sT, sT2))
    e("s_add_u32 s%d, s%d, 0x%x" % (sT, sT, GT))
    e("s_lshl_b32 s%d, s%d, 13" % (sT2, sWQ))
    e("s_add_u32 s%d, s%d, %d" % (sT2, sT2, QST))
    e("s_mov_b32 m0, s%d" % sT2)
    e("s_add_u32 s%d, s%d, 4096" % (sT3, sT))
    for n in range(4):
        e("buffer_load_dwordx4 v%d, %s, s%d offen offset:%d lds" % (vL16, sr(SRD_WS, 4), sT, 1024 * n))
    e("s_add_u32 s%d, s%d, 4096" % (sT2, sT2))
    e("s_mov_b32 m0, s%d" % sT2)
    e("s_nop 0")
    for n in range(4):
        e("buffer_load_dwordx4 v%d, %s, s%d offen offset:%d lds" % (vL16, sr(SRD_WS, 4), sT3, 1024 * n))
    reset_state()
    kb.lg = list(ENTRY_LG)
    def n2():
        e("s_lshl_b32 s%d, s%d, 1" % (sT, sI))
        e("s_sub_u32 s%d, 13, s%d" % (sCnt, sT))
    loop(n2, "A2", False, True)
    def m2():
        e("s_lshl_b32 s%d, s%d, 5" % (sD, sWQ))
        e("s_sub_u32 s%d, s%d, 64" % (sT, sD))
        e("s_cmp_eq_u32 s%d, 7" % sI)
        e("s_cselect_b32 s%d, 1, 2" % sCnt)
        e("s_cselect_b32 s%d, s%d, s%d" % (sD, sT, sD))
    loop(m2, "A2", True, False)
    e("s_branch L_k2_merge")
    kb.label("L_k2_groupB")
    kb.lg = list(ENTRY_LG)
    loop(lambda: e("s_mov_b32 s%d, 15" % sCnt), "B", False, False)
    def mB():
        e("s_sub_u32 s%d, 7, s%d" % (sT, sI))
        e("s_lshl_b32 s%d, s%d, 7" % (sT, sT))
        e("s_lshl_b32 s%d, s%d, 5" % (sD, sWQ))
        e("s_add_u32 s%d, s%d, s%d" % (sD, sD, sT))
        e("s_add_u32 s%d, s%d, 64" % (sD, sD))
        e("s_mov_b32 s%d, 2" % sCnt)
    loop(mB, "B", True, False)
    kb.label("L_k2_merge")
    kb.wait_ds_all()
    GR = Q
    e("v_lshlrev_b32 v13, 4, v0")
    e("v_add_u32 v13, 0x%x, v13" % QST)
    for ch in range(2):
        for pl in range(2):
            e("ds_read_b128 %s, v13 offset:%d" % (vr(GR + 8 * ch + 4 * pl, 4), (2 * ch + pl) * 8192))
    ctx_base(True)
    vLs = ET
    l_to_rows(vLs)
    e("v_cmp_lt_f32 vcc, 0, v%d" % vLs)
    e("v_mov_b32 v13, 0x%x" % f32bits(-1e30))
    MST = 8704
    e("s_mul_i32 s%d, s%d, %d" % (sT, sW_ID, MST))
    e("v_cndmask_b32 v%d, v13, v%d, vcc" % (vM, vM))
    e("v_add_u32 v14, s%d, v%d" % (sT, vL16))
    e("s_xor_b32 s%d, s%d, 4" % (sT2, sW_ID))
    e("s_mul_i32 s%d, s%d, %d" % (sT2, sT2, MST))
    e("v_add_u32 v15, s%d, v%d" % (sT2, vL16))
    e("v_lshlrev_b32 v%d, 2, v%d" % (vThr, vL))
    e("v_add_u32 v%d, s%d, v%d" % (vRm, sT, vThr))
    e("v_add_u32 v%d, s%d, v%d" % (vThr, sT2, vThr))
    e("ds_write_b32 v%d, v%d offset:8192" % (vRm, vM))
    e("ds_write_b32 v%d, v%d offset:8448" % (vRm, vLs))
    def merge_side(keep):
        give = 32 - keep
        for q in range(8):
            e("ds_write_b128 v14, %s offset:%d" % (vr(O + give + 4 * q, 4), 1024 * q))
        e("s_waitcnt lgkmcnt(0)")
        e("s_barrier")
        e("ds_read_b32 v%d, v%d offset:8192" % (S, vThr))
        e("ds_read_b32 v%d, v%d offset:8448" % (S + 1, vThr))
        for q in range(8):
            e("ds_read_b128 %s, v15 offset:%d" % (vr(POOL + 4 * q, 4), 1024 * q))
        e("s_waitcnt lgkmcnt(8)")
        e("v_max_f32 v%d, v%d, v%d" % (vT, vM, S))
        e("v_sub_f32 v%d, v%d, v%d" % (S + 2, vM, vT))
        e("v_sub_f32 v%d, v%d, v%d" % (S + 3, S, vT))
        e("v_exp_f32 v%d, v%d" % (S + 2, S + 2))
        e("v_exp_f32 v%d, v%d" % (S + 3, S + 3))
        e("s_nop 0")
        e("v_mul_f32 v%d, v%d, v%d" % (vT, vLs, S + 2))
        e("v_fma_f32 v%d, v%d, v%d, v%d" % (vT, S + 1, S + 3, vT))
        e("v_rcp_f32 v%d, v%d" % (vT, vT))
        e("s_nop 0")
        e("v_mul_f32 v%d, v%d, v%d" % (S + 2, S + 2, vT))
        e("v_mul_f32 v%d, v%d, v%d" % (S + 3, S + 3, vT))
        e("s_waitcnt lgkmcnt(0)")
        for s in range(4):
            t = S + 8 + 8 * (s & 1)
            for k in range(8):
                e("v_mul_f32 v%d, v%d, v%d" % (t + k, O + keep + 8 * s + k, S + 2))
                e("v_fma_f32 v%d, v%d, v%d, v%d" % (t + k, POOL + 8 * s + k, S + 3, t + k))
            for k in range(4):
                e("v_cvt_pk_bf16_f32 v%d, v%d, v%d" % (t + k, t + 2 * k, t + 2 * k + 1))
            e("buffer_store_dwordx4 %s, v%d, %s, s%d offen offset:%d sc1" % (vr(t, 4), vL16, sr(SRD_WS, 4), sCtx + (keep >> 5), 1024 * s))
    e("s_cmp_eq_u32 s%d, 0" % sGRP)
    e("s_cbranch_scc0 L_k2_mergeB")
    merge_side(0)
    e("s_branch L_k2_scan")
    kb.label("L_k2_mergeB")
    merge_side(32)
    kb.label("L_k2_scan")
    kb.stamp(8)

    e("s_lshl_b32 s%d, s%d, 16" % (sP + 0, sLre)); e("s_and_b32 s%d, s%d, 0xffff0000" % (sP + 1, sLre))
    e("s_lshl_b32 s%d, s%d, 16" % (sP + 2, sLim)); e("s_and_b32 s%d, s%d, 0xffff0000" % (sP + 3, sLim))
    e("s_lshl_b32 s%d, s%d, 16" % (sP + 4, sLdt)); e("s_and_b32 s%d, s%d, 0xffff0000" % (sP + 5, sLdt))
    e("s_mov_b32 s%d, 0x%x" % (sP + 6, f32bits(LOG2E)))
    e("s_mov_b32 s%d, 0x%x" % (sP + 7, f32bits(1.0 / (2 * math.pi))))
    e("v_cvt_f32_u32 v15, v%d" % vL)
    e("v_mul_f32 v15, 4.0, v15")
    def cmul(dr, di, ar, ai, br, bi, t):
        e("v_mul_f32 v%d, v%d, v%d" % (t, ai, bi))
        e("v_fma_f32 v%d, v%d, v%d, -v%d" % (dr, ar, br, t))
        e("v_mul_f32 v%d, v%d, v%d" % (t, ai, br))
        e("v_fma_f32 v%d, v%d, v%d, v%d" % (di, ar, bi, t))
    def cfma(dr, di, ar, ai, br, bi):
        e("v_fma_f32 v%d, v%d, v%d, v%d" % (dr, ar, br, dr))
        e("v_fma_f32 v%d, -v%d, v%d, v%d" % (dr, ai, bi, dr))
        e("v_fma_f32 v%d, v%d, v%d, v%d" % (di, ar, bi, di))
        e("v_fma_f32 v%d, v%d, v%d, v%d" % (di, ai, br, di))
    CH = []
    for ch in range(2):
        B = 112 + 56 * ch
        R = dict(lr=B, li=B + 1, dt=B + 2, a=B + 3, b=B + 4, t=B + 5, t2=B + 6, cr=B + 7, ci=B + 8,
                 L1=B + 9, L2=B + 11, L3=B + 13, MU=B + 15, PL=B + 29, H=B + 31,
                 X=B + 39, Y=B + 41, CW=B + 43, WC=B + 45)
        CH.append(R)
        e("v_mov_b32 v%d, s%d" % (R['lr'], sP + ch))
        e("v_mov_b32 v%d, s%d" % (R['li'], sP + 2 + ch))
        e("v_mov_b32 v%d, s%d" % (R['t'], sP + 4 + ch))
        e("v_mul_f32 v%d, s%d, v%d" % (R['t'], sP + 6, R['t']))
        e("v_exp_f32 v%d, v%d" % (R['t'], R['t']))
        e("s_nop 0")
        e("v_cvt_pk_bf16_f32 v%d, v%d, v%d" % (R['t'], R['t'], R['t']))
        e("v_lshlrev_b32 v%d, 16, v%d" % (R['dt'], R['t']))
        e("v_mul_f32 v%d, v%d, v%d" % (R['a'], R['dt'], R['lr']))
        e("v_mul_f32 v%d, v%d, v%d" % (R['b'], R['dt'], R['li']))
        e("v_mul_f32 v%d, s%d, v%d" % (R['a'], sP + 6, R['a']))
        e("v_mul_f32 v%d, s%d, v%d" % (R['b'], sP + 7, R['b']))
        def cexp(dr, di, va, vb):
            e("v_exp_f32 v%d, v%d" % (R['t'], va))
            e("v_fract_f32 v%d, v%d" % (R['t2'], vb))
            e("v_cos_f32 v%d, v%d" % (dr, R['t2']))
            e("v_sin_f32 v%d, v%d" % (di, R['t2']))
            e("s_nop 0")
            e("v_mul_f32 v%d, v%d, v%d" % (dr, dr, R['t']))
            e("v_mul_f32 v%d, v%d, v%d" % (di, di, R['t']))
        cexp(R['L1'], R['L1'] + 1, R['a'], R['b'])
        e("v_mul_f32 v%d, v15, v%d" % (R['X'], R['a']))
        e("v_mul_f32 v%d, v15, v%d" % (R['X'] + 1, R['b']))
        cexp(R['PL'], R['PL'] + 1, R['X'], R['X'] + 1)
        e("v_add_f32 v%d, -1.0, v%d" % (R['X'], R['L1']))
        e("v_mul_f32 v%d, v%d, v%d" % (R['t'], R['lr'], R['lr']))
        e("v_fma_f32 v%d, v%d, v%d, v%d" % (R['t'], R['li'], R['li'], R['t']))
        e("v_rcp_f32 v%d, v%d" % (R['t'], R['t']))
        e("v_mul_f32 v%d, v%d, v%d" % (R['cr'], R['X'], R['lr']))
        e("v_fma_f32 v%d, v%d, v%d, v%d" % (R['cr'], R['L1'] + 1, R['li'], R['cr']))
        e("v_mul_f32 v%d, v%d, v%d" % (R['ci'], R['L1'] + 1, R['lr']))
        e("v_fma_f32 v%d, -v%d, v%d, v%d" % (R['ci'], R['X'], R['li'], R['ci']))
        e("v_mul_f32 v%d, v%d, v%d" % (R['cr'], R['cr'], R['t']))
        e("v_mul_f32 v%d, v%d, v%d" % (R['ci'], R['ci'], R['t']))
        cmul(R['L2'], R['L2'] + 1, R['L1'], R['L1'] + 1, R['L1'], R['L1'] + 1, R['t'])
        cmul(R['L3'], R['L3'] + 1, R['L2'], R['L2'] + 1, R['L1'], R['L1'] + 1, R['t'])
        cmul(R['MU'], R['MU'] + 1, R['L2'], R['L2'] + 1, R['L2'], R['L2'] + 1, R['t'])
        for k in range(1, 7):
            a = R['MU'] + 2 * (k - 1)
            cmul(a + 2, a + 3, a, a + 1, a, a + 1, R['t'])
    for ch in range(2):
        R = CH[ch]
        gr, gi = GR + 8 * ch, GR + 8 * ch + 4
        for i in range(4):
            hr, hi_ = R['H'] + 2 * i, R['H'] + 2 * i + 1
            cmul(hr, hi_, R['cr'], R['ci'], gr + i, gi + i, R['t'])
            if i:
                cfma(hr, hi_, R['L1'], R['L1'] + 1, hr - 2, hi_ - 2)
        e("v_mov_b32 v%d, v%d" % (R['X'], R['H'] + 6))
        e("v_mov_b32 v%d, v%d" % (R['X'] + 1, R['H'] + 7))
    def shifted(d, dst_key):
        e("v_subrev_u32 v14, %d, v%d" % (d, vL))
        e("v_and_b32 v14, 63, v14")
        e("v_lshlrev_b32 v14, 2, v14")
        for ch in range(2):
            R = CH[ch]
            for c in range(2):
                e("ds_bpermute_b32 v%d, v14, v%d" % (R[dst_key] + c, R['X'] + c))
        e("v_cmp_le_u32 vcc, %d, v%d" % (d, vL))
        e("s_waitcnt lgkmcnt(0)")
        e("s_nop 1")
        for ch in range(2):
            R = CH[ch]
            for c in range(2):
                e("v_cndmask_b32 v%d, 0, v%d, vcc" % (R[dst_key] + c, R[dst_key] + c))
    for k in range(6):
        shifted(1 << k, 'Y')
        for ch in range(2):
            R = CH[ch]
            cfma(R['X'], R['X'] + 1, R['MU'] + 2 * k, R['MU'] + 2 * k + 1, R['Y'], R['Y'] + 1)
    shifted(1, 'CW')
    e("s_nop 1")
    for ch in range(2):
        for c in range(2):
            e("v_readlane_b32 s%d, v%d, 63" % (sP + 8 + 2 * ch + c, CH[ch]['X'] + c))
    e("s_lshl_b32 s%d, s%d, 4" % (sT, sW_ID))
    e("s_add_u32 s%d, s%d, %d" % (sT, sT, 98304))
    e("v_mov_b32 v14, s%d" % sT)
    for k in range(4):
        e("v_mov_b32 v%d, s%d" % (96 + k, sP + 8 + k))
    e("ds_write_b128 v14, v[96:99]")
    e("s_waitcnt lgkmcnt(0)")
    e("s_barrier")
    e("v_mov_b32 v14, 0x%x" % 98304)
    TOT = 224
    for j in range(7):
        e("ds_read_b128 %s, v14 offset:%d" % (vr(TOT + 4 * j, 4), 16 * j))
    for ch in range(2):
        e("v_mov_b32 v%d, 0" % CH[ch]['WC']); e("v_mov_b32 v%d, 0" % (CH[ch]['WC'] + 1))
    e("s_waitcnt lgkmcnt(0)")
    for j in range(7):
        e("s_cmp_gt_u32 s%d, %d" % (sW_ID, j))
        e("s_cbranch_scc0 L_k2_horner_done")
        for ch in range(2):
            R = CH[ch]
            e("v_mov_b32 v%d, v%d" % (R['Y'], TOT + 4 * j + 2 * ch))
            e("v_mov_b32 v%d, v%d" % (R['Y'] + 1, TOT + 4 * j + 2 * ch + 1))
            cfma(R['Y'], R['Y'] + 1, R['WC'], R['WC'] + 1, R['MU'] + 12, R['MU'] + 13)
            e("v_mov_b32 v%d, v%d" % (R['WC'], R['Y']))
            e("v_mov_b32 v%d, v%d" % (R['WC'] + 1, R['Y'] + 1))
    kb.label("L_k2_horner_done")
    for ch in range(2):
        R = CH[ch]
        cfma(R['CW'], R['CW'] + 1, R['PL'], R['PL'] + 1, R['WC'], R['WC'] + 1)
        for i, key in enumerate(['L1', 'L2', 'L3', 'MU']):
            cfma(R['H'] + 2 * i, R['H'] + 2 * i + 1, R[key], R[key] + 1, R['CW'], R['CW'] + 1)
    for i in range(4):
        e("v_cvt_pk_bf16_f32 v%d, v%d, v%d" % (96 + 2 * i, CH[0]['H'] + 2 * i, CH[1]['H'] + 2 * i))
        e("v_cvt_pk_bf16_f32 v%d, -v%d, -v%d" % (97 + 2 * i, CH[0]['H'] + 2 * i + 1, CH[1]['H'] + 2 * i + 1))
    e("s_lshl_b32 s%d, s%d, 11" % (sT, sW_ID))
    e("s_add_u32 s%d, s%d, 102400" % (sT, sT))
    e("v_lshlrev_b32 v14, 5, v%d" % vL)
    e("v_add_u32 v14, s%d, v14" % sT)
    e("ds_write_b128 v14, v[96:99]")
    e("ds_write_b128 v14, v[100:103] offset:16")
    e("v_lshlrev_b32 v15, 3, v%d" % vL)
    e("v_add_u32 v15, s%d, v15" % sT)
    e("s_waitcnt lgkmcnt(0)")
    for j in range(4):
        e("ds_read_b64 %s, v15 offset:%d" % (vr(104 + 2 * j, 2), 512 * j))
    e("v_lshlrev_b32 v14, 16, v%d" % vHI)
    e("v_lshl_add_u32 v14, v%d, 4, v14" % vR)
    e("s_lshr_b32 s%d, s2, 2" % sT)
    e("s_lshl_b32 s%d, s%d, 10" % (sT, sT))
    e("s_lshr_b32 s%d, s2, 1" % sT2)
    e("s_and_b32 s%d, s%d, 1" % (sT2, sT2))
    e("s_lshl_b32 s%d, s%d, 9" % (sT2, sT2))
    e("s_add_u32 s%d, s%d, s%d" % (sT, sT, sT2))
    e("s_and_b32 s%d, s2, 1" % sT2)
    e("s_lshl_b32 s%d, s%d, 3" % (sT2, sT2))
    e("s_add_u32 s%d, s%d, s%d" % (sT, sT, sT2))
    e("s_lshl_b32 s%d, s%d, 19" % (sT2, sW_ID))
    e("s_add_u32 s%d, s%d, s%d" % (sT, sT, sT2))
    e("s_add_u32 s%d, s%d, 0x%x" % (sT, sT, HF))
    for j in range(4):
        e("s_add_u32 s%d, s%d, %d" % (sT2, sT, j * 131072))
        e("s_waitcnt lgkmcnt(%d)" % (3 - j))
        e("buffer_store_dwordx2 %s, v14, %s, s%d offen sc1" % (vr(104 + 2 * j, 2), sr(SRD_WS, 4), sT2))
    kb.stamp(9)
    kb.dump_stamps([0, 2, 3, 4, 5, 6, 7, 9], sW_ID, int(os.environ.get('STWG', '100')))
    kb.wgtime_end(SRD_WS, 1)
    e("s_branch L_k2_end")

    for lr, lx in rare_blocks:
        kb.label(lr)
        kb.nop(12)
        e("v_max3_f32 v%d, v%d, v%d, v%d" % (vT, S, S + 1, S + 2))
        for k in range(3, 31, 2):
            e("v_max3_f32 v%d, v%d, v%d, v%d" % (vT, vT, S + k, S + k + 1))
        e("v_max_f32 v%d, v%d, v%d" % (vT, vT, S + 31))
        e("v_mov_b32 v%d, v%d" % (vT2, vT))
        e("s_nop 1")
        e("v_permlane32_swap_b32 v%d, v%d" % (vT, vT2))
        e("v_max_f32 v%d, v%d, v%d" % (vT, vT, vT2))
        e("v_max_f32 v%d, s%d, v%d" % (vT, sFloor, vT))
        e("v_mov_b32 v13, 0x%x" % f32bits(-1e30))
        e("v_cmp_lt_f32 vcc, v13, v%d" % vT)
        e("s_mov_b32 s%d, 0" % sFirst)
        e("s_mov_b32 s%d, 0" % sFloor)
        e("v_cndmask_b32 v%d, 0, v%d, vcc" % (vT, vT))
        e("v_max_f32 v13, 0, v%d" % vT)
        e("v_exp_f32 v13, -v13")
        e("v_add_f32 v%d, v%d, v%d" % (vM, vM, vT))
        e("v_mov_b32 v14, v13")
        e("v_mov_b32 v15, v13")
        for k in range(16):
            e("v_sub_f32 v%d, 0, v%d" % (CI + k, vM))
        e("v_permlane16_swap_b32 v14, v15")
        e("v_mul_f32 v%d, v%d, v13" % (LA, LA))
        e("v_mul_f32 v%d, v%d, v15" % (LA + 1, LA + 1))
        for k in range(32):
            e("v_sub_f32 v%d, v%d, v%d" % (S + k, S + k, vT))
        for k in range(64):
            e("v_mul_f32 v%d, v%d, v13" % (O + k, O + k))
        e("s_branch %s" % lx)
    kb.label("L_k2_end")
    return kb.text()
```

```python
from asmlib import *
from layout import *

def gen_k3():
    kb = KB("k3")
    e = kb.e
    sW_ID, sQT, sNT = 3, 4, 5
    SRD_WS, SRD_WO, SRD_C, SRD_XB, SRD_DSK, SRD_OUT = 32, 36, 40, 44, 48, 52
    sT, sT2, sCx0, sCx1, sWo, sH0, sH1, sC0, sC1, sMb, sOut = range(56, 67)
    vL, vR, vHI, vI16, vG4, vL16, vWo0, vWo1, vTr0, vTr1, vC, vO = range(1, 13)
    XD, WF, RING, ACC, ACC2 = 16, 24, 64, 128, 192
    D = 8

    e("s_cmp_ge_u32 s2, 256")
    e("s_cbranch_scc1 L_k3_end")
    kb.stamp(0)
    kb.wgtime_begin()
    e("s_load_dwordx4 s[8:11], s[0:1], %d" % KA['wo'])
    e("s_load_dwordx4 s[16:19], s[0:1], %d" % KA['dskip'])
    e("s_load_dwordx2 s[28:29], s[0:1], %d" % KA['ws'])
    e("v_and_b32 v%d, 63, v0" % vL)
    e("v_lshrrev_b32 v2, 6, v0")
    e("s_nop 0")
    e("v_readfirstlane_b32 s%d, v2" % sW_ID)
    e("v_and_b32 v%d, 31, v%d" % (vR, vL))
    e("v_lshrrev_b32 v%d, 5, v%d" % (vHI, vL))
    e("v_and_b32 v%d, 15, v%d" % (vI16, vL))
    e("v_lshrrev_b32 v%d, 4, v%d" % (vG4, vL))
    e("v_lshlrev_b32 v%d, 4, v%d" % (vL16, vL))
    e("s_and_b32 s%d, s2, 7" % sT)
    e("s_lshl_b32 s%d, s%d, 2" % (sT, sT))
    e("s_lshr_b32 s%d, s2, 3" % sT2)
    e("s_and_b32 s%d, s%d, 3" % (sT2, sT2))
    e("s_add_u32 s%d, s%d, s%d" % (sQT, sT, sT2))
    e("s_lshr_b32 s%d, s2, 5" % sNT)
    e("v_lshrrev_b32 v13, 2, v%d" % vL)
    e("v_xor_b32 v13, v13, v%d" % vG4)
    e("v_and_b32 v13, 1, v13")
    e("v_lshlrev_b32 v13, 6, v13")
    e("v_lshrrev_b32 v14, 3, v%d" % vL)
    e("v_lshl_add_u32 v13, v14, 10, v13")
    e("v_and_b32 v14, 3, v%d" % vL)
    e("v_lshl_add_u32 v%d, v14, 4, v13" % vWo0)
    e("v_add_u32 v%d, %d, v%d" % (vWo1, 7168, vWo0))
    e("v_lshrrev_b32 v13, 2, v%d" % vI16)
    e("v_lshl_add_u32 v13, v%d, 2, v13" % vHI)
    e("v_lshlrev_b32 v13, 7, v13")
    e("v_and_b32 v14, 1, v%d" % vG4)
    e("v_lshl_add_u32 v13, v14, 5, v13")
    e("v_and_b32 v14, 3, v%d" % vI16)
    e("v_lshl_add_u32 v13, v14, 3, v13")
    e("s_lshl_b32 s%d, s%d, 14" % (sMb, sW_ID))
    e("v_add_u32 v13, s%d, v13" % sMb)
    e("v_lshrrev_b32 v14, 3, v%d" % vI16)
    e("v_lshl_add_u32 v%d, v14, 6, v13" % vTr0)
    e("v_xor_b32 v14, 1, v14")
    e("v_lshl_add_u32 v%d, v14, 6, v13" % vTr1)
    e("v_lshlrev_b32 v13, 4, v%d" % vHI)
    e("v_lshl_add_u32 v%d, v%d, 10, v13" % (vC, vR))
    e("v_lshl_add_u32 v%d, v%d, 12, v13" % (vO, vR))
    e("s_waitcnt lgkmcnt(0)")
    kb.srd(SRD_WS, 28, WS_BYTES)
    kb.srd(SRD_WO, 8, 4096 * 1024)
    kb.srd(SRD_XB, 10, 2048 * 1024)
    kb.srd(SRD_DSK, 16, 1024)
    kb.srd(SRD_OUT, 18, 2048 * 4096)
    e("s_lshl_b32 s%d, s%d, 19" % (sT, sQT))
    e("s_lshl_b32 s%d, s%d, 15" % (sT2, sW_ID))
    e("s_add_u32 s%d, s%d, s%d" % (sT, sT, sT2))
    e("s_add_u32 s%d, s%d, 0x%x" % (sCx0, sT, CF))
    e("s_add_u32 s%d, s%d, 0x40000" % (sCx1, sCx0))
    e("s_lshl_b32 s%d, s%d, 19" % (sT, sW_ID))
    e("s_lshl_b32 s%d, s%d, 7" % (sT2, sNT))
    e("s_add_u32 s%d, s%d, s%d" % (sWo, sT, sT2))
    e("s_lshl_b32 s%d, s%d, 17" % (sT, sQT))
    e("s_lshl_b32 s%d, s%d, 13" % (sT2, sW_ID))
    e("s_add_u32 s%d, s%d, s%d" % (sT, sT, sT2))
    e("s_add_u32 s%d, s%d, 0x%x" % (sH0, sT, HF))
    e("s_add_u32 s%d, s%d, 0x10000" % (sH1, sH0))
    e("s_lshl_b32 s%d, s%d, 17" % (sT, sNT))
    e("s_add_u32 s%d, s%d, s%d" % (sT, sT, sT2))
    e("s_add_u32 s%d, s%d, 0x%x" % (sC0, sT, CFR))
    e("s_add_u32 s%d, s%d, 0x10000" % (sC1, sC0))

    for j in range(8):
        for (bases, dst) in (((sH0, sH1), RING), ((sC0, sC1), ACC)):
            for qb in range(2):
                base = bases[qb]
                if j >= 4:
                    e("s_add_u32 s%d, s%d, 4096" % (sT, base)); base = sT
                kb.vmem("buffer_load_dwordx4 %s, v%d, %s, s%d offen offset:%d" % (vr(dst + 8 * j + 4 * qb, 4), vL16, sr(SRD_WS, 4), base, 1024 * (j & 3)), ("S", j))
    def wo_dma(j):
        e("s_add_u32 s%d, s%d, %d" % (sT, sMb, (j % D) * 2048))
        e("s_mov_b32 m0, s%d" % sT)
        e("s_add_u32 s%d, s%d, %d" % (sT2, sWo, j * 16384))
        kb.vmem("buffer_load_dwordx4 v%d, %s, s%d offen lds" % (vWo0, sr(SRD_WO, 4), sT2), ("W", j))
        kb.vmem("buffer_load_dwordx4 v%d, %s, s%d offen offset:1024 lds" % (vWo1, sr(SRD_WO, 4), sT2), ("W", j))
    def ctx_load(j):
        for qb in range(2):
            e("s_add_u32 s%d, s%d, %d" % (sT, (sCx0, sCx1)[qb], j * 1024))
            kb.vmem("buffer_load_dwordx4 %s, v%d, %s, s%d offen" % (vr(RING + 8 * (j % D) + 4 * qb, 4), vL16, sr(SRD_WS, 4), sT), ("X", j))
    for j in range(D):
        wo_dma(j)
    e("s_lshl_b32 s%d, s%d, 6" % (sT, sQT))
    e("s_lshr_b32 s%d, s%d, 2" % (sT2, sW_ID))
    e("s_lshl_b32 s%d, s%d, 5" % (sT2, sT2))
    e("s_add_u32 s%d, s%d, s%d" % (sT, sT, sT2))
    e("s_and_b32 s%d, s%d, 3" % (sT2, sW_ID))
    e("s_lshl_b32 s%d, s%d, 4" % (sT2, sT2))
    e("s_lshl_b32 s%d, s%d, 6" % (sOut, sNT))
    e("s_add_u32 s%d, s%d, s%d" % (sT2, sT2, sOut))
    e("s_lshl_b32 s%d, s%d, 12" % (sOut, sT))
    e("s_lshl_b32 s%d, s%d, 2" % (67, sT2))
    e("s_add_u32 s%d, s%d, s67" % (sOut, sOut))
    e("s_lshl_b32 s%d, s%d, 10" % (sT, sT))
    e("s_lshl_b32 s%d, s%d, 1" % (sT2, sT2))
    e("s_add_u32 s%d, s%d, s%d" % (sT, sT, sT2))
    e("v_lshlrev_b32 v13, 3, v%d" % vHI)
    e("v_lshl_add_u32 v14, v%d, 10, v13" % vR)
    for ee in range(2):
        kb.vmem("buffer_load_dwordx2 %s, v14, %s, s%d offen offset:%d" % (vr(XD + 2 * ee, 2), sr(SRD_XB, 4), sT, 16 * ee), "xd")
        kb.vmem("buffer_load_dwordx2 %s, v13, %s, s%d offen offset:%d" % (vr(XD + 4 + 2 * ee, 2), sr(SRD_DSK, 4), sT2, 16 * ee), "xd")
    kb.stamp(1)
    for j in range(8):
        kb.wait_vm(("S", j))
        for qb in range(2):
            for nb in range(2):
                acc = vr(ACC2 + 16 * (2 * qb + nb), 16)
                e("v_mfma_f32_32x32x16_bf16 %s, %s, %s, %s" % (acc, vr(ACC + 8 * j + 4 * nb, 4), vr(RING + 8 * j + 4 * qb, 4), "0" if j == 0 else acc))
        ctx_load(j)
    kb.stamp(2)
    def tr_reads(j):
        st = j & 1
        for nb in range(2):
            for jj in range(2):
                kb.ds("ds_read_b64_tr_b16 %s, v%d offset:%d" % (vr(WF + 8 * st + 4 * nb + 2 * jj, 2), (vTr0, vTr1)[nb], (j % D) * 2048 + 1024 * jj), ("T", j))
    kb.wait_vm(("W", 0))
    tr_reads(0)
    for j in range(32):
        if j + 1 < 32:
            kb.wait_vm(("W", j + 1))
            tr_reads(j + 1)
        kb.wait_vm(("X", j))
        kb.wait_ds(("T", j))
        st = j & 1
        for qb in range(2):
            for nb in range(2):
                acc = vr(ACC + 16 * (2 * qb + nb), 16)
                e("v_mfma_f32_32x32x16_bf16 %s, %s, %s, %s" % (acc, vr(WF + 8 * st + 4 * nb, 4), vr(RING + 8 * (j % D) + 4 * qb, 4), "0" if j == 0 else acc))
        if j + D < 32:
            ctx_load(j + D)
            wo_dma(j + D)
        if j == 7: kb.stamp(3)
        if j == 23: kb.stamp(4)
    kb.stamp(5)
    e("v_add_u32 v13, s%d, v%d" % (sMb, vL16))
    e("s_lshl_b32 s%d, s%d, 11" % (sT, sW_ID))
    e("v_add_u32 v14, s%d, v%d" % (sT, vL16))
    e("v_add_u32 v15, 0x10000, v14")
    def reduce_round(acc, ssm):
        for q in range(16):
            e("ds_write_b128 v13, %s offset:%d" % (vr(acc + 4 * q, 4), 1024 * q))
        e("s_waitcnt lgkmcnt(0)")
        e("s_barrier")
        for p in range(8):
            for ee in range(2):
                e("ds_read_b128 %s, v%d offset:%d" % (vr(RING + 8 * p + 4 * ee, 4), 14 if p < 4 else 15, (p & 3) * 16384 + 1024 * ee))
        for p in range(1, 8):
            e("s_waitcnt lgkmcnt(%d)" % (14 - 2 * p))
            for k in range(8):
                e("v_add_f32 v%d, v%d, v%d" % (RING + k, RING + k, RING + 8 * p + k))
        if not ssm:
            for k in range(4):
                e("v_cvt_pk_bf16_f32 v%d, v%d, v%d" % (RING + 8 + k, RING + 2 * k, RING + 2 * k + 1))
            for k in range(4):
                e("v_lshlrev_b32 v%d, 16, v%d" % (RING + 2 * k, RING + 8 + k))
                e("v_and_b32 v%d, 0xffff0000, v%d" % (RING + 2 * k + 1, RING + 8 + k))
        else:
            kb.wait_vm("xd")
            for ee in range(2):
                for k in range(2):
                    xx, dd = XD + 2 * ee + k, XD + 4 + 2 * ee + k
                    t = RING + 8
                    e("v_lshlrev_b32 v%d, 16, v%d" % (t, xx))
                    e("v_and_b32 v%d, 0xffff0000, v%d" % (t + 1, xx))
                    e("v_lshlrev_b32 v%d, 16, v%d" % (t + 2, dd))
                    e("v_and_b32 v%d, 0xffff0000, v%d" % (t + 3, dd))
                    e("v_mul_f32 v%d, v%d, v%d" % (t, t, t + 2))
                    e("v_mul_f32 v%d, v%d, v%d" % (t + 1, t + 1, t + 3))
                    e("v_cvt_pk_bf16_f32 v%d, v%d, v%d" % (t, t, t + 1))
                    e("v_and_b32 v%d, 0xffff0000, v%d" % (t + 1, t))
                    e("v_lshlrev_b32 v%d, 16, v%d" % (t, t))
                    o = RING + 4 * ee + 2 * k
                    e("v_fma_f32 v%d, 2.0, v%d, v%d" % (o, o, t))
                    e("v_fma_f32 v%d, 2.0, v%d, v%d" % (o + 1, o + 1, t + 1))
        for ee in range(2):
            e("buffer_store_dwordx4 %s, v%d, %s, s%d offen offset:%d" % (vr(RING + 4 * ee, 4), vO, sr(SRD_OUT, 4), sOut, 32 * ee + (2048 if ssm else 0)))
    kb.wait_ds_all()
    reduce_round(ACC2, True)
    e("s_barrier")
    kb.stamp(6)
    e("s_nop 7")
    reduce_round(ACC, False)
    kb.stamp(7)
    kb.dump_stamps([0,1,2,3,4,5,6,7], sW_ID, 100)
    kb.wgtime_end(SRD_WS, 2)
    kb.label("L_k3_end")
    return kb.text()
```

```python
from asmlib import *
from layout import *
import os

def gen_k1():
    kb = KB("k1")
    e = kb.e
    sW_ID, sM, sH = 3, 4, 5
    SRD_CKV, SRD_X, SRD_W1, SRD_WQ, SRD_XB, SRD_BM, SRD_WS = 32, 36, 40, 44, 48, 52, 56
    sA, sW, sMA, sMW, sCnt, sT, sT2 = 60, 61, 62, 63, 64, 65, 66
    sA2, sW2 = 67, 68
    sGX, sGB = 69, 70
    sGT_, sGC = 71, 72
    sEp = 73
    vL, vR, vHI, vI16, vG4 = 1, 2, 3, 4, 5
    vOffA = 8
    vOffW = 12
    vGB = 13
    vL16 = 14
    vGst = 15
    vA = 16
    vW = 20
    vPA = 24
    vA2 = 28
    vW2 = 22
    TMP = 32
    FA = 64
    FW = 96
    vGacc = 112
    ACC = 128

    e("s_cmp_ge_u32 s2, 256")
    e("s_cbranch_scc1 L_k1_end")
    kb.stamp(0)
    kb.wgtime_begin()
    e("s_load_dwordx16 s[8:23], s[0:1], 0")
    e("s_load_dwordx4 s[24:27], s[0:1], %d" % KA['bre'])
    e("s_load_dwordx2 s[28:29], s[0:1], %d" % KA['ws'])
    e("s_load_dwordx4 s[76:79], s[0:1], %d" % KA['cre'])
    e("v_and_b32 v%d, 63, v0" % vL)
    e("v_lshrrev_b32 v2, 6, v0")
    e("s_nop 0")
    e("v_readfirstlane_b32 s%d, v2" % sW_ID)
    e("v_and_b32 v%d, 31, v%d" % (vR, vL))
    e("v_lshrrev_b32 v%d, 5, v%d" % (vHI, vL))
    e("v_and_b32 v%d, 15, v%d" % (vI16, vL))
    e("v_lshrrev_b32 v%d, 4, v%d" % (vG4, vL))
    e("v_lshlrev_b32 v%d, 4, v%d" % (vL16, vL))
    e("s_and_b32 s%d, s2, 7" % sT)
    e("s_lshl_b32 s%d, s%d, 2" % (sT, sT))
    e("s_lshr_b32 s%d, s2, 3" % sT2)
    e("s_and_b32 s%d, s%d, 3" % (sT2, sT2))
    e("s_add_u32 s%d, s%d, s%d" % (sH, sT, sT2))
    e("s_lshr_b32 s%d, s2, 5" % sM)
    e("s_and_b32 s%d, s2, 15" % sGT_)
    e("s_lshr_b32 s%d, s2, 4" % sGC)
    e("v_lshrrev_b32 v32, 3, v%d" % vL)
    e("v_lshlrev_b32 v32, 10, v32")
    e("v_and_b32 v33, 7, v%d" % vL)
    e("v_xor_b32 v34, v33, v%d" % vG4)
    e("v_xor_b32 v35, 4, v34")
    e("v_lshl_add_u32 v%d, v34, 4, v32" % (vOffA + 0))
    e("v_lshl_add_u32 v%d, v35, 4, v32" % (vOffA + 1))
    e("v_add_u32 v%d, %d, v%d" % (vOffA + 2, 2 * 7168, vOffA + 0))
    e("v_add_u32 v%d, %d, v%d" % (vOffA + 3, 3 * 7168, vOffA + 1))
    e("s_and_b32 s%d, s%d, 1" % (sT, sW_ID))
    e("s_cmp_eq_u32 s%d, 1" % sT)
    e("s_cselect_b64 vcc, -1, 0")
    e("v_cndmask_b32 v%d, v%d, v%d, vcc" % (vGB, vOffA + 0, vOffA + 1))
    e("v_add_u32 v%d, %d, v%d" % (vOffA + 1, 7168, vOffA + 1))
    e("v_lshrrev_b32 v32, 2, v%d" % vL)
    e("v_and_b32 v32, 3, v32")
    e("v_xor_b32 v32, v32, v%d" % vG4)
    e("v_lshlrev_b32 v32, 6, v32")
    e("v_lshl_add_u32 v32, v%d, 13, v32" % vG4)
    e("v_and_b32 v33, 3, v%d" % vL)
    e("v_lshl_add_u32 v%d, v33, 4, v32" % vOffW)
    e("v_lshrrev_b32 v32, 1, v%d" % vR)
    e("v_and_b32 v32, 7, v32")
    for ks in range(4):
        e("v_add_u32 v33, %d, v%d" % (2 * ks, vHI))
        e("v_xor_b32 v33, v33, v32")
        e("v_lshlrev_b32 v33, 4, v33")
        e("v_lshl_add_u32 v%d, v%d, 7, v33" % (vPA + ks, vR))
    e("v_lshrrev_b32 v34, 2, v%d" % vI16)
    e("v_lshl_add_u32 v35, v%d, 3, v34" % vHI)
    e("v_lshlrev_b32 v35, 8, v35")
    e("v_and_b32 v36, 1, v%d" % vG4)
    e("v_lshl_add_u32 v35, v36, 5, v35")
    e("v_and_b32 v36, 3, v%d" % vI16)
    e("v_lshl_add_u32 v35, v36, 3, v35")
    e("s_lshr_b32 s%d, s%d, 1" % (sT, sW_ID))
    e("s_and_b32 s%d, s%d, 1" % (sT, sT))
    e("s_lshl_b32 s%d, s%d, 1" % (sT, sT))
    e("s_lshr_b32 s%d, s%d, 2" % (sT2, sW_ID))
    e("s_lshl_b32 s%d, s%d, 14" % (sT2, sT2))
    e("s_add_u32 s%d, s%d, 32768" % (sT2, sT2))
    for nb in range(2):
        e("v_add_u32 v36, %d, v34" % 0)
        e("v_xor_b32 v36, s%d, v36" % sT)
        if nb:
            e("v_xor_b32 v36, 1, v36")
        e("v_lshl_add_u32 v36, v36, 6, v35")
        e("v_add_u32 v%d, s%d, v36" % (vW + nb, sT2))
    e("s_lshr_b32 s%d, s%d, 2" % (sT, sW_ID))
    e("s_lshl_b32 s%d, s%d, 1" % (sT, sT))
    for nb in range(2):
        e("v_xor_b32 v36, s%d, v34" % sT)
        if nb:
            e("v_xor_b32 v36, 1, v36")
        e("v_lshl_add_u32 v36, v36, 6, v35")
        e("v_add_u32 v%d, 0x8000, v36" % (vW2 + nb))
    e("s_and_b32 s%d, s%d, 1" % (sT, sW_ID))
    e("s_lshl_b32 s%d, s%d, 14" % (sT, sT))
    e("s_and_b32 s%d, s%d, 3" % (sT2, sW_ID))
    e("s_lshl_b32 s%d, s%d, 13" % (sT2, sT2))
    for ks in range(4):
        e("v_add_u32 v%d, s%d, v%d" % (vA + ks, sT, vPA + ks))
        e("v_add_u32 v%d, s%d, v%d" % (vA2 + ks, sT2, vPA + ks))
    e("v_lshlrev_b32 v36, 4, v%d" % vHI)
    e("v_lshl_add_u32 v%d, v%d, 13, v36" % (vGst, vR))
    for i in range(128):
        e("v_mov_b32 v%d, 0" % (ACC + i))
    for i in range(16):
        e("v_mov_b32 v%d, 0" % (vGacc + i))
    e("s_waitcnt lgkmcnt(0)")
    kb.srd(SRD_X, 8, 2048 * 1024)
    kb.srd(SRD_CKV, 10, 2048 * 1024)
    kb.srd(SRD_WQ, 12, 512 * 8192)
    e("s_cmp_lt_u32 s%d, 4" % sW_ID)
    e("s_cselect_b32 s%d, s14, s16" % SRD_W1)
    e("s_cselect_b32 s%d, s15, s17" % (SRD_W1 + 1))
    e("s_mov_b32 s%d, 0x%x" % (SRD_W1 + 2, 512 * 8192))
    e("s_mov_b32 s%d, 0x00020000" % (SRD_W1 + 3))
    kb.srd(SRD_XB, 20, 2048 * 1024)
    e("s_and_b32 s%d, s%d, 1" % (sT, sGC))
    e("s_cmp_eq_u32 s%d, 0" % sT)
    e("s_cselect_b32 s%d, s24, s26" % SRD_BM)
    e("s_cselect_b32 s%d, s25, s27" % (SRD_BM + 1))
    e("s_mov_b32 s%d, 0x%x" % (SRD_BM + 2, 512 * 1024))
    e("s_mov_b32 s%d, 0x00020000" % (SRD_BM + 3))
    kb.srd(SRD_WS, 28, WS_BYTES)
    e("s_cmp_lt_u32 s%d, 4" % sW_ID)
    e("s_cbranch_scc1 L_k1_nocf")
    e("s_lshl_b32 s%d, s2, 2" % sT)
    e("s_add_u32 s%d, s%d, s%d" % (sT, sT, sW_ID))
    e("s_sub_u32 s%d, s%d, 4" % (sT, sT))
    e("s_lshl_b32 s75, s%d, 10" % sT)
    e("s_add_u32 s75, s75, 0x%x" % CFR)
    e("s_and_b32 s%d, s%d, 63" % (sT2, sT))
    e("s_lshl_b32 s%d, s%d, 4" % (sT2, sT2))
    e("s_lshr_b32 s%d, s%d, 6" % (sT, sT))
    e("s_lshl_b32 s%d, s%d, 15" % (sT, sT))
    e("s_add_u32 s%d, s%d, s%d" % (sT, sT, sT2))
    e("v_lshlrev_b32 v6, 3, v%d" % vHI)
    e("v_lshl_add_u32 v6, v%d, 10, v6" % vR)
    e("s_mov_b32 s28, s76"); e("s_mov_b32 s29, s77"); e("s_mov_b32 s30, 0x80000"); e("s_mov_b32 s31, 0x00020000")
    e("buffer_load_dwordx2 v[96:97], v6, s[28:31], s%d offen" % sT)
    e("s_mov_b32 s28, s78"); e("s_mov_b32 s29, s79")
    e("s_nop 0")
    e("buffer_load_dwordx2 v[98:99], v6, s[28:31], s%d offen" % sT)
    kb.label("L_k1_nocf")
    e("s_lshl_b32 s%d, s%d, 18" % (sA, sM))
    e("s_lshl_b32 s%d, s%d, 15" % (sT, sW_ID))
    e("s_add_u32 s%d, s%d, s%d" % (sA, sA, sT))
    e("s_mov_b32 s%d, s%d" % (sA2, sA))
    e("s_and_b32 s%d, s%d, 3" % (sT, sW_ID))
    e("s_lshl_b32 s%d, s%d, 17" % (sT, sT))
    e("s_lshl_b32 s%d, s%d, 8" % (sT2, sH))
    e("s_add_u32 s%d, s%d, s%d" % (sW, sT, sT2))
    e("s_lshl_b32 s%d, s%d, 16" % (sT, sW_ID))
    e("s_add_u32 s%d, s%d, s%d" % (sW2, sT, sT2))
    e("s_lshl_b32 s%d, s%d, 17" % (sGX, sGT_))
    e("s_lshl_b32 s%d, s%d, 14" % (sT, sW_ID))
    e("s_add_u32 s%d, s%d, s%d" % (sGX, sGX, sT))
    e("s_lshr_b32 s%d, s%d, 1" % (sT, sGC))
    e("s_lshl_b32 s%d, s%d, 16" % (sGB, sT))
    e("s_lshl_b32 s%d, s%d, 13" % (sT, sW_ID))
    e("s_add_u32 s%d, s%d, s%d" % (sGB, sGB, sT))
    e("s_lshl_b32 s%d, s%d, 12" % (sMA, sW_ID))
    e("s_add_u32 s%d, s%d, 32768" % (sMW, sMA))

    pending = []
    sDT = 74
    def drain(n=1):
        for _ in range(n):
            if pending:
                pending.pop(0)()
    def drain_all():
        while pending:
            pending.pop(0)()
    def pieces_p1(tag):
        out = []
        for n in range(4):
            def f(n=n):
                if n == 0:
                    e("s_mov_b32 m0, s%d" % sMA)
                    e("s_nop 0")
                kb.vmem("buffer_load_dwordx4 v%d, %s, s%d offen offset:%d lds" % (vOffA + n, sr(SRD_CKV, 4), sA, 1024 * n), tag)
            out.append(f)
        for n in range(4):
            def f(n=n):
                if n == 0:
                    e("s_mov_b32 m0, s%d" % sMW)
                e("s_add_u32 s%d, s%d, %d" % (sDT, sW, n * 31744))
                kb.vmem("buffer_load_dwordx4 v%d, %s, s%d offen offset:%d lds" % (vOffW, sr(SRD_W1, 4), sDT, 1024 * n), tag)
                if n == 3:
                    e("s_add_u32 s%d, s%d, 128" % (sA, sA))
                    e("s_add_u32 s%d, s%d, %d" % (sW, sW, 64 * 8192))
                    e("s_xor_b32 s%d, s%d, 0x10000" % (sMA, sMA))
                    e("s_xor_b32 s%d, s%d, 0x10000" % (sMW, sMW))
            out.append(f)
        return out
    PB = [0, 65536, 114688]
    def pieces_p2(tag, buf):
        out = []
        for n in range(4):
            def f(n=n):
                if n == 0:
                    e("s_lshl_b32 s%d, s%d, 12" % (sDT, sW_ID))
                    e("s_add_u32 s%d, s%d, %d" % (sDT, sDT, buf))
                    e("s_mov_b32 m0, s%d" % sDT)
                    e("s_nop 0")
                kb.vmem("buffer_load_dwordx4 v%d, %s, s%d offen offset:%d lds" % (vOffA + n, sr(SRD_X, 4), sA2, 1024 * n), tag)
            out.append(f)
        for n in range(2):
            def f(n=n):
                if n == 0:
                    e("s_lshl_b32 s%d, s%d, 11" % (sDT, sW_ID))
                    e("s_add_u32 s%d, s%d, %d" % (sDT, sDT, buf + 32768))
                    e("s_mov_b32 m0, s%d" % sDT)
                e("s_add_u32 s%d, s%d, %d" % (sDT, sW2, n * 31744))
                kb.vmem("buffer_load_dwordx4 v%d, %s, s%d offen offset:%d lds" % (vOffW, sr(SRD_WQ, 4), sDT, 1024 * n), tag)
                if n == 1:
                    e("s_add_u32 s%d, s%d, 128" % (sA2, sA2))
                    e("s_add_u32 s%d, s%d, %d" % (sW2, sW2, 64 * 8192))
            out.append(f)
        return out
    def dma_p1(tag, now=False):
        pending.extend(pieces_p1(tag))
        if now: drain_all()
    def dma_p2(j, now=False):
        pending.extend(pieces_p2(("p2", j), PB[j % 3]))
        if now: drain_all()
    def dma_g(didx, dbase, tag, now=False):
        for q in range(2):
            koff = (2 * didx + q) * 128
            for n in range(2):
                def f(n=n, q=q, koff=koff):
                    if n == 0:
                        e("s_lshl_b32 s%d, s%d, 11" % (sDT, sW_ID))
                        e("s_add_u32 s%d, s%d, %d" % (sDT, sDT, dbase + q * 24576))
                        e("s_mov_b32 m0, s%d" % sDT)
                    e("s_add_u32 s%d, s%d, %d" % (sDT, sGX, koff))
                    kb.vmem("buffer_load_dwordx4 v%d, %s, s%d offen offset:%d lds" % (vOffA + n, sr(SRD_XB, 4), sDT, 1024 * n), tag)
                pending.append(f)
            def f2(q=q, koff=koff):
                e("s_lshl_b32 s%d, s%d, 10" % (sDT, sW_ID))
                e("s_add_u32 s%d, s%d, %d" % (sDT, sDT, dbase + q * 24576 + 16384))
                e("s_mov_b32 m0, s%d" % sDT)
                e("s_add_u32 s%d, s%d, %d" % (sDT, sGB, koff))
                kb.vmem("buffer_load_dwordx4 v%d, %s, s%d offen lds" % (vGB, sr(SRD_BM, 4), sDT), tag)
            pending.append(f2)
        if now: drain_all()

    def g_half(d0, d1):
        areas = [FA, TMP]
        subs = [(d0, 0), (d0, 1), (d1, 0), (d1, 1)]
        e("s_and_b32 s%d, s%d, 3" % (sT, sW_ID))
        e("s_lshl_b32 s%d, s%d, 12" % (sT, sT))
        e("s_lshr_b32 s%d, s%d, 2" % (sT2, sW_ID))
        e("s_lshl_b32 s%d, s%d, 12" % (sT2, sT2))
        e("s_add_u32 s%d, s%d, 16384" % (sT2, sT2))
        def reads(si):
            d, q = subs[si]
            ar = areas[si & 1]
            for ks in range(4):
                e("v_add_u32 v6, s%d, v%d" % (sT, vPA + ks))
                e("v_add_u32 v7, s%d, v%d" % (sT2, vPA + ks))
                e("v_add_u32 v6, 0x%x, v6" % d)
                e("v_add_u32 v7, 0x%x, v7" % d)
                kb.ds("ds_read_b128 %s, v6 offset:%d" % (vr(ar + 8 * ks, 4), q * 24576), ("g", si, ks))
                kb.ds("ds_read_b128 %s, v7 offset:%d" % (vr(ar + 8 * ks + 4, 4), q * 24576), ("g", si, ks))
        def mf(si):
            ar = areas[si & 1]
            for ks in range(4):
                kb.wait_ds(("g", si, ks))
                e("v_mfma_f32_32x32x16_bf16 %s, %s, %s, %s" % (vr(vGacc, 16), vr(ar + 8 * ks, 4), vr(ar + 8 * ks + 4, 4), vr(vGacc, 16)))
        reads(0); reads(1); mf(0); reads(2); mf(1); reads(3); mf(2); mf(3)

    class Cfg: pass
    def mkcfg(nA, va, vw, ktype):
        c = Cfg(); c.nA = nA; c.va = va; c.vw = vw; c.ktype = ktype; return c
    def frag_reads(cfg, ks, st):
        fa = FA + 16 * st; fw = FW + 8 * st
        kb.ds("ds_read_b128 %s, v%d" % (vr(fa, 4), cfg.va + ks), ("A", st, 0))
        for nb in range(2):
            for j in range(2):
                kb.ds("ds_read_b64_tr_b16 %s, v%d offset:%d" % (vr(fw + 4 * nb + 2 * j, 2), cfg.vw + nb, 4096 * ks + 1024 * j), ("W", st, nb))
        for rb in range(1, cfg.nA):
            kb.ds("ds_read_b128 %s, v%d offset:%d" % (vr(fa + 4 * rb, 4), cfg.va + ks, 4096 * rb), ("A", st, rb))
    def toggle(cfg):
        for ks in range(4):
            e("v_xor_b32 v%d, 0x10000, v%d" % (cfg.va + ks, cfg.va + ks))
        for nb in range(2):
            e("v_xor_b32 v%d, 0x10000, v%d" % (cfg.vw + nb, cfg.vw + nb))
    def mfmas(cfg, st, zero=False):
        fa = FA + 16 * st; fw = FW + 8 * st
        for rb in range(cfg.nA):
            for nb in range(2):
                kb.wait_ds(("A", st, rb)); kb.wait_ds(("W", st, nb))
                acc = vr(ACC + 16 * (2 * rb + nb), 16)
                a, b = vr(fa + 4 * rb, 4), vr(fw + 4 * nb, 4)
                if cfg.ktype:
                    a, b = b, a
                e("v_mfma_f32_32x32x16_bf16 %s, %s, %s, %s" % (acc, a, b, "0" if zero else acc))
                if cfg.nA == 2 or nb == 1 or os.environ.get("P1FAST"):
                    drain()
    def stage(cfg, need_tag, sync_action, next_reads, zero=False, allow_pending=False):
        for ks in range(4):
            cur = ks & 1
            if ks < 3:
                frag_reads(cfg, ks + 1, cur ^ 1)
            else:
                assert not pending or allow_pending, pending
                kb.wait_ds_all()
                if need_tag is None:
                    kb.wait_vm_all()
                else:
                    kb.wait_vm(need_tag)
                e("s_barrier")
                sync_action()
                next_reads()
            mfmas(cfg, cur, zero and ks == 0)

    def pack_store(acc, soff_sgpr, off0, tset, scale=None):
        for half in range(2):
            t = TMP + 4 * ((2 * tset + half) % 8)
            if scale is not None:
                for k in range(8):
                    e("v_mul_f32 v%d, s%d, v%d" % (acc + 8 * half + k, scale, acc + 8 * half + k))
            for k in range(4):
                e("v_cvt_pk_bf16_f32 v%d, v%d, v%d" % (t + k, acc + 8 * half + 2 * k, acc + 8 * half + 2 * k + 1))
            kb.vmem("buffer_store_dwordx4 %s, v%d, %s, s%d offen offset:%d" % (vr(t, 4), vL16, sr(SRD_WS, 4), soff_sgpr, off0 + 1024 * half), "st")

    def wo_issue():
        e("s_mov_b32 s28, s18"); e("s_mov_b32 s29, s19"); e("s_mov_b32 s30, 0x400000"); e("s_mov_b32 s31, 0x00020000")
        e("v_lshrrev_b32 v32, 2, v%d" % vL)
        e("v_xor_b32 v32, v32, v%d" % vG4)
        e("v_and_b32 v32, 1, v32")
        e("v_lshlrev_b32 v32, 6, v32")
        e("v_lshrrev_b32 v33, 3, v%d" % vL)
        e("v_lshl_add_u32 v32, v33, 10, v32")
        e("v_and_b32 v33, 3, v%d" % vL)
        e("v_lshl_add_u32 v32, v33, 4, v32")
        e("v_add_u32 v33, 7168, v32")
        e("s_lshl_b32 s%d, s%d, 11" % (sT, sW_ID))
        e("s_add_u32 s%d, s%d, 49152" % (sT, sT))
        e("s_mov_b32 m0, s%d" % sT)
        e("s_lshl_b32 s%d, s2, 14" % sT2)
        e("s_lshl_b32 s%d, s%d, 7" % (sT, sW_ID))
        e("s_add_u32 s%d, s%d, s%d" % (sT2, sT2, sT))
        kb.vmem("buffer_load_dwordx4 v32, s[28:31], s%d offen lds" % sT2, "wo")
        kb.vmem("buffer_load_dwordx4 v33, s[28:31], s%d offen offset:1024 lds" % sT2, "wo")
    def wo_finish():
        kb.wait_vm("wo")
        e("v_lshrrev_b32 v34, 2, v%d" % vI16)
        e("v_lshl_add_u32 v34, v%d, 2, v34" % vHI)
        e("v_lshlrev_b32 v34, 7, v34")
        e("v_and_b32 v35, 1, v%d" % vG4)
        e("v_lshl_add_u32 v34, v35, 5, v34")
        e("v_and_b32 v35, 3, v%d" % vI16)
        e("v_lshl_add_u32 v34, v35, 3, v34")
        e("s_lshl_b32 s%d, s%d, 11" % (sT, sW_ID))
        e("s_add_u32 s%d, s%d, 49152" % (sT, sT))
        e("v_add_u32 v34, s%d, v34" % sT)
        e("v_lshrrev_b32 v35, 3, v%d" % vI16)
        e("v_lshl_add_u32 v32, v35, 6, v34")
        e("v_xor_b32 v35, 1, v35")
        e("v_lshl_add_u32 v33, v35, 6, v34")
        for nb in range(2):
            for jj in range(2):
                kb.ds("ds_read_b64_tr_b16 %s, v%d offset:%d" % (vr(40 + 4 * nb + 2 * jj, 2), 32 + nb, 1024 * jj), "wot")
        e("s_lshl_b32 s%d, s%d, 19" % (sT, sW_ID))
        e("s_lshl_b32 s%d, s2, 10" % sT2)
        e("s_add_u32 s%d, s%d, s%d" % (sT, sT, sT2))
        e("s_add_u32 s%d, s%d, 0x%x" % (sT, sT, WOF))
        e("s_add_u32 s%d, s%d, 0x40000" % (sT2, sT))
        kb.wait_ds("wot")
        kb.vmem("buffer_store_dwordx4 v[40:43], v%d, %s, s%d offen" % (vL16, sr(SRD_WS, 4), sT), "st")
        kb.vmem("buffer_store_dwordx4 v[44:47], v%d, %s, s%d offen" % (vL16, sr(SRD_WS, 4), sT2), "st")
    dma_g(0, 65536, "g01", now=True)
    dma_g(1, 114688, "g01", now=True)
    dma_p1("p1s0", now=True)
    kb.stamp(1)
    kb.wait_vm("g01")
    e("s_barrier")
    kb.stamp(2)
    g_half(65536, 114688)
    kb.wait_ds_all()
    kb.wait_vm_all()
    e("s_barrier")
    kb.stamp(3)
    e("s_cmp_lt_u32 s%d, 4" % sW_ID)
    e("s_cbranch_scc1 L_k1_nocf2")
    e("v_swap_b32 v97, v98")
    e("buffer_store_dwordx4 v[96:99], v%d, %s, s75 offen" % (vL16, sr(SRD_WS, 4)))
    e("s_nop 1")
    kb.label("L_k1_nocf2")
    dma_p1("p1", now=True)
    save_lg, save_vm = None, None

    def body(ktype):
        c1 = mkcfg(4, vA, vW, ktype)
        c2 = mkcfg(2, vA2, vW2, True)
        kb.lg = []; kb.vm = ["p1"] * 8
        frag_reads(c1, 0, 0)
        def act():
            dma_p1("p1"); toggle(c1)
        stage(c1, None, act, lambda: frag_reads(c1, 0, 0))
        e("s_mov_b32 s%d, 0" % sCnt)
        lab = kb.newlabel("p1loop")
        st_lg = list(kb.lg); st_p = len(pending)
        kb.label(lab)
        stage(c1, None, act, lambda: frag_reads(c1, 0, 0))
        e("s_add_u32 s%d, s%d, 1" % (sCnt, sCnt))
        e("s_cmp_lt_u32 s%d, 5" % sCnt)
        e("s_cbranch_scc1 %s" % lab)
        assert kb.lg == st_lg and len(pending) == st_p, (kb.lg, st_lg)
        def act6():
            wo_issue(); dma_g(2, 0, "g2"); toggle(c1)
        stage(c1, None, act6, lambda: frag_reads(c1, 0, 0))
        def act7():
            dma_g(3, 65536, "g3")
        stage(c1, None, act7, lambda: None)
        kb.stamp(4)
        drain_all()
        kb.nop(16)
        e("s_lshl_b32 s%d, s%d, 19" % (sEp, sH))
        e("s_and_b32 s%d, s%d, 1" % (sT, sW_ID))
        e("s_lshr_b32 s%d, s%d, 1" % (sT2, sW_ID))
        e("s_and_b32 s%d, s%d, 1" % (sT2, sT2))
        if ktype:
            e("s_lshl_b32 s%d, s%d, 15" % (sT, sT))
            e("s_add_u32 s%d, s%d, s%d" % (sEp, sEp, sT))
            e("s_lshl_b32 s%d, s%d, 16" % (sT, sM))
            e("s_add_u32 s%d, s%d, s%d" % (sEp, sEp, sT))
            e("s_lshl_b32 s%d, s%d, 12" % (sT2, sT2))
            e("s_add_u32 s%d, s%d, s%d" % (sEp, sEp, sT2))
            e("s_add_u32 s%d, s%d, 0x%x" % (sEp, sEp, KF))
            for rb in range(4):
                e("s_add_u32 s%d, s%d, %d" % (sT, sEp, rb * 8192))
                for nb in range(2):
                    pack_store(ACC + 16 * (2 * rb + nb), sT, nb * 2048, 2 * rb + nb)
        else:
            e("s_lshl_b32 s%d, s%d, 15" % (sT, sT))
            e("s_add_u32 s%d, s%d, s%d" % (sEp, sEp, sT))
            e("s_lshl_b32 s%d, s%d, 16" % (sT, sM))
            e("s_add_u32 s%d, s%d, s%d" % (sEp, sEp, sT))
            e("s_lshl_b32 s%d, s%d, 13" % (sT2, sT2))
            e("s_add_u32 s%d, s%d, s%d" % (sEp, sEp, sT2))
            e("s_add_u32 s%d, s%d, 0x%x" % (sEp, sEp, VF))
            for rb in range(4):
                for nb in range(2):
                    e("s_add_u32 s%d, s%d, %d" % (sT, sEp, (rb >> 1) * 16384 + nb * 4096))
                    pack_store(ACC + 16 * (2 * rb + nb), sT, (rb & 1) * 2048, 2 * rb + nb)
        e("s_branch L_k1_phase2")

    e("s_cmp_lt_u32 s%d, 4" % sW_ID)
    e("s_cbranch_scc0 L_k1_vtype")
    body(True)
    lgA, vmA = list(kb.lg), list(kb.vm)
    kb.label("L_k1_vtype")
    body(False)
    assert kb.lg == lgA and kb.vm == vmA
    kb.label("L_k1_phase2")
    kb.stamp(5)
    kb.wait_vm("g3")
    e("s_barrier")
    kb.stamp(6)
    wo_finish()
    g_half(0, 65536)
    kb.nop(16)
    e("s_and_b32 s%d, s%d, 1" % (sT, sGC))
    e("s_lshl_b32 s%d, s%d, 22" % (sEp, sT))
    e("s_lshr_b32 s%d, s%d, 1" % (sT, sGC))
    e("s_lshl_b32 s%d, s%d, 19" % (sT, sT))
    e("s_add_u32 s%d, s%d, s%d" % (sEp, sEp, sT))
    e("s_lshr_b32 s%d, s%d, 2" % (sT, sW_ID))
    e("s_lshl_b32 s%d, s%d, 18" % (sT, sT))
    e("s_add_u32 s%d, s%d, s%d" % (sEp, sEp, sT))
    e("s_lshl_b32 s%d, s%d, 9" % (sT, sGT_))
    e("s_add_u32 s%d, s%d, s%d" % (sEp, sEp, sT))
    e("s_and_b32 s%d, s%d, 3" % (sT, sW_ID))
    e("s_lshl_b32 s%d, s%d, 7" % (sT, sT))
    e("s_add_u32 s%d, s%d, s%d" % (sEp, sEp, sT))
    e("s_add_u32 s%d, s%d, 0x%x" % (sEp, sEp, GT))
    for q in range(4):
        e("buffer_store_dwordx4 %s, v%d, %s, s%d offen offset:%d" % (vr(vGacc + 4 * q, 4), vGst, sr(SRD_WS, 4), sEp, 32 * q))
    kb.stamp(7)
    kb.dump_stamps([0,1,2,3,4,5,6,7], sW_ID, 100)
    kb.wgtime_end(SRD_WS, 0)
    kb.label("L_k1_end")
    return kb.text()
```

```python
from asmlib import *
from layout import *
import struct, math

def f32bits(x):
    return struct.unpack("<I", struct.pack("<f", x))[0]

LOG2E = 1.4426950408889634
QSCALE = (128.0 ** -0.5) * LOG2E
SUM_T = 2.0 ** 64
import os
STC = int(os.environ.get('STC', '3'))

def gen_k2():
    kb = KB("k2")
    e = kb.e
    sW_ID, sWQ, sH, sI, sGRP = 3, 4, 5, 6, 7
    SRD_WS = 32
    sKb, sVb, sNext, sLeft, sMK, sMV, sThr, sCnt, sD, sT, sT2, sT3, sF, sFirst, sFloor = range(36, 51)
    sKeep = 30
    sCm = 52
    sLre, sLim, sLdt = 60, 61, 62
    sP = 64
    sCtx = 80
    vL, vR, vHI, vL16, vF, vDMA, vM, vT, vT2, vNeg, vThr, vRm = range(1, 13)
    Q, S, P, POOL, O, CI, ONES, LT, LA, ET = 16, 48, 80, 96, 160, 224, 240, 244, 248, 250
    BREG, AREG, QST = 65536, 0, 131072

    e("s_cmp_ge_u32 s2, 256")
    e("s_cbranch_scc1 L_k2_end")
    kb.stamp(0)
    kb.wgtime_begin()
    e("s_load_dwordx2 s[28:29], s[0:1], %d" % KA['ws'])
    e("s_load_dwordx4 s[8:11], s[0:1], %d" % KA['lre'])
    e("s_load_dwordx2 s[12:13], s[0:1], %d" % KA['logdt'])
    e("s_load_dwordx2 s[14:15], s[0:1], %d" % KA['x'])
    e("s_load_dwordx2 s[16:17], s[0:1], %d" % KA['wq'])
    e("v_and_b32 v%d, 63, v0" % vL)
    e("v_lshrrev_b32 v2, 6, v0")
    e("s_nop 0")
    e("v_readfirstlane_b32 s%d, v2" % sW_ID)
    e("v_and_b32 v%d, 31, v%d" % (vR, vL))
    e("v_lshrrev_b32 v%d, 5, v%d" % (vHI, vL))
    e("v_lshlrev_b32 v%d, 4, v%d" % (vL16, vL))
    e("v_lshlrev_b32 v14, 2, v%d" % vHI)
    e("v_sub_u32 v%d, v%d, v14" % (vRm, vR))
    e("v_mov_b32 v%d, 0xff800000" % vNeg)
    e("s_and_b32 s%d, s%d, 3" % (sWQ, sW_ID))
    e("s_lshr_b32 s%d, s%d, 2" % (sGRP, sW_ID))
    e("s_and_b32 s%d, s2, 7" % sT)
    e("s_lshl_b32 s%d, s%d, 2" % (sT, sT))
    e("s_lshr_b32 s%d, s2, 3" % sT2)
    e("s_and_b32 s%d, s%d, 3" % (sT2, sT2))
    e("s_add_u32 s%d, s%d, s%d" % (sH, sT, sT2))
    e("s_lshr_b32 s%d, s2, 5" % sI)
    e("s_mov_b32 s%d, 0x%x" % (sThr, f32bits(SUM_T)))
    e("v_and_b32 v13, 15, v%d" % vL)
    e("v_bfe_u32 v14, v%d, 4, 1" % vL)
    e("v_cmp_eq_u32 vcc, v13, v14")
    e("v_mov_b32 v15, 0x3f803f80")
    e("s_lshl_b32 s%d, s%d, 16" % (sT, sGRP))
    e("s_lshl_b32 s%d, s%d, 12" % (sT2, sWQ))
    for k in range(4):
        e("v_cndmask_b32 v%d, 0, v15, vcc" % (ONES + k))
    e("v_add_u32 v%d, s%d, v%d" % (vDMA, sT2, vL16))
    e("s_add_u32 s%d, s%d, s%d" % (sMK, sT, sT2))
    e("s_lshl_b32 s%d, s%d, 15" % (sT3, sGRP))
    e("s_add_u32 s%d, s%d, s%d" % (sMK, sMK, sT3))
    e("s_add_u32 s%d, s%d, 16384" % (sMV, sMK))
    e("s_lshl_b32 s%d, s%d, 19" % (sT, sH))
    e("s_add_u32 s%d, s%d, 0x%x" % (sKb, sT, KF))
    e("s_add_u32 s%d, s%d, 0x%x" % (sVb, sT, VF))
    e("s_lshl_b32 s%d, s%d, 1" % (sT, sI))
    e("s_sub_u32 s%d, 15, s%d" % (sT3, sT))
    e("s_cmp_eq_u32 s%d, 0" % sGRP)
    e("s_cselect_b32 s%d, 17, 0" % sNext)
    e("s_cselect_b32 s%d, s%d, 17" % (sLeft, sT3))
    e("s_mov_b32 s%d, 0x%x" % (sF, BREG + 0x8000))
    e("v_add_u32 v%d, s%d, v%d" % (vF, sF, vL16))
    e("s_waitcnt lgkmcnt(0)")
    kb.srd(SRD_WS, 28, WS_BYTES)
    SRD_X, SRD_WQ = 20, 24
    kb.srd(SRD_X, 14, 2048 * 1024)
    kb.srd(SRD_WQ, 16, 512 * 8192)
    e("s_lshl_b32 s%d, s2, 2" % sT)
    e("s_load_dword s%d, s[8:9], s%d" % (sLre, sT))
    e("s_load_dword s%d, s[10:11], s%d" % (sLim, sT))
    e("s_load_dword s%d, s[12:13], s%d" % (sLdt, sT))

    def dma_tile():
        lab = kb.newlabel("nodma")
        e("s_cmp_eq_u32 s%d, 0" % sLeft)
        e("s_cbranch_scc1 %s" % lab)
        e("s_lshl_b32 s%d, s%d, 14" % (sT, sNext))
        e("s_add_u32 s%d, s%d, s%d" % (sT2, sT, sKb))
        e("s_mov_b32 m0, s%d" % sMK)
        e("s_add_u32 s%d, s%d, s%d" % (sT, sT, sVb))
        for n in range(4):
            e("buffer_load_dwordx4 v%d, %s, s%d offen offset:%d lds" % (vDMA, sr(SRD_WS, 4), sT2, 1024 * n))
        e("s_mov_b32 m0, s%d" % sMV)
        e("s_sub_u32 s%d, s%d, 1" % (sLeft, sLeft))
        for n in range(4):
            e("buffer_load_dwordx4 v%d, %s, s%d offen offset:%d lds" % (vDMA, sr(SRD_WS, 4), sT, 1024 * n))
        e("s_add_u32 s%d, s%d, 1" % (sNext, sNext))
        kb.label(lab)
        e("s_xor_b32 s%d, s%d, 0x8000" % (sMK, sMK))
        e("s_xor_b32 s%d, s%d, 0x8000" % (sMV, sMV))

    def q_base(high):
        if high:
            e("s_sub_u32 s%d, 15, s%d" % (sT, sI))
        else:
            e("s_mov_b32 s%d, s%d" % (sT, sI))
        e("s_lshl_b32 s%d, s%d, 2" % (sT, sT))
        e("s_add_u32 s%d, s%d, s%d" % (sT, sT, sWQ))
        e("s_lshl_b32 s%d, s%d, 6" % (sT2, sH))
        e("s_add_u32 s%d, s%d, s%d" % (sT, sT, sT2))
        e("s_lshl_b32 s%d, s%d, 13" % (sT, sT))
        if QF:
            e("s_add_u32 s%d, s%d, 0x%x" % (sT, sT, QF))
    def q_load():
        e("s_add_u32 s%d, s%d, 4096" % (sT2, sT))
        for s in range(8):
            e("buffer_load_dwordx4 %s, v%d, %s, s%d offen offset:%d" % (vr(Q + 4 * s, 4), vL16, sr(SRD_WS, 4), sT if s < 4 else sT2, 1024 * (s & 3)))

    def reset_state():
        e("s_mov_b32 s%d, 0" % sKeep)
        for i in range(16):
            e("v_mov_b32 v%d, 0" % (CI + i))
        e("v_mov_b32 v%d, 0" % vM)
        e("v_mov_b32 v%d, 0" % LA); e("v_mov_b32 v%d, 0" % (LA + 1))
        e("s_mov_b32 s%d, 1" % sFirst)
        e("s_mov_b32 s%d, 0x%x" % (sFloor, f32bits(-3e38)))

    QB = [0, 49152, 98304]
    SCR = 147456
    vOA, vOW, vPA, vPW = 224, 228, 229, 233
    sXo, sWo_, sDT = 18, 19, 63
    GQ = [152, 156, 244, 248]
    e("v_lshlrev_b32 v13, 4, v0")
    e("s_lshl_b32 s%d, s2, 14" % sT)
    e("s_add_u32 s%d, s%d, 0x%x" % (sT, sT, GT))
    for ch in range(2):
        for pl in range(2):
            e("s_add_u32 s%d, s%d, %d" % (sT2, sT, pl * 512 * 8192 + ch * 8192))
            kb.vmem("buffer_load_dwordx4 %s, v13, %s, s%d offen" % (vr(GQ[2 * ch + pl], 4), sr(SRD_WS, 4), sT2), "G")
    e("v_lshrrev_b32 v15, 4, v%d" % vL)
    e("v_lshrrev_b32 v13, 3, v%d" % vL)
    e("v_lshlrev_b32 v13, 10, v13")
    e("v_and_b32 v14, 7, v%d" % vL)
    e("v_xor_b32 v14, v14, v15")
    e("v_lshl_add_u32 v%d, v14, 4, v13" % (vOA + 0))
    e("v_xor_b32 v14, 4, v14")
    e("v_lshl_add_u32 v%d, v14, 4, v13" % (vOA + 1))
    e("v_add_u32 v%d, %d, v%d" % (vOA + 2, 2 * 7168, vOA + 0))
    e("v_add_u32 v%d, %d, v%d" % (vOA + 3, 3 * 7168, vOA + 1))
    e("v_add_u32 v%d, %d, v%d" % (vOA + 1, 7168, vOA + 1))
    e("v_lshrrev_b32 v13, 2, v%d" % vL)
    e("v_and_b32 v13, 3, v13")
    e("v_xor_b32 v13, v13, v15")
    e("v_lshlrev_b32 v13, 6, v13")
    e("v_lshl_add_u32 v13, v15, 13, v13")
    e("v_and_b32 v14, 3, v%d" % vL)
    e("v_lshl_add_u32 v%d, v14, 4, v13" % vOW)
    e("s_sub_u32 s%d, 15, s%d" % (sT, sI))
    e("s_cmp_eq_u32 s%d, 0" % sGRP)
    e("s_cselect_b32 s%d, s%d, s%d" % (sT, sI, sT))
    e("s_lshl_b32 s%d, s%d, 2" % (sT, sT))
    e("s_add_u32 s%d, s%d, s%d" % (sT, sT, sWQ))
    e("s_lshl_b32 s%d, s%d, 15" % (sXo, sT))
    e("s_lshl_b32 s%d, s%d, 16" % (sT, sW_ID))
    e("s_lshl_b32 s%d, s%d, 8" % (sT2, sH))
    e("s_add_u32 s%d, s%d, s%d" % (sWo_, sT, sT2))
    pending = []
    def drain(n=1):
        for _ in range(n):
            if pending:
                pending.pop(0)()
    def drain_all():
        while pending:
            pending.pop(0)()
    def q_dma(j):
        buf = QB[j % 3]; tag = ("q", j)
        for n in range(4):
            def f(n=n):
                if n == 0:
                    e("s_lshl_b32 s%d, s%d, 12" % (sDT, sW_ID))
                    e("s_add_u32 s%d, s%d, %d" % (sDT, sDT, buf))
                    e("s_mov_b32 m0, s%d" % sDT)
                e("s_add_u32 s%d, s%d, %d" % (sDT, sXo, 128 * j))
                kb.vmem("buffer_load_dwordx4 v%d, %s, s%d offen offset:%d lds" % (vOA + n, sr(SRD_X, 4), sDT, 1024 * n), tag)
            pending.append(f)
        for n in range(2):
            def f(n=n):
                if n == 0:
                    e("s_lshl_b32 s%d, s%d, 11" % (sDT, sW_ID))
                    e("s_add_u32 s%d, s%d, %d" % (sDT, sDT, buf + 32768))
                    e("s_mov_b32 m0, s%d" % sDT)
                e("s_add_u32 s%d, s%d, %d" % (sDT, sWo_, j * 64 * 8192 + n * 31744))
                kb.vmem("buffer_load_dwordx4 v%d, %s, s%d offen offset:%d lds" % (vOW, sr(SRD_WQ, 4), sDT, 1024 * n), tag)
            pending.append(f)
    q_dma(0)
    drain_all()
    e("v_lshrrev_b32 v13, 1, v%d" % vR)
    e("v_and_b32 v13, 7, v13")
    e("s_lshl_b32 s%d, s%d, 12" % (sT, sW_ID))
    for ks in range(4):
        e("v_add_u32 v14, %d, v%d" % (2 * ks, vHI))
        e("v_xor_b32 v14, v14, v13")
        e("v_lshlrev_b32 v14, 4, v14")
        e("v_lshl_add_u32 v14, v%d, 7, v14" % vR)
        e("v_add_u32 v%d, s%d, v14" % (vPA + ks, sT))
    e("v_and_b32 v13, 15, v%d" % vL)
    e("v_lshrrev_b32 v14, 2, v13")
    e("v_lshl_add_u32 v%d, v%d, 3, v14" % (vT, vHI))
    e("v_lshlrev_b32 v%d, 8, v%d" % (vT, vT))
    e("v_and_b32 v%d, 1, v15" % vT2)
    e("v_lshl_add_u32 v%d, v%d, 5, v%d" % (vT, vT2, vT))
    e("v_and_b32 v%d, 3, v13" % vT2)
    e("v_lshl_add_u32 v%d, v%d, 3, v%d" % (vT, vT2, vT))
    e("v_add_u32 v%d, 0x8000, v%d" % (vT, vT))
    for b_ in range(4):
        e("v_xor_b32 v%d, %d, v14" % (vT2, b_))
        e("v_lshl_add_u32 v%d, v%d, 6, v%d" % (vPW + b_, vT2, vT))

    segs = {0: [], 1: [], 2: [], 3: []}
    cur_seg = [0]
    def r(txt):
        segs[cur_seg[0]].append(lambda: e(txt))
    def rmulti(*txts):
        def f():
            for t in txts: e(t)
        segs[cur_seg[0]].append(f)
    def rds(txt, tag):
        segs[cur_seg[0]].append(lambda: kb.ds(txt, tag))
    def rwait_ds(tag):
        segs[cur_seg[0]].append(lambda: kb.wait_ds(tag))
    def rwait_vm(tag):
        segs[cur_seg[0]].append(lambda: kb.wait_vm(tag))
    def rvmem(txt, tag):
        segs[cur_seg[0]].append(lambda: kb.vmem(txt, tag))
    sA_, sB_, sMsk = sP + 12, sP + 13, sP + 14
    r("s_waitcnt lgkmcnt(0)")
    r("s_lshl_b32 s%d, s%d, 16" % (sP + 0, sLre)); r("s_and_b32 s%d, s%d, 0xffff0000" % (sP + 1, sLre))
    r("s_lshl_b32 s%d, s%d, 16" % (sP + 2, sLim)); r("s_and_b32 s%d, s%d, 0xffff0000" % (sP + 3, sLim))
    r("s_lshl_b32 s%d, s%d, 16" % (sP + 4, sLdt)); r("s_and_b32 s%d, s%d, 0xffff0000" % (sP + 5, sLdt))
    r("s_mov_b32 s%d, 0x%x" % (sP + 6, f32bits(LOG2E)))
    r("s_mov_b32 s%d, 0x%x" % (sP + 7, f32bits(1.0 / (2 * math.pi))))
    r("v_cvt_f32_u32 v15, v%d" % vL)
    r("v_mul_f32 v15, 4.0, v15")
    def cmul(dr, di, ar, ai, br, bi, t):
        r("v_mul_f32 v%d, v%d, v%d" % (t, ai, bi))
        r("v_fma_f32 v%d, v%d, v%d, -v%d" % (dr, ar, br, t))
        r("v_mul_f32 v%d, v%d, v%d" % (t, ai, br))
        r("v_fma_f32 v%d, v%d, v%d, v%d" % (di, ar, bi, t))
    def cfma(dr, di, ar, ai, br, bi):
        r("v_fma_f32 v%d, v%d, v%d, v%d" % (dr, ar, br, dr))
        r("v_fma_f32 v%d, -v%d, v%d, v%d" % (dr, ai, bi, dr))
        r("v_fma_f32 v%d, v%d, v%d, v%d" % (di, ar, bi, di))
        r("v_fma_f32 v%d, v%d, v%d, v%d" % (di, ai, br, di))
    CH = []
    for ch in range(2):
        B = 16 + 48 * ch
        R = dict(lr=B, li=B + 1, dt=B + 2, a=B + 3, b=B + 4, t=B + 5, t2=B + 6, cr=B + 7, ci=B + 8,
                 L1=B + 9, L2=B + 11, L3=B + 13, MU=B + 15, PL=B + 29, H=B + 31,
                 X=B + 39, Y=B + 41, CW=B + 43, WC=B + 45)
        CH.append(R)
        r("v_mov_b32 v%d, s%d" % (R['lr'], sP + ch))
        r("v_mov_b32 v%d, s%d" % (R['li'], sP + 2 + ch))
        r("v_mov_b32 v%d, s%d" % (R['t'], sP + 4 + ch))
        r("v_mul_f32 v%d, s%d, v%d" % (R['t'], sP + 6, R['t']))
        r("v_exp_f32 v%d, v%d" % (R['t'], R['t']))
        r("s_nop 0")
        r("v_cvt_pk_bf16_f32 v%d, v%d, v%d" % (R['t'], R['t'], R['t']))
        r("v_lshlrev_b32 v%d, 16, v%d" % (R['dt'], R['t']))
        r("v_mul_f32 v%d, v%d, v%d" % (R['a'], R['dt'], R['lr']))
        r("v_mul_f32 v%d, v%d, v%d" % (R['b'], R['dt'], R['li']))
        r("v_mul_f32 v%d, s%d, v%d" % (R['a'], sP + 6, R['a']))
        r("v_mul_f32 v%d, s%d, v%d" % (R['b'], sP + 7, R['b']))
        def cexp(dr, di, va, vb):
            r("v_exp_f32 v%d, v%d" % (R['t'], va))
            r("v_fract_f32 v%d, v%d" % (R['t2'], vb))
            r("v_cos_f32 v%d, v%d" % (dr, R['t2']))
            r("v_sin_f32 v%d, v%d" % (di, R['t2']))
            r("s_nop 0")
            r("v_mul_f32 v%d, v%d, v%d" % (dr, dr, R['t']))
            r("v_mul_f32 v%d, v%d, v%d" % (di, di, R['t']))
        cexp(R['L1'], R['L1'] + 1, R['a'], R['b'])
        r("v_mul_f32 v%d, v15, v%d" % (R['X'], R['a']))
        r("v_mul_f32 v%d, v15, v%d" % (R['X'] + 1, R['b']))
        cexp(R['PL'], R['PL'] + 1, R['X'], R['X'] + 1)
        r("v_add_f32 v%d, -1.0, v%d" % (R['X'], R['L1']))
        r("v_mul_f32 v%d, v%d, v%d" % (R['t'], R['lr'], R['lr']))
        r("v_fma_f32 v%d, v%d, v%d, v%d" % (R['t'], R['li'], R['li'], R['t']))
        r("v_rcp_f32 v%d, v%d" % (R['t'], R['t']))
        r("v_mul_f32 v%d, v%d, v%d" % (R['cr'], R['X'], R['lr']))
        r("v_fma_f32 v%d, v%d, v%d, v%d" % (R['cr'], R['L1'] + 1, R['li'], R['cr']))
        r("v_mul_f32 v%d, v%d, v%d" % (R['ci'], R['L1'] + 1, R['lr']))
        r("v_fma_f32 v%d, -v%d, v%d, v%d" % (R['ci'], R['X'], R['li'], R['ci']))
        r("v_mul_f32 v%d, v%d, v%d" % (R['cr'], R['cr'], R['t']))
        r("v_mul_f32 v%d, v%d, v%d" % (R['ci'], R['ci'], R['t']))
        cmul(R['L2'], R['L2'] + 1, R['L1'], R['L1'] + 1, R['L1'], R['L1'] + 1, R['t'])
        cmul(R['L3'], R['L3'] + 1, R['L2'], R['L2'] + 1, R['L1'], R['L1'] + 1, R['t'])
        cmul(R['MU'], R['MU'] + 1, R['L2'], R['L2'] + 1, R['L2'], R['L2'] + 1, R['t'])
        for k in range(1, 7):
            a_ = R['MU'] + 2 * (k - 1)
            cmul(a_ + 2, a_ + 3, a_, a_ + 1, a_, a_ + 1, R['t'])
    cur_seg[0] = 1
    rwait_vm("G")
    for ch in range(2):
        R = CH[ch]
        gr, gi = GQ[2 * ch], GQ[2 * ch + 1]
        for i in range(4):
            hr, hi_ = R['H'] + 2 * i, R['H'] + 2 * i + 1
            cmul(hr, hi_, R['cr'], R['ci'], gr + i, gi + i, R['t'])
            if i:
                cfma(hr, hi_, R['L1'], R['L1'] + 1, hr - 2, hi_ - 2)
        r("v_mov_b32 v%d, v%d" % (R['X'], R['H'] + 6))
        r("v_mov_b32 v%d, v%d" % (R['X'] + 1, R['H'] + 7))
    def shifted(d, dst_key):
        r("v_subrev_u32 v14, %d, v%d" % (d, vL))
        r("v_and_b32 v14, 63, v14")
        r("v_lshlrev_b32 v14, 2, v14")
        for ch in range(2):
            R = CH[ch]
            for c in range(2):
                rds("ds_bpermute_b32 v%d, v14, v%d" % (R[dst_key] + c, R['X'] + c), "bp")
        r("v_cmp_le_u32 vcc, %d, v%d" % (d, vL))
        r("s_nop 1")
        rwait_ds("bp")
        for ch in range(2):
            R = CH[ch]
            for c in range(2):
                r("v_cndmask_b32 v%d, 0, v%d, vcc" % (R[dst_key] + c, R[dst_key] + c))
    for k in range(6):
        shifted(1 << k, 'Y')
        for ch in range(2):
            R = CH[ch]
            cfma(R['X'], R['X'] + 1, R['MU'] + 2 * k, R['MU'] + 2 * k + 1, R['Y'], R['Y'] + 1)
    shifted(1, 'CW')
    r("s_nop 1")
    for ch in range(2):
        for c in range(2):
            r("v_readlane_b32 s%d, v%d, 63" % (sP + 8 + 2 * ch + c, CH[ch]['X'] + c))
    r("s_lshl_b32 s%d, s%d, 11" % (sA_, sW_ID))
    r("s_add_u32 s%d, s%d, %d" % (sA_, sA_, SCR))
    r("v_mov_b32 v14, s%d" % sA_)
    for k in range(4):
        r("v_mov_b32 v%d, s%d" % (152 + k, sP + 8 + k))
    rds("ds_write_b128 v14, v[152:155]", "tw")
    cur_seg[0] = 2
    r("v_mov_b32 v14, 0x%x" % SCR)
    TQ = [152, 156, 244, 248, 16, 20, 64]
    for j in range(7):
        rds("ds_read_b128 %s, v14 offset:%d" % (vr(TQ[j], 4), 2048 * j), ("tot", j))
    for ch in range(2):
        r("v_mov_b32 v%d, 0" % CH[ch]['WC']); r("v_mov_b32 v%d, 0" % (CH[ch]['WC'] + 1))
    for j in range(7):
        rmulti("s_cmp_gt_u32 s%d, %d" % (sW_ID, j), "s_cselect_b64 %s, -1, 0" % sr(sMsk, 2))
        rwait_ds(("tot", j))
        for ch in range(2):
            R = CH[ch]
            r("v_mov_b32 v%d, v%d" % (R['Y'], TQ[j] + 2 * ch))
            r("v_mov_b32 v%d, v%d" % (R['Y'] + 1, TQ[j] + 2 * ch + 1))
            cfma(R['Y'], R['Y'] + 1, R['WC'], R['WC'] + 1, R['MU'] + 12, R['MU'] + 13)
            r("v_cndmask_b32 v%d, v%d, v%d, %s" % (R['WC'], R['WC'], R['Y'], sr(sMsk, 2)))
            r("v_cndmask_b32 v%d, v%d, v%d, %s" % (R['WC'] + 1, R['WC'] + 1, R['Y'] + 1, sr(sMsk, 2)))
    for ch in range(2):
        R = CH[ch]
        cfma(R['CW'], R['CW'] + 1, R['PL'], R['PL'] + 1, R['WC'], R['WC'] + 1)
        for i, key in enumerate(['L1', 'L2', 'L3', 'MU']):
            cfma(R['H'] + 2 * i, R['H'] + 2 * i + 1, R[key], R[key] + 1, R['CW'], R['CW'] + 1)
    for i in range(4):
        r("v_cvt_pk_bf16_f32 v%d, v%d, v%d" % (244 + 2 * i, CH[0]['H'] + 2 * i, CH[1]['H'] + 2 * i))
        r("v_cvt_pk_bf16_f32 v%d, -v%d, -v%d" % (245 + 2 * i, CH[0]['H'] + 2 * i + 1, CH[1]['H'] + 2 * i + 1))
    cur_seg[0] = 3
    r("s_lshl_b32 s%d, s%d, 11" % (sA_, sW_ID))
    r("s_add_u32 s%d, s%d, %d" % (sA_, sA_, SCR))
    r("v_lshlrev_b32 v14, 5, v%d" % vL)
    r("v_add_u32 v14, s%d, v14" % sA_)
    rds("ds_write_b128 v14, v[244:247]", "hw")
    rds("ds_write_b128 v14, v[248:251] offset:16", "hw")
    r("v_lshlrev_b32 v15, 3, v%d" % vL)
    r("v_add_u32 v15, s%d, v15" % sA_)
    rwait_ds("hw")
    for j in range(4):
        rds("ds_read_b64 %s, v15 offset:%d" % (vr(152 + 2 * j, 2), 512 * j), ("hr", j))
    r("v_lshlrev_b32 v14, 16, v%d" % vHI)
    r("v_lshl_add_u32 v14, v%d, 4, v14" % vR)
    r("s_lshr_b32 s%d, s2, 2" % sA_)
    r("s_lshl_b32 s%d, s%d, 10" % (sA_, sA_))
    r("s_lshr_b32 s%d, s2, 1" % sB_)
    r("s_and_b32 s%d, s%d, 1" % (sB_, sB_))
    r("s_lshl_b32 s%d, s%d, 9" % (sB_, sB_))
    r("s_add_u32 s%d, s%d, s%d" % (sA_, sA_, sB_))
    r("s_and_b32 s%d, s2, 1" % sB_)
    r("s_lshl_b32 s%d, s%d, 3" % (sB_, sB_))
    r("s_add_u32 s%d, s%d, s%d" % (sA_, sA_, sB_))
    r("s_lshl_b32 s%d, s%d, 19" % (sB_, sW_ID))
    r("s_add_u32 s%d, s%d, s%d" % (sA_, sA_, sB_))
    r("s_add_u32 s%d, s%d, 0x%x" % (sA_, sA_, HF))
    for j in range(4):
        r("s_add_u32 s%d, s%d, %d" % (sB_, sA_, j * 131072))
        rwait_ds(("hr", j))
        rvmem("buffer_store_dwordx2 %s, v14, %s, s%d offen sc1" % (vr(152 + 2 * j, 2), sr(SRD_WS, 4), sB_), "Hst")
    def weave(seg, n):
        for _ in range(n):
            if segs[seg]:
                segs[seg].pop(0)()
    weave(0, 100)
    q_dma(1)
    drain_all()
    weave(0, 10000)
    q_dma(2)
    FQ = POOL + 16
    def q_reads(ks, st):
        f = FQ + 20 * st
        kb.ds("ds_read_b128 %s, v%d" % (vr(f, 4), vPA + ks), ("x", st))
        for b_ in range(4):
            for jj in range(2):
                kb.ds("ds_read_b64_tr_b16 %s, v%d offset:%d" % (vr(f + 4 + 4 * b_ + 2 * jj, 2), vPW + b_, 4096 * ks + 1024 * jj), ("w", st, b_))
    def tile_pieces():
        def f():
            dma_tile()
        pending.append(f)
    kb.wait_vm(("q", 0))
    e("s_waitcnt lgkmcnt(0)")
    e("s_barrier")
    kb.lg = []
    q_reads(0, 0)
    win = {1: (0, 3), 2: (4, 5), 3: (6, 7)}
    for j in range(8):
        for ks in range(4):
            cur = ks & 1
            if ks < 3:
                q_reads(ks + 1, cur ^ 1)
            elif j < 7:
                drain_all()
                for sg, (lo, hi_) in win.items():
                    if hi_ == j:
                        weave(sg, 10000)
                kb.wait_ds_all()
                kb.wait_vm(("q", j + 1))
                e("s_barrier")
                if j + 3 <= 7:
                    q_dma(j + 3)
                elif j == 5:
                    e("s_cmp_eq_u32 s%d, 0" % sGRP)
                    e("s_cbranch_scc1 L_k2_nt0")
                    dma_tile()
                    kb.label("L_k2_nt0")
                elif j == 6:
                    e("s_cmp_eq_u32 s%d, 0" % sGRP)
                    e("s_cbranch_scc0 L_k2_nt17")
                    dma_tile()
                    kb.label("L_k2_nt17")
                d = QB[(j + 1) % 3] - QB[j % 3]
                for r in list(range(vPA, vPA + 4)) + list(range(vPW, vPW + 4)):
                    if d > 0:
                        e("v_add_u32 v%d, 0x%x, v%d" % (r, d, r))
                    else:
                        e("v_subrev_u32 v%d, 0x%x, v%d" % (r, -d, r))
                q_reads(0, 0)
            f = FQ + 20 * cur
            for b_ in range(4):
                kb.wait_ds(("x", cur)); kb.wait_ds(("w", cur, b_))
                acc = vr(O + 16 * b_, 16)
                e("v_mfma_f32_32x32x16_bf16 %s, %s, %s, %s" % (acc, vr(f + 4 + 4 * b_, 4), vr(f, 4), "0" if (j == 0 and ks == 0) else acc))
                drain()
                jj_ = j + 1 if (ks == 3 and j < 7) else j
                for sg, (lo, hi_) in win.items():
                    if lo <= jj_ <= hi_ and segs[sg]:
                        done_slots = (16 * j + 4 * ks + b_ + 1) - (16 * lo - 4 if lo else 0)
                        tot_slots = (16 * hi_ + 12 if hi_ < 7 else 128) - (16 * lo - 4 if lo else 0)
                        left = max(tot_slots - done_slots + 1, 1)
                        weave(sg, -(-len(segs[sg]) // left))
    weave(3, 10000)
    assert not any(segs.values())
    e("s_waitcnt vmcnt(4)")
    e("s_barrier")
    dma_tile()
    e("s_mov_b32 s%d, 0x%x" % (sT3, f32bits(QSCALE)))
    kb.nop(4)
    for k in range(64):
        e("v_mul_f32 v%d, s%d, v%d" % (O + k, sT3, O + k))
    for k in range(32):
        e("v_cvt_pk_bf16_f32 v%d, v%d, v%d" % (Q + k, O + 2 * k, O + 2 * k + 1))
    e("s_cmp_eq_u32 s%d, 0" % sGRP)
    e("s_cbranch_scc1 L_k2_noqst")
    e("s_lshl_b32 s%d, s%d, 13" % (sT2, sWQ))
    e("s_add_u32 s%d, s%d, %d" % (sT2, sT2, QST))
    e("v_add_u32 v13, s%d, v%d" % (sT2, vL16))
    for k in range(8):
        e("ds_write_b128 v13, %s offset:%d" % (vr(Q + 4 * k, 4), 1024 * k))
    kb.label("L_k2_noqst")
    reset_state()
    kb.label("L_k2_prodone")
    kb.lg = []
    for f in range(16):
        kb.ds("ds_read_b128 %s, v%d offset:%d" % (vr(POOL + 4 * f, 4), vF, 1024 * f), ("K", f))
    ENTRY_LG = list(kb.lg)
    kb.stamp(1)

    rare_blocks = []
    def sync_block(kind):
        kb.wait_all()
        e("s_barrier")
        if kind in ("B", "A2"):
            e("s_xor_b32 s%d, s%d, 0x8000" % (sF, sF))
        elif kind == "A1":
            e("s_xor_b32 s%d, s%d, 0x8000" % (sF, sF))
        elif kind == "A1m":
            e("s_xor_b32 s%d, s%d, 0x8000" % (sF, sF))
            e("s_cmp_eq_u32 s%d, 1" % sCnt)
            e("s_cselect_b32 s%d, %d, s%d" % (sF, AREG, sF))
        e("v_add_u32 v%d, s%d, v%d" % (vF, sF, vL16))

    sDK, sDV = 62 + 1, 51
    def iter_body(kind, masked):
        sync_pre = kind == "B"
        dma = (kind in ("B", "A2")) and not masked
        assert kb.lg == ENTRY_LG, kb.lg
        if not masked: kb.stamp(2, cond=(sCnt, STC))
        for f in range(16):
            u, s = f >> 3, f & 7
            kb.wait_ds(("K", f))
            e("v_mfma_f32_32x32x16_bf16 %s, %s, %s, %s" % (vr(S + 16 * u, 16), vr(POOL + 4 * f, 4), vr(Q + 4 * s, 4), vr(CI, 16) if s == 0 else vr(S + 16 * u, 16)))
            s4, dt = f >> 2, f & 3
            kb.ds("ds_read_b128 %s, v%d offset:%d" % (vr(POOL + 4 * f, 4), vF, 16384 + 1024 * (dt * 4 + s4)), ("V", f))
        if not masked: kb.stamp(3, cond=(sCnt, STC))
        if sync_pre:
            sync_block(kind)
        if not masked: kb.stamp(4, cond=(sCnt, STC))
        e("s_setprio 3")
        lr = kb.newlabel("rare"); lx = kb.newlabel("exp")
        if masked:
            e("v_add_u32 v%d, s%d, v%d" % (vThr, sD, vRm))
            kb.nop(12)
            for b in range(8):
                for k in range(4):
                    idx = 4 * b + k; u, r = idx >> 4, idx & 15
                    c = 32 * u + (r & 3) + 8 * (r >> 2)
                    e("v_cmp_gt_i32 %s, %d, v%d" % (sr(sCm + 2 * k, 2), c, vThr))
                for k in range(4):
                    idx = 4 * b + k
                    e("v_cndmask_b32 v%d, v%d, v%d, %s" % (S + idx, S + idx, vNeg, sr(sCm + 2 * k, 2)))
        e("s_cmp_lg_u32 s%d, 0" % sFirst)
        e("s_cbranch_scc1 %s" % lr)
        kb.label(lx)
        rare_blocks.append((lr, lx))
        NT = 6
        pend_l = []
        for k in range(32):
            e("v_exp_f32 v%d, v%d" % (ET + k % NT, S + k))
            if k >= 2 and (k & 1) == 0:
                j = (k - 2) >> 1
                e("v_cvt_pk_bf16_f32 v%d, v%d, v%d" % (P + j, ET + (k - 2) % NT, ET + (k - 1) % NT))
                if (j & 3) == 3:
                    pend_l.append(j >> 2)
            elif pend_l and (k & 1) == 1 and k >= 3:
                pass
            if pend_l and (k & 1) == 1:
                h = pend_l[0]
                if k >= 8 * h + 11:
                    pend_l.pop(0)
                    e("v_mfma_f32_16x16x32_bf16 %s, %s, %s, %s" % (vr(LT, 4), vr(ONES, 4), vr(P + 4 * h, 4), "0" if h == 0 else vr(LT, 4)))
        e("s_nop 0")
        e("v_cvt_pk_bf16_f32 v%d, v%d, v%d" % (P + 15, ET + 30 % NT, ET + 31 % NT))
        e("s_nop 1")
        assert not pend_l, pend_l
        e("v_mfma_f32_16x16x32_bf16 %s, %s, %s, %s" % (vr(LT, 4), vr(ONES, 4), vr(P + 12, 4), vr(LT, 4)))
        kb.nop(8)
        e("v_max_f32 v%d, v%d, v%d" % (vT2, LT, LT + 1))
        e("v_cmp_nge_f32 vcc, s%d, v%d" % (sThr, vT2))
        e("s_cbranch_vccnz %s" % lr)
        e("v_add_f32 v%d, v%d, v%d" % (LA, LA, LT))
        e("v_add_f32 v%d, v%d, v%d" % (LA + 1, LA + 1, LT + 1))
        e("s_setprio %d" % (int(os.environ.get("BPRIO", "0")) if kind == "B" else int(os.environ.get("APRIO", "0"))))
        if not masked: kb.stamp(5, cond=(sCnt, STC))
        if not sync_pre:
            sync_block(kind)
        if not masked: kb.stamp(6, cond=(sCnt, STC))
        if dma:
            e("s_lshl_b32 s%d, s%d, 14" % (sT, sNext))
            e("s_add_u32 s%d, s%d, s%d" % (sDK, sT, sKb))
            e("s_add_u32 s%d, s%d, s%d" % (sDV, sT, sVb))
            e("s_mov_b32 m0, s%d" % sMK)
            e("s_add_u32 s%d, s%d, 1" % (sNext, sNext))
        for k in range(16):
            s4, dt = k >> 2, k & 3
            kb.wait_ds(("V", k))
            e("v_mfma_f32_32x32x16_bf16 %s, %s, %s, %s" % (vr(O + 16 * dt, 16), vr(POOL + 4 * k, 4), vr(P + 4 * s4, 4), vr(O + 16 * dt, 16)))
            kb.ds("ds_read_b128 %s, v%d offset:%d" % (vr(POOL + 4 * k, 4), vF, 1024 * k), ("K", k))
            if dma and (k & 1) == 0:
                n = k >> 1
                e("buffer_load_dwordx4 v%d, %s, s%d offen offset:%d lds" % (vDMA, sr(SRD_WS, 4), sDK if n < 4 else sDV, 1024 * (n & 3)))
                if n == 3:
                    e("s_mov_b32 m0, s%d" % sMV)
        if dma:
            e("s_xor_b32 s%d, s%d, 0x8000" % (sMK, sMK))
            e("s_xor_b32 s%d, s%d, 0x8000" % (sMV, sMV))
        if not masked: kb.stamp(7, cond=(sCnt, STC))
        assert kb.lg == ENTRY_LG, kb.lg

    def loop(setup, kind, masked, may_be_zero):
        setup()
        lab = kb.newlabel("loop"); done = kb.newlabel("loopdone")
        if may_be_zero:
            e("s_cmp_lt_i32 s%d, 1" % sCnt)
            e("s_cbranch_scc1 %s" % done)
        kb.label(lab)
        iter_body(kind, masked)
        if masked:
            e("s_sub_u32 s%d, s%d, 64" % (sD, sD))
        e("s_sub_u32 s%d, s%d, 1" % (sCnt, sCnt))
        e("s_cmp_lg_u32 s%d, 0" % sCnt)
        e("s_cbranch_scc1 %s" % lab)
        kb.label(done)

    def l_to_rows(dst):
        e("v_and_b32 v13, 15, v%d" % vL)
        e("v_lshlrev_b32 v13, 2, v13")
        e("ds_bpermute_b32 v14, v13, v%d" % LA)
        e("ds_bpermute_b32 v15, v13, v%d" % (LA + 1))
        e("v_and_b32 v13, 16, v%d" % vL)
        e("v_cmp_ne_u32 vcc, 0, v13")
        kb.wait_ds_all()
        e("s_nop 1")
        e("v_cndmask_b32 v%d, v14, v15, vcc" % dst)

    def ctx_base(high):
        if high:
            e("s_sub_u32 s%d, 15, s%d" % (sT, sI))
        else:
            e("s_mov_b32 s%d, s%d" % (sT, sI))
        e("s_lshl_b32 s%d, s%d, 2" % (sT, sT))
        e("s_add_u32 s%d, s%d, s%d" % (sT, sT, sWQ))
        e("s_lshl_b32 s%d, s%d, 5" % (sT, sT))
        e("s_add_u32 s%d, s%d, s%d" % (sT, sT, sH))
        e("s_lshl_b32 s%d, s%d, 13" % (sT, sT))
        e("s_add_u32 s%d, s%d, 0x%x" % (sCtx, sT, CF))
        e("s_add_u32 s%d, s%d, 4096" % (sCtx + 1, sCtx))

    e("s_cmp_eq_u32 s%d, 0" % sGRP)
    e("s_cbranch_scc0 L_k2_groupB")
    loop(lambda: e("s_lshl_b32 s%d, s%d, 1" % (sCnt, sI)), "A1", False, True)
    def m1():
        e("s_mov_b32 s%d, 2" % sCnt)
        e("s_lshl_b32 s%d, s%d, 5" % (sD, sWQ))
    loop(m1, "A1m", True, False)
    e("s_lshl_b32 s%d, s%d, 13" % (sT2, sWQ))
    e("s_add_u32 s%d, s%d, %d" % (sT2, sT2, QST))
    e("v_add_u32 v13, s%d, v%d" % (sT2, vL16))
    for k in range(8):
        kb.ds("ds_read_b128 %s, v13 offset:%d" % (vr(Q + 4 * k, 4), 1024 * k), ("Qh", k))
    ctx_base(False)
    l_to_rows(vT)
    e("v_rcp_f32 v%d, v%d" % (vT, vT))
    e("s_nop 0")
    for s in range(8):
        t = S + 8 * (s & 3)
        for k in range(8):
            e("v_mul_f32 v%d, v%d, v%d" % (t + k, O + 8 * s + k, vT))
        for k in range(4):
            e("v_cvt_pk_bf16_f32 v%d, v%d, v%d" % (t + k, t + 2 * k, t + 2 * k + 1))
        e("buffer_store_dwordx4 %s, v%d, %s, s%d offen offset:%d sc1" % (vr(t, 4), vL16, sr(SRD_WS, 4), sCtx + (s >> 2), 1024 * (s & 3)))
    reset_state()
    kb.lg = list(ENTRY_LG)
    def n2():
        e("s_lshl_b32 s%d, s%d, 1" % (sT, sI))
        e("s_sub_u32 s%d, 13, s%d" % (sCnt, sT))
    loop(n2, "A2", False, True)
    def m2():
        e("s_lshl_b32 s%d, s%d, 5" % (sD, sWQ))
        e("s_sub_u32 s%d, s%d, 64" % (sT, sD))
        e("s_cmp_eq_u32 s%d, 7" % sI)
        e("s_cselect_b32 s%d, 1, 2" % sCnt)
        e("s_cselect_b32 s%d, s%d, s%d" % (sD, sT, sD))
    loop(m2, "A2", True, False)
    e("s_branch L_k2_merge")
    kb.label("L_k2_groupB")
    kb.lg = list(ENTRY_LG)
    loop(lambda: e("s_mov_b32 s%d, 15" % sCnt), "B", False, False)
    def mB():
        e("s_sub_u32 s%d, 7, s%d" % (sT, sI))
        e("s_lshl_b32 s%d, s%d, 7" % (sT, sT))
        e("s_lshl_b32 s%d, s%d, 5" % (sD, sWQ))
        e("s_add_u32 s%d, s%d, s%d" % (sD, sD, sT))
        e("s_add_u32 s%d, s%d, 64" % (sD, sD))
        e("s_mov_b32 s%d, 2" % sCnt)
    loop(mB, "B", True, False)
    kb.label("L_k2_merge")
    kb.wait_ds_all()
    ctx_base(True)
    vLs = ET
    l_to_rows(vLs)
    e("v_cmp_lt_f32 vcc, 0, v%d" % vLs)
    e("v_mov_b32 v13, 0x%x" % f32bits(-1e30))
    MST = 8704
    e("s_mul_i32 s%d, s%d, %d" % (sT, sW_ID, MST))
    e("v_cndmask_b32 v%d, v13, v%d, vcc" % (vM, vM))
    e("v_add_u32 v14, s%d, v%d" % (sT, vL16))
    e("s_xor_b32 s%d, s%d, 4" % (sT2, sW_ID))
    e("s_mul_i32 s%d, s%d, %d" % (sT2, sT2, MST))
    e("v_add_u32 v15, s%d, v%d" % (sT2, vL16))
    e("v_lshlrev_b32 v%d, 2, v%d" % (vThr, vL))
    e("v_add_u32 v%d, s%d, v%d" % (vRm, sT, vThr))
    e("v_add_u32 v%d, s%d, v%d" % (vThr, sT2, vThr))
    e("ds_write_b32 v%d, v%d offset:8192" % (vRm, vM))
    e("ds_write_b32 v%d, v%d offset:8448" % (vRm, vLs))
    def merge_side(keep):
        give = 32 - keep
        for q in range(8):
            e("ds_write_b128 v14, %s offset:%d" % (vr(O + give + 4 * q, 4), 1024 * q))
        e("s_waitcnt lgkmcnt(0)")
        e("s_barrier")
        e("ds_read_b32 v%d, v%d offset:8192" % (S, vThr))
        e("ds_read_b32 v%d, v%d offset:8448" % (S + 1, vThr))
        for q in range(8):
            e("ds_read_b128 %s, v15 offset:%d" % (vr(POOL + 4 * q, 4), 1024 * q))
        e("s_waitcnt lgkmcnt(8)")
        e("v_max_f32 v%d, v%d, v%d" % (vT, vM, S))
        e("v_sub_f32 v%d, v%d, v%d" % (S + 2, vM, vT))
        e("v_sub_f32 v%d, v%d, v%d" % (S + 3, S, vT))
        e("v_exp_f32 v%d, v%d" % (S + 2, S + 2))
        e("v_exp_f32 v%d, v%d" % (S + 3, S + 3))
        e("s_nop 0")
        e("v_mul_f32 v%d, v%d, v%d" % (vT, vLs, S + 2))
        e("v_fma_f32 v%d, v%d, v%d, v%d" % (vT, S + 1, S + 3, vT))
        e("v_rcp_f32 v%d, v%d" % (vT, vT))
        e("s_nop 0")
        e("v_mul_f32 v%d, v%d, v%d" % (S + 2, S + 2, vT))
        e("v_mul_f32 v%d, v%d, v%d" % (S + 3, S + 3, vT))
        e("s_waitcnt lgkmcnt(0)")
        for s in range(4):
            t = S + 8 + 8 * (s & 1)
            for k in range(8):
                e("v_mul_f32 v%d, v%d, v%d" % (t + k, O + keep + 8 * s + k, S + 2))
                e("v_fma_f32 v%d, v%d, v%d, v%d" % (t + k, POOL + 8 * s + k, S + 3, t + k))
            for k in range(4):
                e("v_cvt_pk_bf16_f32 v%d, v%d, v%d" % (t + k, t + 2 * k, t + 2 * k + 1))
            e("buffer_store_dwordx4 %s, v%d, %s, s%d offen offset:%d sc1" % (vr(t, 4), vL16, sr(SRD_WS, 4), sCtx + (keep >> 5), 1024 * s))
    e("s_cmp_eq_u32 s%d, 0" % sGRP)
    e("s_cbranch_scc0 L_k2_mergeB")
    merge_side(0)
    e("s_branch L_k2_scan")
    kb.label("L_k2_mergeB")
    merge_side(32)
    kb.label("L_k2_scan")
    kb.stamp(8)

    kb.stamp(9)
    kb.dump_stamps([0, 1, 2, 4, 5, 6, 7, 9], sW_ID, int(os.environ.get('STWG', '100')))
    kb.wgtime_end(SRD_WS, 1)
    e("s_branch L_k2_end")

    for lr, lx in rare_blocks:
        kb.label(lr)
        kb.nop(12)
        e("v_max3_f32 v%d, v%d, v%d, v%d" % (vT, S, S + 1, S + 2))
        for k in range(3, 31, 2):
            e("v_max3_f32 v%d, v%d, v%d, v%d" % (vT, vT, S + k, S + k + 1))
        e("v_max_f32 v%d, v%d, v%d" % (vT, vT, S + 31))
        e("v_mov_b32 v%d, v%d" % (vT2, vT))
        e("s_nop 1")
        e("v_permlane32_swap_b32 v%d, v%d" % (vT, vT2))
        e("v_max_f32 v%d, v%d, v%d" % (vT, vT, vT2))
        e("v_max_f32 v%d, s%d, v%d" % (vT, sFloor, vT))
        e("v_mov_b32 v13, 0x%x" % f32bits(-1e30))
        e("v_cmp_lt_f32 vcc, v13, v%d" % vT)
        e("s_mov_b32 s%d, 0" % sFirst)
        e("s_mov_b32 s%d, 0" % sFloor)
        e("v_cndmask_b32 v%d, 0, v%d, vcc" % (vT, vT))
        e("v_max_f32 v13, 0, v%d" % vT)
        e("v_exp_f32 v13, -v13")
        e("v_add_f32 v%d, v%d, v%d" % (vM, vM, vT))
        e("v_mul_f32 v13, s%d, v13" % sKeep)
        e("s_mov_b32 s%d, 1.0" % sKeep)
        e("v_mov_b32 v14, v13")
        e("v_mov_b32 v15, v13")
        for k in range(16):
            e("v_sub_f32 v%d, 0, v%d" % (CI + k, vM))
        e("v_permlane16_swap_b32 v14, v15")
        e("v_mul_f32 v%d, v%d, v13" % (LA, LA))
        e("v_mul_f32 v%d, v%d, v15" % (LA + 1, LA + 1))
        for k in range(32):
            e("v_sub_f32 v%d, v%d, v%d" % (S + k, S + k, vT))
        for k in range(64):
            e("v_mul_f32 v%d, v%d, v13" % (O + k, O + k))
        e("s_branch %s" % lx)
    kb.label("L_k2_end")
    return kb.text()
```

```python
from asmlib import *
from layout import *
import os

def gen_k3():
    kb = KB("k3")
    e = kb.e
    sW_ID, sQT, sNT = 3, 4, 5
    SRD_WS, SRD_XB, SRD_DSK, SRD_OUT = 32, 44, 48, 52
    sT, sT2, sCx0, sCx1, sWo0, sWo1, sH0, sH1, sC0, sC1, sMb, sOut = range(56, 68)
    vL, vR, vHI, vL16, vO = range(1, 6)
    XD, RING, ACC, ACC2 = 16, 32, 128, 192
    D = 6

    e("s_cmp_ge_u32 s2, 256")
    e("s_cbranch_scc1 L_k3_end")
    kb.stamp(0)
    kb.wgtime_begin()
    e("s_load_dwordx2 s[10:11], s[0:1], %d" % KA['xb'])
    e("s_load_dwordx4 s[16:19], s[0:1], %d" % KA['dskip'])
    e("s_load_dwordx2 s[28:29], s[0:1], %d" % KA['ws'])
    e("v_and_b32 v%d, 63, v0" % vL)
    e("v_lshrrev_b32 v2, 6, v0")
    e("s_nop 0")
    e("v_readfirstlane_b32 s%d, v2" % sW_ID)
    e("v_and_b32 v%d, 31, v%d" % (vR, vL))
    e("v_lshrrev_b32 v%d, 5, v%d" % (vHI, vL))
    e("v_lshlrev_b32 v%d, 4, v%d" % (vL16, vL))
    e("s_and_b32 s%d, s2, 7" % sT)
    e("s_lshl_b32 s%d, s%d, 2" % (sT, sT))
    e("s_lshr_b32 s%d, s2, 3" % sT2)
    e("s_and_b32 s%d, s%d, 3" % (sT2, sT2))
    e("s_add_u32 s%d, s%d, s%d" % (sQT, sT, sT2))
    e("s_lshr_b32 s%d, s2, 5" % sNT)
    e("s_lshl_b32 s%d, s%d, 14" % (sMb, sW_ID))
    e("v_lshlrev_b32 v13, 4, v%d" % vHI)
    e("v_lshl_add_u32 v%d, v%d, 12, v13" % (vO, vR))
    e("s_lshl_b32 s%d, s%d, 19" % (sT, sQT))
    e("s_lshl_b32 s%d, s%d, 15" % (sT2, sW_ID))
    e("s_add_u32 s%d, s%d, s%d" % (sT, sT, sT2))
    e("s_add_u32 s%d, s%d, 0x%x" % (sCx0, sT, CF))
    e("s_add_u32 s%d, s%d, 0x40000" % (sCx1, sCx0))
    e("s_lshl_b32 s%d, s%d, 19" % (sT, sNT))
    e("s_add_u32 s%d, s%d, s%d" % (sT, sT, sT2))
    e("s_add_u32 s%d, s%d, 0x%x" % (sWo0, sT, WOF))
    e("s_add_u32 s%d, s%d, 0x40000" % (sWo1, sWo0))
    e("s_lshl_b32 s%d, s%d, 17" % (sT, sQT))
    e("s_lshl_b32 s%d, s%d, 13" % (sT2, sW_ID))
    e("s_add_u32 s%d, s%d, s%d" % (sT, sT, sT2))
    e("s_add_u32 s%d, s%d, 0x%x" % (sH0, sT, HF))
    e("s_add_u32 s%d, s%d, 0x10000" % (sH1, sH0))
    e("s_lshl_b32 s%d, s%d, 17" % (sT, sNT))
    e("s_add_u32 s%d, s%d, s%d" % (sT, sT, sT2))
    e("s_add_u32 s%d, s%d, 0x%x" % (sC0, sT, CFR))
    e("s_add_u32 s%d, s%d, 0x10000" % (sC1, sC0))
    e("s_waitcnt lgkmcnt(0)")
    kb.srd(SRD_WS, 28, WS_BYTES)
    kb.srd(SRD_XB, 10, 2048 * 1024)
    kb.srd(SRD_DSK, 16, 1024)
    kb.srd(SRD_OUT, 18, 2048 * 4096)

    NS = 40
    def load(j):
        ssm = j < 8
        jj = j if ssm else j - 8
        bases = (sH0, sH1, sC0, sC1) if ssm else (sCx0, sCx1, sWo0, sWo1)
        for q in range(4):
            off = jj * 1024
            if off < 4096:
                kb.vmem("buffer_load_dwordx4 %s, v%d, %s, s%d offen offset:%d" % (vr(RING + 16 * (j % D) + 4 * q, 4), vL16, sr(SRD_WS, 4), bases[q], off), ("L", j))
            else:
                e("s_add_u32 s%d, s%d, %d" % (sT, bases[q], off & ~4095))
                kb.vmem("buffer_load_dwordx4 %s, v%d, %s, s%d offen offset:%d" % (vr(RING + 16 * (j % D) + 4 * q, 4), vL16, sr(SRD_WS, 4), sT, off & 4095), ("L", j))
    for j in range(D):
        load(j)
    e("s_lshl_b32 s%d, s%d, 6" % (sT, sQT))
    e("s_lshr_b32 s%d, s%d, 2" % (sT2, sW_ID))
    e("s_lshl_b32 s%d, s%d, 5" % (sT2, sT2))
    e("s_add_u32 s%d, s%d, s%d" % (sT, sT, sT2))
    e("s_and_b32 s%d, s%d, 3" % (sT2, sW_ID))
    e("s_lshl_b32 s%d, s%d, 4" % (sT2, sT2))
    e("s_lshl_b32 s%d, s%d, 6" % (sOut, sNT))
    e("s_add_u32 s%d, s%d, s%d" % (sT2, sT2, sOut))
    e("s_lshl_b32 s%d, s%d, 12" % (sOut, sT))
    e("s_lshl_b32 s68, s%d, 2" % sT2)
    e("s_add_u32 s%d, s%d, s68" % (sOut, sOut))
    e("s_lshl_b32 s%d, s%d, 10" % (sT, sT))
    e("s_lshl_b32 s%d, s%d, 1" % (sT2, sT2))
    e("s_add_u32 s%d, s%d, s%d" % (sT, sT, sT2))
    e("v_lshlrev_b32 v13, 3, v%d" % vHI)
    e("v_lshl_add_u32 v14, v%d, 10, v13" % vR)
    for ee in range(2):
        kb.vmem("buffer_load_dwordx2 %s, v14, %s, s%d offen offset:%d" % (vr(XD + 2 * ee, 2), sr(SRD_XB, 4), sT, 16 * ee), "xd")
        kb.vmem("buffer_load_dwordx2 %s, v13, %s, s%d offen offset:%d" % (vr(XD + 4 + 2 * ee, 2), sr(SRD_DSK, 4), sT2, 16 * ee), "xd")
    e("v_add_u32 v13, s%d, v%d" % (sMb, vL16))
    e("s_lshl_b32 s%d, s%d, 11" % (sT, sW_ID))
    e("v_add_u32 v14, s%d, v%d" % (sT, vL16))
    e("v_add_u32 v15, 0x10000, v14")
    kb.stamp(1)

    def write_partials(acc):
        for q in range(16):
            e("ds_write_b128 v13, %s offset:%d" % (vr(acc + 4 * q, 4), 1024 * q))
    def reduce_finish(T, ssm):
        for p in range(8):
            for ee in range(2):
                e("ds_read_b128 %s, v%d offset:%d" % (vr(T + 8 * p + 4 * ee, 4), 14 if p < 4 else 15, (p & 3) * 16384 + 1024 * ee))
        for p in range(1, 8):
            e("s_waitcnt lgkmcnt(%d)" % (14 - 2 * p))
            for k in range(8):
                e("v_add_f32 v%d, v%d, v%d" % (T + k, T + k, T + 8 * p + k))
        if not ssm:
            for k in range(4):
                e("v_cvt_pk_bf16_f32 v%d, v%d, v%d" % (T + 8 + k, T + 2 * k, T + 2 * k + 1))
            for k in range(4):
                e("v_lshlrev_b32 v%d, 16, v%d" % (T + 2 * k, T + 8 + k))
                e("v_and_b32 v%d, 0xffff0000, v%d" % (T + 2 * k + 1, T + 8 + k))
        else:
            kb.wait_vm("xd")
            for ee in range(2):
                for k in range(2):
                    xx, dd = XD + 2 * ee + k, XD + 4 + 2 * ee + k
                    t = T + 8
                    e("v_lshlrev_b32 v%d, 16, v%d" % (t, xx))
                    e("v_and_b32 v%d, 0xffff0000, v%d" % (t + 1, xx))
                    e("v_lshlrev_b32 v%d, 16, v%d" % (t + 2, dd))
                    e("v_and_b32 v%d, 0xffff0000, v%d" % (t + 3, dd))
                    e("v_mul_f32 v%d, v%d, v%d" % (t, t, t + 2))
                    e("v_mul_f32 v%d, v%d, v%d" % (t + 1, t + 1, t + 3))
                    e("v_cvt_pk_bf16_f32 v%d, v%d, v%d" % (t, t, t + 1))
                    e("v_and_b32 v%d, 0xffff0000, v%d" % (t + 1, t))
                    e("v_lshlrev_b32 v%d, 16, v%d" % (t, t))
                    o = T + 4 * ee + 2 * k
                    e("v_fma_f32 v%d, 2.0, v%d, v%d" % (o, o, t))
                    e("v_fma_f32 v%d, 2.0, v%d, v%d" % (o + 1, o + 1, t + 1))
        for ee in range(2):
            kb.vmem("buffer_store_dwordx4 %s, v%d, %s, s%d offen offset:%d" % (vr(T + 4 * ee, 4), vO, sr(SRD_OUT, 4), sOut, 32 * ee + (2048 if ssm else 0)), "ost")

    for j in range(NS):
        kb.wait_vm(("L", j))
        acc0 = ACC2 if j < 8 else ACC
        first = j in (0, 8)
        sl = RING + 16 * (j % D)
        for qb in range(2):
            for nb in range(2):
                acc = vr(acc0 + 16 * (2 * qb + nb), 16)
                e("v_mfma_f32_32x32x16_bf16 %s, %s, %s, %s" % (acc, vr(sl + 8 + 4 * nb, 4), vr(sl + 4 * qb, 4), "0" if first else acc))
        if j + D < NS:
            load(j + D)
        if j == 11:
            write_partials(ACC2)
            e("s_waitcnt lgkmcnt(0)")
        if j == 17:
            e("s_barrier")
            reduce_finish(ACC2, True)
            kb.stamp(2)
        if j == 27:
            e("s_barrier")
    kb.stamp(5)
    kb.nop(16)
    write_partials(ACC)
    e("s_waitcnt lgkmcnt(0)")
    e("s_barrier")
    kb.stamp(6)
    reduce_finish(ACC2, False)
    kb.stamp(7)
    kb.dump_stamps([0, 1, 2, 5, 6, 7, 7, 7], sW_ID, 100)
    kb.wgtime_end(SRD_WS, 2)
    kb.label("L_k3_end")
    return kb.text()
```

```python
from asmlib import *
from layout import *
import os

def gen_k1():
    kb = KB("k1")
    e = kb.e
    sW_ID, sM, sH = 3, 4, 5
    SRD_CKV, SRD_X, SRD_W1, SRD_WQ, SRD_XB, SRD_BM, SRD_WS = 32, 36, 40, 44, 48, 52, 56
    sA, sW, sMA, sMW, sCnt, sT, sT2 = 60, 61, 62, 63, 64, 65, 66
    sA2, sW2 = 67, 68
    sGX, sGB = 69, 70
    sGT_, sGC = 71, 72
    sEp = 73
    vL, vR, vHI, vI16, vG4 = 1, 2, 3, 4, 5
    vOffA = 8
    vOffW = 12
    vGB = 13
    vL16 = 14
    vGst = 15
    vA = 16
    vW = 20
    vPA = 24
    vA2 = 28
    vW2 = 22
    TMP = 32
    FA = 64
    FW = 96
    vGacc = 112
    ACC = 128

    e("s_cmp_ge_u32 s2, 256")
    e("s_cbranch_scc1 L_k1_end")
    kb.stamp(0)
    kb.wgtime_begin()
    e("s_load_dwordx16 s[8:23], s[0:1], 0")
    e("s_load_dwordx4 s[24:27], s[0:1], %d" % KA['bre'])
    e("s_load_dwordx2 s[28:29], s[0:1], %d" % KA['ws'])
    e("s_load_dwordx4 s[76:79], s[0:1], %d" % KA['cre'])
    e("v_and_b32 v%d, 63, v0" % vL)
    e("v_lshrrev_b32 v2, 6, v0")
    e("s_nop 0")
    e("v_readfirstlane_b32 s%d, v2" % sW_ID)
    e("v_and_b32 v%d, 31, v%d" % (vR, vL))
    e("v_lshrrev_b32 v%d, 5, v%d" % (vHI, vL))
    e("v_and_b32 v%d, 15, v%d" % (vI16, vL))
    e("v_lshrrev_b32 v%d, 4, v%d" % (vG4, vL))
    e("v_lshlrev_b32 v%d, 4, v%d" % (vL16, vL))
    e("s_and_b32 s%d, s2, 7" % sT)
    e("s_lshl_b32 s%d, s%d, 2" % (sT, sT))
    e("s_lshr_b32 s%d, s2, 3" % sT2)
    e("s_and_b32 s%d, s%d, 3" % (sT2, sT2))
    e("s_add_u32 s%d, s%d, s%d" % (sH, sT, sT2))
    e("s_lshr_b32 s%d, s2, 5" % sM)
    e("s_and_b32 s%d, s2, 15" % sGT_)
    e("s_lshr_b32 s%d, s2, 4" % sGC)
    e("v_lshrrev_b32 v32, 3, v%d" % vL)
    e("v_lshlrev_b32 v32, 10, v32")
    e("v_and_b32 v33, 7, v%d" % vL)
    e("v_xor_b32 v34, v33, v%d" % vG4)
    e("v_xor_b32 v35, 4, v34")
    e("v_lshl_add_u32 v%d, v34, 4, v32" % (vOffA + 0))
    e("v_lshl_add_u32 v%d, v35, 4, v32" % (vOffA + 1))
    e("v_add_u32 v%d, %d, v%d" % (vOffA + 2, 2 * 7168, vOffA + 0))
    e("v_add_u32 v%d, %d, v%d" % (vOffA + 3, 3 * 7168, vOffA + 1))
    e("s_and_b32 s%d, s%d, 1" % (sT, sW_ID))
    e("s_cmp_eq_u32 s%d, 1" % sT)
    e("s_cselect_b64 vcc, -1, 0")
    e("v_cndmask_b32 v%d, v%d, v%d, vcc" % (vGB, vOffA + 0, vOffA + 1))
    e("v_add_u32 v%d, %d, v%d" % (vOffA + 1, 7168, vOffA + 1))
    e("v_lshrrev_b32 v32, 2, v%d" % vL)
    e("v_and_b32 v32, 3, v32")
    e("v_xor_b32 v32, v32, v%d" % vG4)
    e("v_lshlrev_b32 v32, 6, v32")
    e("v_lshl_add_u32 v32, v%d, 13, v32" % vG4)
    e("v_and_b32 v33, 3, v%d" % vL)
    e("v_lshl_add_u32 v%d, v33, 4, v32" % vOffW)
    e("v_lshrrev_b32 v32, 1, v%d" % vR)
    e("v_and_b32 v32, 7, v32")
    for ks in range(4):
        e("v_add_u32 v33, %d, v%d" % (2 * ks, vHI))
        e("v_xor_b32 v33, v33, v32")
        e("v_lshlrev_b32 v33, 4, v33")
        e("v_lshl_add_u32 v%d, v%d, 7, v33" % (vPA + ks, vR))
    e("v_lshrrev_b32 v34, 2, v%d" % vI16)
    e("v_lshl_add_u32 v35, v%d, 3, v34" % vHI)
    e("v_lshlrev_b32 v35, 8, v35")
    e("v_and_b32 v36, 1, v%d" % vG4)
    e("v_lshl_add_u32 v35, v36, 5, v35")
    e("v_and_b32 v36, 3, v%d" % vI16)
    e("v_lshl_add_u32 v35, v36, 3, v35")
    e("s_lshr_b32 s%d, s%d, 1" % (sT, sW_ID))
    e("s_and_b32 s%d, s%d, 1" % (sT, sT))
    e("s_lshl_b32 s%d, s%d, 1" % (sT, sT))
    e("s_lshr_b32 s%d, s%d, 2" % (sT2, sW_ID))
    e("s_lshl_b32 s%d, s%d, 14" % (sT2, sT2))
    e("s_add_u32 s%d, s%d, 32768" % (sT2, sT2))
    for nb in range(2):
        e("v_add_u32 v36, %d, v34" % 0)
        e("v_xor_b32 v36, s%d, v36" % sT)
        if nb:
            e("v_xor_b32 v36, 1, v36")
        e("v_lshl_add_u32 v36, v36, 6, v35")
        e("v_add_u32 v%d, s%d, v36" % (vW + nb, sT2))
    e("s_lshr_b32 s%d, s%d, 2" % (sT, sW_ID))
    e("s_lshl_b32 s%d, s%d, 1" % (sT, sT))
    for nb in range(2):
        e("v_xor_b32 v36, s%d, v34" % sT)
        if nb:
            e("v_xor_b32 v36, 1, v36")
        e("v_lshl_add_u32 v36, v36, 6, v35")
        e("v_add_u32 v%d, 0x8000, v36" % (vW2 + nb))
    e("s_and_b32 s%d, s%d, 1" % (sT, sW_ID))
    e("s_lshl_b32 s%d, s%d, 14" % (sT, sT))
    e("s_and_b32 s%d, s%d, 3" % (sT2, sW_ID))
    e("s_lshl_b32 s%d, s%d, 13" % (sT2, sT2))
    for ks in range(4):
        e("v_add_u32 v%d, s%d, v%d" % (vA + ks, sT, vPA + ks))
        e("v_add_u32 v%d, s%d, v%d" % (vA2 + ks, sT2, vPA + ks))
    e("v_lshlrev_b32 v36, 4, v%d" % vHI)
    e("v_lshl_add_u32 v%d, v%d, 13, v36" % (vGst, vR))
    for i in range(128):
        e("v_mov_b32 v%d, 0" % (ACC + i))
    for i in range(16):
        e("v_mov_b32 v%d, 0" % (vGacc + i))
    e("s_waitcnt lgkmcnt(0)")
    kb.srd(SRD_X, 8, 2048 * 1024)
    kb.srd(SRD_CKV, 10, 2048 * 1024)
    kb.srd(SRD_WQ, 12, 512 * 8192)
    e("s_cmp_lt_u32 s%d, 4" % sW_ID)
    e("s_cselect_b32 s%d, s14, s16" % SRD_W1)
    e("s_cselect_b32 s%d, s15, s17" % (SRD_W1 + 1))
    e("s_mov_b32 s%d, 0x%x" % (SRD_W1 + 2, 512 * 8192))
    e("s_mov_b32 s%d, 0x00020000" % (SRD_W1 + 3))
    kb.srd(SRD_XB, 20, 2048 * 1024)
    e("s_and_b32 s%d, s%d, 1" % (sT, sGC))
    e("s_cmp_eq_u32 s%d, 0" % sT)
    e("s_cselect_b32 s%d, s24, s26" % SRD_BM)
    e("s_cselect_b32 s%d, s25, s27" % (SRD_BM + 1))
    e("s_mov_b32 s%d, 0x%x" % (SRD_BM + 2, 512 * 1024))
    e("s_mov_b32 s%d, 0x00020000" % (SRD_BM + 3))
    kb.srd(SRD_WS, 28, WS_BYTES)
    e("s_cmp_lt_u32 s%d, 4" % sW_ID)
    e("s_cbranch_scc1 L_k1_nocf")
    e("s_lshl_b32 s%d, s2, 2" % sT)
    e("s_add_u32 s%d, s%d, s%d" % (sT, sT, sW_ID))
    e("s_sub_u32 s%d, s%d, 4" % (sT, sT))
    e("s_lshl_b32 s75, s%d, 10" % sT)
    e("s_add_u32 s75, s75, 0x%x" % CFR)
    e("s_and_b32 s%d, s%d, 63" % (sT2, sT))
    e("s_lshl_b32 s%d, s%d, 4" % (sT2, sT2))
    e("s_lshr_b32 s%d, s%d, 6" % (sT, sT))
    e("s_lshl_b32 s%d, s%d, 15" % (sT, sT))
    e("s_add_u32 s%d, s%d, s%d" % (sT, sT, sT2))
    e("v_lshlrev_b32 v6, 3, v%d" % vHI)
    e("v_lshl_add_u32 v6, v%d, 10, v6" % vR)
    e("s_mov_b32 s28, s76"); e("s_mov_b32 s29, s77"); e("s_mov_b32 s30, 0x80000"); e("s_mov_b32 s31, 0x00020000")
    e("buffer_load_dwordx2 v[96:97], v6, s[28:31], s%d offen" % sT)
    e("s_mov_b32 s28, s78"); e("s_mov_b32 s29, s79")
    e("s_nop 0")
    e("buffer_load_dwordx2 v[98:99], v6, s[28:31], s%d offen" % sT)
    kb.label("L_k1_nocf")
    e("s_lshl_b32 s%d, s%d, 18" % (sA, sM))
    e("s_lshl_b32 s%d, s%d, 15" % (sT, sW_ID))
    e("s_add_u32 s%d, s%d, s%d" % (sA, sA, sT))
    e("s_mov_b32 s%d, s%d" % (sA2, sA))
    e("s_and_b32 s%d, s%d, 3" % (sT, sW_ID))
    e("s_lshl_b32 s%d, s%d, 17" % (sT, sT))
    e("s_lshl_b32 s%d, s%d, 8" % (sT2, sH))
    e("s_add_u32 s%d, s%d, s%d" % (sW, sT, sT2))
    e("s_lshl_b32 s%d, s%d, 16" % (sT, sW_ID))
    e("s_add_u32 s%d, s%d, s%d" % (sW2, sT, sT2))
    e("s_lshl_b32 s%d, s%d, 17" % (sGX, sGT_))
    e("s_lshl_b32 s%d, s%d, 14" % (sT, sW_ID))
    e("s_add_u32 s%d, s%d, s%d" % (sGX, sGX, sT))
    e("s_lshr_b32 s%d, s%d, 1" % (sT, sGC))
    e("s_lshl_b32 s%d, s%d, 16" % (sGB, sT))
    e("s_lshl_b32 s%d, s%d, 13" % (sT, sW_ID))
    e("s_add_u32 s%d, s%d, s%d" % (sGB, sGB, sT))
    e("s_lshl_b32 s%d, s%d, 12" % (sMA, sW_ID))
    e("s_add_u32 s%d, s%d, 32768" % (sMW, sMA))

    pending = []
    sDT = 74
    def drain(n=1):
        for _ in range(n):
            if pending:
                pending.pop(0)()
    def drain_all():
        while pending:
            pending.pop(0)()
    def pieces_p1(tag):
        out = []
        for n in range(4):
            def f(n=n):
                if n == 0:
                    e("s_mov_b32 m0, s%d" % sMA)
                    e("s_nop 0")
                kb.vmem("buffer_load_dwordx4 v%d, %s, s%d offen offset:%d lds" % (vOffA + n, sr(SRD_CKV, 4), sA, 1024 * n), tag)
            out.append(f)
        for n in range(4):
            def f(n=n):
                if n == 0:
                    e("s_mov_b32 m0, s%d" % sMW)
                e("s_add_u32 s%d, s%d, %d" % (sDT, sW, n * 31744))
                kb.vmem("buffer_load_dwordx4 v%d, %s, s%d offen offset:%d lds" % (vOffW, sr(SRD_W1, 4), sDT, 1024 * n), tag)
                if n == 3:
                    e("s_add_u32 s%d, s%d, 128" % (sA, sA))
                    e("s_add_u32 s%d, s%d, %d" % (sW, sW, 64 * 8192))
                    e("s_xor_b32 s%d, s%d, 0x10000" % (sMA, sMA))
                    e("s_xor_b32 s%d, s%d, 0x10000" % (sMW, sMW))
            out.append(f)
        return out
    PB = [0, 65536, 114688]
    def pieces_p2(tag, buf):
        out = []
        for n in range(4):
            def f(n=n):
                if n == 0:
                    e("s_lshl_b32 s%d, s%d, 12" % (sDT, sW_ID))
                    e("s_add_u32 s%d, s%d, %d" % (sDT, sDT, buf))
                    e("s_mov_b32 m0, s%d" % sDT)
                    e("s_nop 0")
                kb.vmem("buffer_load_dwordx4 v%d, %s, s%d offen offset:%d lds" % (vOffA + n, sr(SRD_X, 4), sA2, 1024 * n), tag)
            out.append(f)
        for n in range(2):
            def f(n=n):
                if n == 0:
                    e("s_lshl_b32 s%d, s%d, 11" % (sDT, sW_ID))
                    e("s_add_u32 s%d, s%d, %d" % (sDT, sDT, buf + 32768))
                    e("s_mov_b32 m0, s%d" % sDT)
                e("s_add_u32 s%d, s%d, %d" % (sDT, sW2, n * 31744))
                kb.vmem("buffer_load_dwordx4 v%d, %s, s%d offen offset:%d lds" % (vOffW, sr(SRD_WQ, 4), sDT, 1024 * n), tag)
                if n == 1:
                    e("s_add_u32 s%d, s%d, 128" % (sA2, sA2))
                    e("s_add_u32 s%d, s%d, %d" % (sW2, sW2, 64 * 8192))
            out.append(f)
        return out
    def dma_p1(tag, now=False):
        pending.extend(pieces_p1(tag))
        if now: drain_all()
    def dma_p2(j, now=False):
        pending.extend(pieces_p2(("p2", j), PB[j % 3]))
        if now: drain_all()
    def dma_g(didx, dbase, tag, now=False):
        for q in range(2):
            koff = (2 * didx + q) * 128
            for n in range(2):
                def f(n=n, q=q, koff=koff):
                    if n == 0:
                        e("s_lshl_b32 s%d, s%d, 11" % (sDT, sW_ID))
                        e("s_add_u32 s%d, s%d, %d" % (sDT, sDT, dbase + q * 24576))
                        e("s_mov_b32 m0, s%d" % sDT)
                    e("s_add_u32 s%d, s%d, %d" % (sDT, sGX, koff))
                    kb.vmem("buffer_load_dwordx4 v%d, %s, s%d offen offset:%d lds" % (vOffA + n, sr(SRD_XB, 4), sDT, 1024 * n), tag)
                pending.append(f)
            def f2(q=q, koff=koff):
                e("s_lshl_b32 s%d, s%d, 10" % (sDT, sW_ID))
                e("s_add_u32 s%d, s%d, %d" % (sDT, sDT, dbase + q * 24576 + 16384))
                e("s_mov_b32 m0, s%d" % sDT)
                e("s_add_u32 s%d, s%d, %d" % (sDT, sGB, koff))
                kb.vmem("buffer_load_dwordx4 v%d, %s, s%d offen lds" % (vGB, sr(SRD_BM, 4), sDT), tag)
            pending.append(f2)
        if now: drain_all()

    def g_half(d0, d1):
        areas = [FA, TMP]
        subs = [(d0, 0), (d0, 1), (d1, 0), (d1, 1)]
        e("s_and_b32 s%d, s%d, 3" % (sT, sW_ID))
        e("s_lshl_b32 s%d, s%d, 12" % (sT, sT))
        e("s_lshr_b32 s%d, s%d, 2" % (sT2, sW_ID))
        e("s_lshl_b32 s%d, s%d, 12" % (sT2, sT2))
        e("s_add_u32 s%d, s%d, 16384" % (sT2, sT2))
        def reads(si):
            d, q = subs[si]
            ar = areas[si & 1]
            for ks in range(4):
                e("v_add_u32 v6, s%d, v%d" % (sT, vPA + ks))
                e("v_add_u32 v7, s%d, v%d" % (sT2, vPA + ks))
                e("v_add_u32 v6, 0x%x, v6" % d)
                e("v_add_u32 v7, 0x%x, v7" % d)
                kb.ds("ds_read_b128 %s, v6 offset:%d" % (vr(ar + 8 * ks, 4), q * 24576), ("g", si, ks))
                kb.ds("ds_read_b128 %s, v7 offset:%d" % (vr(ar + 8 * ks + 4, 4), q * 24576), ("g", si, ks))
        def mf(si):
            ar = areas[si & 1]
            for ks in range(4):
                kb.wait_ds(("g", si, ks))
                e("v_mfma_f32_32x32x16_bf16 %s, %s, %s, %s" % (vr(vGacc, 16), vr(ar + 8 * ks, 4), vr(ar + 8 * ks + 4, 4), vr(vGacc, 16)))
        reads(0); reads(1); mf(0); reads(2); mf(1); reads(3); mf(2); mf(3)

    GS = 131072
    def dma_gsub(sub, tag, now=False, GS=GS):
        koff = sub * 128
        for n in range(2):
            def f(n=n):
                if n == 0:
                    e("s_lshl_b32 s%d, s%d, 11" % (sDT, sW_ID))
                    e("s_add_u32 s%d, s%d, %d" % (sDT, sDT, GS))
                    e("s_mov_b32 m0, s%d" % sDT)
                e("s_add_u32 s%d, s%d, %d" % (sDT, sGX, koff))
                kb.vmem("buffer_load_dwordx4 v%d, %s, s%d offen offset:%d lds" % (vOffA + n, sr(SRD_XB, 4), sDT, 1024 * n), tag)
            pending.append(f)
        def f2():
            e("s_lshl_b32 s%d, s%d, 10" % (sDT, sW_ID))
            e("s_add_u32 s%d, s%d, %d" % (sDT, sDT, GS + 16384))
            e("s_mov_b32 m0, s%d" % sDT)
            e("s_add_u32 s%d, s%d, %d" % (sDT, sGB, koff))
            kb.vmem("buffer_load_dwordx4 v%d, %s, s%d offen lds" % (vGB, sr(SRD_BM, 4), sDT), tag)
        pending.append(f2)
        if now: drain_all()
    def g_sub_compute(base, area):
        for ks in range(4):
            def f(ks=ks):
                e("v_add_u32 v6, s6, v%d" % (vPA + ks))
                e("v_add_u32 v7, s7, v%d" % (vPA + ks))
                if base >= 32768:
                    e("v_add_u32 v6, 0x%x, v6" % base)
                    e("v_add_u32 v7, 0x%x, v7" % base)
                off = base if base < 32768 else 0
                kb.ds("ds_read_b128 %s, v6 offset:%d" % (vr(area + 8 * ks, 4), off), ("gs", area, ks))
                kb.ds("ds_read_b128 %s, v7 offset:%d" % (vr(area + 8 * ks + 4, 4), off), ("gs", area, ks))
            pending.append(f)
        for ks in range(4):
            def f(ks=ks):
                kb.wait_ds(("gs", area, ks))
                e("v_mfma_f32_32x32x16_bf16 %s, %s, %s, %s" % (vr(vGacc, 16), vr(area + 8 * ks, 4), vr(area + 8 * ks + 4, 4), vr(vGacc, 16)))
            pending.append(f)

    class Cfg: pass
    def mkcfg(nA, va, vw, ktype):
        c = Cfg(); c.nA = nA; c.va = va; c.vw = vw; c.ktype = ktype; return c
    def frag_reads(cfg, ks, st):
        fa = FA + 16 * st; fw = FW + 8 * st
        kb.ds("ds_read_b128 %s, v%d" % (vr(fa, 4), cfg.va + ks), ("A", st, 0))
        for nb in range(2):
            for j in range(2):
                kb.ds("ds_read_b64_tr_b16 %s, v%d offset:%d" % (vr(fw + 4 * nb + 2 * j, 2), cfg.vw + nb, 4096 * ks + 1024 * j), ("W", st, nb))
        for rb in range(1, cfg.nA):
            kb.ds("ds_read_b128 %s, v%d offset:%d" % (vr(fa + 4 * rb, 4), cfg.va + ks, 4096 * rb), ("A", st, rb))
    def toggle(cfg):
        for ks in range(4):
            e("v_xor_b32 v%d, 0x10000, v%d" % (cfg.va + ks, cfg.va + ks))
        for nb in range(2):
            e("v_xor_b32 v%d, 0x10000, v%d" % (cfg.vw + nb, cfg.vw + nb))
    def mfmas(cfg, st, zero=False):
        fa = FA + 16 * st; fw = FW + 8 * st
        for rb in range(cfg.nA):
            for nb in range(2):
                kb.wait_ds(("A", st, rb)); kb.wait_ds(("W", st, nb))
                acc = vr(ACC + 16 * (2 * rb + nb), 16)
                a, b = vr(fa + 4 * rb, 4), vr(fw + 4 * nb, 4)
                if cfg.ktype:
                    a, b = b, a
                e("v_mfma_f32_32x32x16_bf16 %s, %s, %s, %s" % (acc, a, b, "0" if zero else acc))
                if cfg.nA == 2 or nb == 1 or os.environ.get("P1FAST"):
                    drain()
    def stage(cfg, need_tag, sync_action, next_reads, zero=False, allow_pending=False):
        for ks in range(4):
            cur = ks & 1
            if ks < 3:
                frag_reads(cfg, ks + 1, cur ^ 1)
            else:
                assert not pending or allow_pending, pending
                kb.wait_ds_all()
                if need_tag is None:
                    kb.wait_vm_all()
                else:
                    kb.wait_vm(need_tag)
                e("s_barrier")
                sync_action()
                next_reads()
            mfmas(cfg, cur, zero and ks == 0)

    hook = [None]
    def pack_store(acc, soff_sgpr, off0, tset, scale=None):
        for half in range(2):
            t = TMP + 4 * ((2 * tset + half) % 8)
            if scale is not None:
                for k in range(8):
                    e("v_mul_f32 v%d, s%d, v%d" % (acc + 8 * half + k, scale, acc + 8 * half + k))
            for k in range(4):
                e("v_cvt_pk_bf16_f32 v%d, v%d, v%d" % (t + k, acc + 8 * half + 2 * k, acc + 8 * half + 2 * k + 1))
            kb.vmem("buffer_store_dwordx4 %s, v%d, %s, s%d offen offset:%d" % (vr(t, 4), vL16, sr(SRD_WS, 4), soff_sgpr, off0 + 1024 * half), "st")
            if hook[0]: hook[0]()

    def wo_issue():
        e("s_mov_b32 s28, s18"); e("s_mov_b32 s29, s19"); e("s_mov_b32 s30, 0x400000"); e("s_mov_b32 s31, 0x00020000")
        e("v_lshrrev_b32 v32, 2, v%d" % vL)
        e("v_xor_b32 v32, v32, v%d" % vG4)
        e("v_and_b32 v32, 1, v32")
        e("v_lshlrev_b32 v32, 6, v32")
        e("v_lshrrev_b32 v33, 3, v%d" % vL)
        e("v_lshl_add_u32 v32, v33, 10, v32")
        e("v_and_b32 v33, 3, v%d" % vL)
        e("v_lshl_add_u32 v32, v33, 4, v32")
        e("v_add_u32 v33, 7168, v32")
        e("s_lshl_b32 s%d, s%d, 11" % (sT, sW_ID))
        e("s_add_u32 s%d, s%d, 49152" % (sT, sT))
        e("s_mov_b32 m0, s%d" % sT)
        e("s_lshl_b32 s%d, s2, 14" % sT2)
        e("s_lshl_b32 s%d, s%d, 7" % (sT, sW_ID))
        e("s_add_u32 s%d, s%d, s%d" % (sT2, sT2, sT))
        kb.vmem("buffer_load_dwordx4 v32, s[28:31], s%d offen lds" % sT2, "wo")
        kb.vmem("buffer_load_dwordx4 v33, s[28:31], s%d offen offset:1024 lds" % sT2, "wo")
    def wo_finish():
        kb.wait_vm("wo")
        e("v_lshrrev_b32 v34, 2, v%d" % vI16)
        e("v_lshl_add_u32 v34, v%d, 2, v34" % vHI)
        e("v_lshlrev_b32 v34, 7, v34")
        e("v_and_b32 v35, 1, v%d" % vG4)
        e("v_lshl_add_u32 v34, v35, 5, v34")
        e("v_and_b32 v35, 3, v%d" % vI16)
        e("v_lshl_add_u32 v34, v35, 3, v34")
        e("s_lshl_b32 s%d, s%d, 11" % (sT, sW_ID))
        e("s_add_u32 s%d, s%d, 49152" % (sT, sT))
        e("v_add_u32 v34, s%d, v34" % sT)
        e("v_lshrrev_b32 v35, 3, v%d" % vI16)
        e("v_lshl_add_u32 v32, v35, 6, v34")
        e("v_xor_b32 v35, 1, v35")
        e("v_lshl_add_u32 v33, v35, 6, v34")
        for nb in range(2):
            for jj in range(2):
                kb.ds("ds_read_b64_tr_b16 %s, v%d offset:%d" % (vr(40 + 4 * nb + 2 * jj, 2), 32 + nb, 1024 * jj), "wot")
        e("s_lshl_b32 s%d, s%d, 19" % (sT, sW_ID))
        e("s_lshl_b32 s%d, s2, 10" % sT2)
        e("s_add_u32 s%d, s%d, s%d" % (sT, sT, sT2))
        e("s_add_u32 s%d, s%d, 0x%x" % (sT, sT, WOF))
        e("s_add_u32 s%d, s%d, 0x40000" % (sT2, sT))
        kb.wait_ds("wot")
        kb.vmem("buffer_store_dwordx4 v[40:43], v%d, %s, s%d offen" % (vL16, sr(SRD_WS, 4), sT), "st")
        kb.vmem("buffer_store_dwordx4 v[44:47], v%d, %s, s%d offen" % (vL16, sr(SRD_WS, 4), sT2), "st")
    dma_p1("p1s0", now=True)
    dma_p1("p1", now=True)
    dma_gsub(0, "p1", now=True)
    e("s_and_b32 s6, s%d, 3" % sW_ID)
    e("s_lshl_b32 s6, s6, 12")
    e("s_lshr_b32 s7, s%d, 2" % sW_ID)
    e("s_lshl_b32 s7, s7, 12")
    e("s_add_u32 s7, s7, 16384")
    kb.stamp(1)
    kb.wait_vm("p1s0")
    e("s_barrier")
    kb.stamp(3)
    e("s_cmp_lt_u32 s%d, 4" % sW_ID)
    e("s_cbranch_scc1 L_k1_nocf2")
    e("v_swap_b32 v97, v98")
    e("buffer_store_dwordx4 v[96:99], v%d, %s, s75 offen" % (vL16, sr(SRD_WS, 4)))
    e("s_nop 1")
    kb.label("L_k1_nocf2")

    def body(ktype):
        c1 = mkcfg(4, vA, vW, ktype)
        c2 = mkcfg(2, vA2, vW2, True)
        kb.lg = []; kb.vm = ["p1"] * 11
        frag_reads(c1, 0, 0)
        for j in range(8):
            def act(j=j):
                if j <= 5:
                    dma_p1("p1")
                if j == 6:
                    wo_issue()
                    dma_gsub(1, "g12", GS=0); dma_gsub(2, "g12", GS=24576)
                if j == 7:
                    dma_gsub(3, "g34", GS=65536); dma_gsub(4, "g34", GS=65536 + 24576)
                if j < 7:
                    toggle(c1)
            stage(c1, None, act, (lambda: frag_reads(c1, 0, 0)) if j < 7 else (lambda: None))
        kb.stamp(4)
        drain_all()
        g_sub_compute(GS, FA); g_sub_compute(0, TMP); g_sub_compute(24576, FA)
        ops = list(pending); del pending[:]
        order = ops[0:4] + ops[8:12] + ops[4:8] + ops[16:20] + ops[12:16] + ops[20:24]
        for f in order: f()
        kb.wait_ds_all()
        kb.wait_vm("g34")
        e("s_barrier")
        dma_gsub(5, "g567", now=True); dma_gsub(6, "g567", now=True, GS=0); dma_gsub(7, "g567", now=True, GS=24576)
        wo_finish()
        g_sub_compute(65536, FA); g_sub_compute(65536 + 24576, FA + 0)
        nst = [0]
        def after_store():
            nst[0] += 1
            drain(2)
            if nst[0] == 10:
                drain_all()
                kb.wait_ds_all()
                kb.wait_vm("g567")
                e("s_barrier")
                g_sub_compute(GS, FA); g_sub_compute(0, FA); g_sub_compute(24576, FA)
            if nst[0] > 10:
                drain(2)
        hook[0] = after_store
        e("s_lshl_b32 s%d, s%d, 19" % (sEp, sH))
        e("s_and_b32 s%d, s%d, 1" % (sT, sW_ID))
        e("s_lshr_b32 s%d, s%d, 1" % (sT2, sW_ID))
        e("s_and_b32 s%d, s%d, 1" % (sT2, sT2))
        if ktype:
            import k2
            e("s_mov_b32 s%d, 0x%x" % (sCnt, k2.f32bits(k2.QSCALE)))
            e("s_lshl_b32 s%d, s%d, 15" % (sT, sT))
            e("s_add_u32 s%d, s%d, s%d" % (sEp, sEp, sT))
            e("s_lshl_b32 s%d, s%d, 16" % (sT, sM))
            e("s_add_u32 s%d, s%d, s%d" % (sEp, sEp, sT))
            e("s_lshl_b32 s%d, s%d, 12" % (sT2, sT2))
            e("s_add_u32 s%d, s%d, s%d" % (sEp, sEp, sT2))
            e("s_add_u32 s%d, s%d, 0x%x" % (sEp, sEp, KF))
            for rb in range(4):
                e("s_add_u32 s%d, s%d, %d" % (sT, sEp, rb * 8192))
                for nb in range(2):
                    pack_store(ACC + 16 * (2 * rb + nb), sT, nb * 2048, 2 * rb + nb, scale=sCnt)
        else:
            e("s_lshl_b32 s%d, s%d, 15" % (sT, sT))
            e("s_add_u32 s%d, s%d, s%d" % (sEp, sEp, sT))
            e("s_lshl_b32 s%d, s%d, 16" % (sT, sM))
            e("s_add_u32 s%d, s%d, s%d" % (sEp, sEp, sT))
            e("s_lshl_b32 s%d, s%d, 13" % (sT2, sT2))
            e("s_add_u32 s%d, s%d, s%d" % (sEp, sEp, sT2))
            e("s_add_u32 s%d, s%d, 0x%x" % (sEp, sEp, VF))
            for rb in range(4):
                for nb in range(2):
                    e("s_add_u32 s%d, s%d, %d" % (sT, sEp, (rb >> 1) * 16384 + nb * 4096))
                    pack_store(ACC + 16 * (2 * rb + nb), sT, (rb & 1) * 2048, 2 * rb + nb)
        drain_all()
        hook[0] = None
        e("s_branch L_k1_phase2")

    e("s_cmp_lt_u32 s%d, 4" % sW_ID)
    e("s_cbranch_scc0 L_k1_vtype")
    body(True)
    lgA, vmA = list(kb.lg), list(kb.vm)
    kb.label("L_k1_vtype")
    body(False)
    assert kb.lg == lgA and kb.vm == vmA
    kb.label("L_k1_phase2")
    kb.stamp(5)
    kb.stamp(6)
    kb.nop(16)
    e("s_and_b32 s%d, s%d, 1" % (sT, sGC))
    e("s_lshl_b32 s%d, s%d, 22" % (sEp, sT))
    e("s_lshr_b32 s%d, s%d, 1" % (sT, sGC))
    e("s_lshl_b32 s%d, s%d, 19" % (sT, sT))
    e("s_add_u32 s%d, s%d, s%d" % (sEp, sEp, sT))
    e("s_lshr_b32 s%d, s%d, 2" % (sT, sW_ID))
    e("s_lshl_b32 s%d, s%d, 18" % (sT, sT))
    e("s_add_u32 s%d, s%d, s%d" % (sEp, sEp, sT))
    e("s_lshl_b32 s%d, s%d, 9" % (sT, sGT_))
    e("s_add_u32 s%d, s%d, s%d" % (sEp, sEp, sT))
    e("s_and_b32 s%d, s%d, 3" % (sT, sW_ID))
    e("s_lshl_b32 s%d, s%d, 7" % (sT, sT))
    e("s_add_u32 s%d, s%d, s%d" % (sEp, sEp, sT))
    e("s_add_u32 s%d, s%d, 0x%x" % (sEp, sEp, GT))
    for q in range(4):
        e("buffer_store_dwordx4 %s, v%d, %s, s%d offen offset:%d" % (vr(vGacc + 4 * q, 4), vGst, sr(SRD_WS, 4), sEp, 32 * q))
    kb.stamp(7)
    kb.dump_stamps([0,1,3,4,5,6,7,7], sW_ID, 100)
    kb.wgtime_end(SRD_WS, 0)
    kb.label("L_k1_end")
    return kb.text()
```

```python
from asmlib import *
from layout import *
import struct, math

def f32bits(x):
    return struct.unpack("<I", struct.pack("<f", x))[0]

LOG2E = 1.4426950408889634
QSCALE = (128.0 ** -0.5) * LOG2E
SUM_T = 2.0 ** 64
import os
STC = int(os.environ.get('STC', '3'))

def gen_k2():
    kb = KB("k2")
    e = kb.e
    sW_ID, sWQ, sH, sI, sGRP = 3, 4, 5, 6, 7
    SRD_WS = 32
    sKb, sVb, sNext, sLeft, sMK, sMV, sThr, sCnt, sD, sT, sT2, sT3, sF, sFirst, sFloor = range(36, 51)
    sKeep = 30
    sCm = 52
    sLre, sLim, sLdt = 60, 61, 62
    sP = 64
    sCtx = 80
    vL, vR, vHI, vL16, vF, vDMA, vM, vT, vT2, vNeg, vThr, vRm = range(1, 13)
    Q, S, P, POOL, O, CI, ONES, LT, LA, ET = 16, 48, 80, 96, 160, 224, 240, 244, 248, 250
    BREG, AREG, QST = 65536, 0, 131072

    e("s_cmp_ge_u32 s2, 256")
    e("s_cbranch_scc1 L_k2_end")
    kb.stamp(0)
    kb.wgtime_begin()
    e("s_load_dwordx2 s[28:29], s[0:1], %d" % KA['ws'])
    e("s_load_dwordx4 s[8:11], s[0:1], %d" % KA['lre'])
    e("s_load_dwordx2 s[12:13], s[0:1], %d" % KA['logdt'])
    e("s_load_dwordx2 s[14:15], s[0:1], %d" % KA['x'])
    e("s_load_dwordx2 s[16:17], s[0:1], %d" % KA['wq'])
    e("v_and_b32 v%d, 63, v0" % vL)
    e("v_lshrrev_b32 v2, 6, v0")
    e("s_nop 0")
    e("v_readfirstlane_b32 s%d, v2" % sW_ID)
    e("v_and_b32 v%d, 31, v%d" % (vR, vL))
    e("v_lshrrev_b32 v%d, 5, v%d" % (vHI, vL))
    e("v_lshlrev_b32 v%d, 4, v%d" % (vL16, vL))
    e("v_lshlrev_b32 v14, 2, v%d" % vHI)
    e("v_sub_u32 v%d, v%d, v14" % (vRm, vR))
    e("v_mov_b32 v%d, 0xff800000" % vNeg)
    e("s_and_b32 s%d, s%d, 3" % (sWQ, sW_ID))
    e("s_lshr_b32 s%d, s%d, 2" % (sGRP, sW_ID))
    if os.environ.get("SWAPG"):
        e("s_xor_b32 s%d, s%d, 1" % (sGRP, sGRP))
    e("s_and_b32 s%d, s2, 7" % sT)
    e("s_lshl_b32 s%d, s%d, 2" % (sT, sT))
    e("s_lshr_b32 s%d, s2, 3" % sT2)
    e("s_and_b32 s%d, s%d, 3" % (sT2, sT2))
    e("s_add_u32 s%d, s%d, s%d" % (sH, sT, sT2))
    e("s_lshr_b32 s%d, s2, 5" % sI)
    e("s_mov_b32 s%d, 0x%x" % (sThr, f32bits(SUM_T)))
    e("v_and_b32 v13, 15, v%d" % vL)
    e("v_bfe_u32 v14, v%d, 4, 1" % vL)
    e("v_cmp_eq_u32 vcc, v13, v14")
    e("v_mov_b32 v15, 0x3f803f80")
    e("s_lshl_b32 s%d, s%d, 16" % (sT, sGRP))
    e("s_lshl_b32 s%d, s%d, 12" % (sT2, sWQ))
    for k in range(4):
        e("v_cndmask_b32 v%d, 0, v15, vcc" % (ONES + k))
    e("v_add_u32 v%d, s%d, v%d" % (vDMA, sT2, vL16))
    e("s_add_u32 s%d, s%d, s%d" % (sMK, sT, sT2))
    e("s_lshl_b32 s%d, s%d, 15" % (sT3, sGRP))
    e("s_add_u32 s%d, s%d, s%d" % (sMK, sMK, sT3))
    e("s_add_u32 s%d, s%d, 16384" % (sMV, sMK))
    e("s_lshl_b32 s%d, s%d, 19" % (sT, sH))
    e("s_add_u32 s%d, s%d, 0x%x" % (sKb, sT, KF))
    e("s_add_u32 s%d, s%d, 0x%x" % (sVb, sT, VF))
    e("s_lshl_b32 s%d, s%d, 1" % (sT, sI))
    e("s_sub_u32 s%d, 15, s%d" % (sT3, sT))
    e("s_cmp_eq_u32 s%d, 0" % sGRP)
    e("s_cselect_b32 s%d, 17, 0" % sNext)
    e("s_cselect_b32 s%d, s%d, 17" % (sLeft, sT3))
    e("s_mov_b32 s%d, 0x%x" % (sF, BREG + 0x8000))
    e("v_add_u32 v%d, s%d, v%d" % (vF, sF, vL16))
    e("s_waitcnt lgkmcnt(0)")
    kb.srd(SRD_WS, 28, WS_BYTES)
    SRD_X, SRD_WQ = 20, 24
    kb.srd(SRD_X, 14, 2048 * 1024)
    kb.srd(SRD_WQ, 16, 512 * 8192)
    e("s_lshl_b32 s%d, s2, 2" % sT)
    e("s_load_dword s%d, s[8:9], s%d" % (sLre, sT))
    e("s_load_dword s%d, s[10:11], s%d" % (sLim, sT))
    e("s_load_dword s%d, s[12:13], s%d" % (sLdt, sT))

    def dma_tile():
        lab = kb.newlabel("nodma")
        e("s_cmp_eq_u32 s%d, 0" % sLeft)
        e("s_cbranch_scc1 %s" % lab)
        e("s_lshl_b32 s%d, s%d, 14" % (sT, sNext))
        e("s_add_u32 s%d, s%d, s%d" % (sT2, sT, sKb))
        e("s_mov_b32 m0, s%d" % sMK)
        e("s_add_u32 s%d, s%d, s%d" % (sT, sT, sVb))
        for n in range(4):
            e("buffer_load_dwordx4 v%d, %s, s%d offen offset:%d lds" % (vDMA, sr(SRD_WS, 4), sT2, 1024 * n))
        e("s_mov_b32 m0, s%d" % sMV)
        e("s_sub_u32 s%d, s%d, 1" % (sLeft, sLeft))
        for n in range(4):
            e("buffer_load_dwordx4 v%d, %s, s%d offen offset:%d lds" % (vDMA, sr(SRD_WS, 4), sT, 1024 * n))
        e("s_add_u32 s%d, s%d, 1" % (sNext, sNext))
        kb.label(lab)
        e("s_xor_b32 s%d, s%d, 0x8000" % (sMK, sMK))
        e("s_xor_b32 s%d, s%d, 0x8000" % (sMV, sMV))

    def q_base(high):
        if high:
            e("s_sub_u32 s%d, 15, s%d" % (sT, sI))
        else:
            e("s_mov_b32 s%d, s%d" % (sT, sI))
        e("s_lshl_b32 s%d, s%d, 2" % (sT, sT))
        e("s_add_u32 s%d, s%d, s%d" % (sT, sT, sWQ))
        e("s_lshl_b32 s%d, s%d, 6" % (sT2, sH))
        e("s_add_u32 s%d, s%d, s%d" % (sT, sT, sT2))
        e("s_lshl_b32 s%d, s%d, 13" % (sT, sT))
        if QF:
            e("s_add_u32 s%d, s%d, 0x%x" % (sT, sT, QF))
    def q_load():
        e("s_add_u32 s%d, s%d, 4096" % (sT2, sT))
        for s in range(8):
            e("buffer_load_dwordx4 %s, v%d, %s, s%d offen offset:%d" % (vr(Q + 4 * s, 4), vL16, sr(SRD_WS, 4), sT if s < 4 else sT2, 1024 * (s & 3)))

    def reset_state():
        e("s_mov_b32 s%d, 0" % sKeep)
        for i in range(16):
            e("v_mov_b32 v%d, 0" % (CI + i))
        e("v_mov_b32 v%d, 0" % vM)
        e("v_mov_b32 v%d, 0" % LA); e("v_mov_b32 v%d, 0" % (LA + 1))
        e("s_mov_b32 s%d, 1" % sFirst)
        e("s_mov_b32 s%d, 0x%x" % (sFloor, f32bits(-3e38)))

    QB = [0, 49152, 98304]
    SCR = 147456
    vOA, vOW, vPA, vPW = 224, 228, 229, 233
    sXo, sWo_, sDT = 18, 19, 63
    GQ = [152, 156, 244, 248]
    e("v_lshlrev_b32 v13, 4, v0")
    e("s_lshl_b32 s%d, s2, 14" % sT)
    e("s_add_u32 s%d, s%d, 0x%x" % (sT, sT, GT))
    for ch in range(2):
        for pl in range(2):
            e("s_add_u32 s%d, s%d, %d" % (sT2, sT, pl * 512 * 8192 + ch * 8192))
            kb.vmem("buffer_load_dwordx4 %s, v13, %s, s%d offen" % (vr(GQ[2 * ch + pl], 4), sr(SRD_WS, 4), sT2), "G")
    e("v_lshrrev_b32 v15, 4, v%d" % vL)
    e("v_lshrrev_b32 v13, 3, v%d" % vL)
    e("v_lshlrev_b32 v13, 10, v13")
    e("v_and_b32 v14, 7, v%d" % vL)
    e("v_xor_b32 v14, v14, v15")
    e("v_lshl_add_u32 v%d, v14, 4, v13" % (vOA + 0))
    e("v_xor_b32 v14, 4, v14")
    e("v_lshl_add_u32 v%d, v14, 4, v13" % (vOA + 1))
    e("v_add_u32 v%d, %d, v%d" % (vOA + 2, 2 * 7168, vOA + 0))
    e("v_add_u32 v%d, %d, v%d" % (vOA + 3, 3 * 7168, vOA + 1))
    e("v_add_u32 v%d, %d, v%d" % (vOA + 1, 7168, vOA + 1))
    e("v_lshrrev_b32 v13, 2, v%d" % vL)
    e("v_and_b32 v13, 3, v13")
    e("v_xor_b32 v13, v13, v15")
    e("v_lshlrev_b32 v13, 6, v13")
    e("v_lshl_add_u32 v13, v15, 13, v13")
    e("v_and_b32 v14, 3, v%d" % vL)
    e("v_lshl_add_u32 v%d, v14, 4, v13" % vOW)
    e("s_sub_u32 s%d, 15, s%d" % (sT, sI))
    e("s_cmp_eq_u32 s%d, 0" % sGRP)
    e("s_cselect_b32 s%d, s%d, s%d" % (sT, sI, sT))
    e("s_lshl_b32 s%d, s%d, 2" % (sT, sT))
    e("s_add_u32 s%d, s%d, s%d" % (sT, sT, sWQ))
    e("s_lshl_b32 s%d, s%d, 15" % (sXo, sT))
    e("s_lshl_b32 s%d, s%d, 16" % (sT, sW_ID))
    e("s_lshl_b32 s%d, s%d, 8" % (sT2, sH))
    e("s_add_u32 s%d, s%d, s%d" % (sWo_, sT, sT2))
    pending = []
    def drain(n=1):
        for _ in range(n):
            if pending:
                pending.pop(0)()
    def drain_all():
        while pending:
            pending.pop(0)()
    def q_dma(j):
        buf = QB[j % 3]; tag = ("q", j)
        for n in range(4):
            def f(n=n):
                if n == 0:
                    e("s_lshl_b32 s%d, s%d, 12" % (sDT, sW_ID))
                    e("s_add_u32 s%d, s%d, %d" % (sDT, sDT, buf))
                    e("s_mov_b32 m0, s%d" % sDT)
                e("s_add_u32 s%d, s%d, %d" % (sDT, sXo, 128 * j))
                kb.vmem("buffer_load_dwordx4 v%d, %s, s%d offen offset:%d lds" % (vOA + n, sr(SRD_X, 4), sDT, 1024 * n), tag)
            pending.append(f)
        for n in range(2):
            def f(n=n):
                if n == 0:
                    e("s_lshl_b32 s%d, s%d, 11" % (sDT, sW_ID))
                    e("s_add_u32 s%d, s%d, %d" % (sDT, sDT, buf + 32768))
                    e("s_mov_b32 m0, s%d" % sDT)
                e("s_add_u32 s%d, s%d, %d" % (sDT, sWo_, j * 64 * 8192 + n * 31744))
                kb.vmem("buffer_load_dwordx4 v%d, %s, s%d offen offset:%d lds" % (vOW, sr(SRD_WQ, 4), sDT, 1024 * n), tag)
            pending.append(f)
    q_dma(0)
    drain_all()
    e("v_lshrrev_b32 v13, 1, v%d" % vR)
    e("v_and_b32 v13, 7, v13")
    e("s_lshl_b32 s%d, s%d, 12" % (sT, sW_ID))
    for ks in range(4):
        e("v_add_u32 v14, %d, v%d" % (2 * ks, vHI))
        e("v_xor_b32 v14, v14, v13")
        e("v_lshlrev_b32 v14, 4, v14")
        e("v_lshl_add_u32 v14, v%d, 7, v14" % vR)
        e("v_add_u32 v%d, s%d, v14" % (vPA + ks, sT))
    e("v_and_b32 v13, 15, v%d" % vL)
    e("v_lshrrev_b32 v14, 2, v13")
    e("v_lshl_add_u32 v%d, v%d, 3, v14" % (vT, vHI))
    e("v_lshlrev_b32 v%d, 8, v%d" % (vT, vT))
    e("v_and_b32 v%d, 1, v15" % vT2)
    e("v_lshl_add_u32 v%d, v%d, 5, v%d" % (vT, vT2, vT))
    e("v_and_b32 v%d, 3, v13" % vT2)
    e("v_lshl_add_u32 v%d, v%d, 3, v%d" % (vT, vT2, vT))
    e("v_add_u32 v%d, 0x8000, v%d" % (vT, vT))
    for b_ in range(4):
        e("v_xor_b32 v%d, %d, v14" % (vT2, b_))
        e("v_lshl_add_u32 v%d, v%d, 6, v%d" % (vPW + b_, vT2, vT))

    segs = {0: [], 1: [], 2: [], 3: []}
    cur_seg = [0]
    def r(txt):
        segs[cur_seg[0]].append(lambda: e(txt))
    def rmulti(*txts):
        def f():
            for t in txts: e(t)
        segs[cur_seg[0]].append(f)
    def rds(txt, tag):
        segs[cur_seg[0]].append(lambda: kb.ds(txt, tag))
    def rwait_ds(tag):
        segs[cur_seg[0]].append(lambda: kb.wait_ds(tag))
    def rwait_vm(tag):
        segs[cur_seg[0]].append(lambda: kb.wait_vm(tag))
    def rvmem(txt, tag):
        segs[cur_seg[0]].append(lambda: kb.vmem(txt, tag))
    sA_, sB_, sMsk = sP + 12, sP + 13, sP + 14
    r("s_waitcnt lgkmcnt(0)")
    r("s_lshl_b32 s%d, s%d, 16" % (sP + 0, sLre)); r("s_and_b32 s%d, s%d, 0xffff0000" % (sP + 1, sLre))
    r("s_lshl_b32 s%d, s%d, 16" % (sP + 2, sLim)); r("s_and_b32 s%d, s%d, 0xffff0000" % (sP + 3, sLim))
    r("s_lshl_b32 s%d, s%d, 16" % (sP + 4, sLdt)); r("s_and_b32 s%d, s%d, 0xffff0000" % (sP + 5, sLdt))
    r("s_mov_b32 s%d, 0x%x" % (sP + 6, f32bits(LOG2E)))
    r("s_mov_b32 s%d, 0x%x" % (sP + 7, f32bits(1.0 / (2 * math.pi))))
    r("v_cvt_f32_u32 v15, v%d" % vL)
    r("v_mul_f32 v15, 4.0, v15")
    def cmul(dr, di, ar, ai, br, bi, t):
        r("v_mul_f32 v%d, v%d, v%d" % (t, ai, bi))
        r("v_fma_f32 v%d, v%d, v%d, -v%d" % (dr, ar, br, t))
        r("v_mul_f32 v%d, v%d, v%d" % (t, ai, br))
        r("v_fma_f32 v%d, v%d, v%d, v%d" % (di, ar, bi, t))
    def cfma(dr, di, ar, ai, br, bi):
        r("v_fma_f32 v%d, v%d, v%d, v%d" % (dr, ar, br, dr))
        r("v_fma_f32 v%d, -v%d, v%d, v%d" % (dr, ai, bi, dr))
        r("v_fma_f32 v%d, v%d, v%d, v%d" % (di, ar, bi, di))
        r("v_fma_f32 v%d, v%d, v%d, v%d" % (di, ai, br, di))
    CH = []
    for ch in range(2):
        B = 16 + 48 * ch
        R = dict(lr=B, li=B + 1, dt=B + 2, a=B + 3, b=B + 4, t=B + 5, t2=B + 6, cr=B + 7, ci=B + 8,
                 L1=B + 9, L2=B + 11, L3=B + 13, MU=B + 15, PL=B + 29, H=B + 31,
                 X=B + 39, Y=B + 41, CW=B + 43, WC=B + 45)
        CH.append(R)
        r("v_mov_b32 v%d, s%d" % (R['lr'], sP + ch))
        r("v_mov_b32 v%d, s%d" % (R['li'], sP + 2 + ch))
        r("v_mov_b32 v%d, s%d" % (R['t'], sP + 4 + ch))
        r("v_mul_f32 v%d, s%d, v%d" % (R['t'], sP + 6, R['t']))
        r("v_exp_f32 v%d, v%d" % (R['t'], R['t']))
        r("s_nop 0")
        r("v_cvt_pk_bf16_f32 v%d, v%d, v%d" % (R['t'], R['t'], R['t']))
        r("v_lshlrev_b32 v%d, 16, v%d" % (R['dt'], R['t']))
        r("v_mul_f32 v%d, v%d, v%d" % (R['a'], R['dt'], R['lr']))
        r("v_mul_f32 v%d, v%d, v%d" % (R['b'], R['dt'], R['li']))
        r("v_mul_f32 v%d, s%d, v%d" % (R['a'], sP + 6, R['a']))
        r("v_mul_f32 v%d, s%d, v%d" % (R['b'], sP + 7, R['b']))
        def cexp(dr, di, va, vb):
            r("v_exp_f32 v%d, v%d" % (R['t'], va))
            r("v_fract_f32 v%d, v%d" % (R['t2'], vb))
            r("v_cos_f32 v%d, v%d" % (dr, R['t2']))
            r("v_sin_f32 v%d, v%d" % (di, R['t2']))
            r("s_nop 0")
            r("v_mul_f32 v%d, v%d, v%d" % (dr, dr, R['t']))
            r("v_mul_f32 v%d, v%d, v%d" % (di, di, R['t']))
        cexp(R['L1'], R['L1'] + 1, R['a'], R['b'])
        r("v_mul_f32 v%d, v15, v%d" % (R['X'], R['a']))
        r("v_mul_f32 v%d, v15, v%d" % (R['X'] + 1, R['b']))
        cexp(R['PL'], R['PL'] + 1, R['X'], R['X'] + 1)
        r("v_add_f32 v%d, -1.0, v%d" % (R['X'], R['L1']))
        r("v_mul_f32 v%d, v%d, v%d" % (R['t'], R['lr'], R['lr']))
        r("v_fma_f32 v%d, v%d, v%d, v%d" % (R['t'], R['li'], R['li'], R['t']))
        r("v_rcp_f32 v%d, v%d" % (R['t'], R['t']))
        r("v_mul_f32 v%d, v%d, v%d" % (R['cr'], R['X'], R['lr']))
        r("v_fma_f32 v%d, v%d, v%d, v%d" % (R['cr'], R['L1'] + 1, R['li'], R['cr']))
        r("v_mul_f32 v%d, v%d, v%d" % (R['ci'], R['L1'] + 1, R['lr']))
        r("v_fma_f32 v%d, -v%d, v%d, v%d" % (R['ci'], R['X'], R['li'], R['ci']))
        r("v_mul_f32 v%d, v%d, v%d" % (R['cr'], R['cr'], R['t']))
        r("v_mul_f32 v%d, v%d, v%d" % (R['ci'], R['ci'], R['t']))
        cmul(R['L2'], R['L2'] + 1, R['L1'], R['L1'] + 1, R['L1'], R['L1'] + 1, R['t'])
        cmul(R['L3'], R['L3'] + 1, R['L2'], R['L2'] + 1, R['L1'], R['L1'] + 1, R['t'])
        cmul(R['MU'], R['MU'] + 1, R['L2'], R['L2'] + 1, R['L2'], R['L2'] + 1, R['t'])
        for k in range(1, 7):
            a_ = R['MU'] + 2 * (k - 1)
            cmul(a_ + 2, a_ + 3, a_, a_ + 1, a_, a_ + 1, R['t'])
    cur_seg[0] = 1
    rwait_vm("G")
    for ch in range(2):
        R = CH[ch]
        gr, gi = GQ[2 * ch], GQ[2 * ch + 1]
        for i in range(4):
            hr, hi_ = R['H'] + 2 * i, R['H'] + 2 * i + 1
            cmul(hr, hi_, R['cr'], R['ci'], gr + i, gi + i, R['t'])
            if i:
                cfma(hr, hi_, R['L1'], R['L1'] + 1, hr - 2, hi_ - 2)
        r("v_mov_b32 v%d, v%d" % (R['X'], R['H'] + 6))
        r("v_mov_b32 v%d, v%d" % (R['X'] + 1, R['H'] + 7))
    def shifted(d, dst_key):
        r("v_subrev_u32 v14, %d, v%d" % (d, vL))
        r("v_and_b32 v14, 63, v14")
        r("v_lshlrev_b32 v14, 2, v14")
        for ch in range(2):
            R = CH[ch]
            for c in range(2):
                rds("ds_bpermute_b32 v%d, v14, v%d" % (R[dst_key] + c, R['X'] + c), "bp")
        r("v_cmp_le_u32 vcc, %d, v%d" % (d, vL))
        r("s_nop 1")
        rwait_ds("bp")
        for ch in range(2):
            R = CH[ch]
            for c in range(2):
                r("v_cndmask_b32 v%d, 0, v%d, vcc" % (R[dst_key] + c, R[dst_key] + c))
    for k in range(6):
        shifted(1 << k, 'Y')
        for ch in range(2):
            R = CH[ch]
            cfma(R['X'], R['X'] + 1, R['MU'] + 2 * k, R['MU'] + 2 * k + 1, R['Y'], R['Y'] + 1)
    shifted(1, 'CW')
    r("s_nop 1")
    for ch in range(2):
        for c in range(2):
            r("v_readlane_b32 s%d, v%d, 63" % (sP + 8 + 2 * ch + c, CH[ch]['X'] + c))
    r("s_lshl_b32 s%d, s%d, 11" % (sA_, sW_ID))
    r("s_add_u32 s%d, s%d, %d" % (sA_, sA_, SCR))
    r("v_mov_b32 v14, s%d" % sA_)
    for k in range(4):
        r("v_mov_b32 v%d, s%d" % (152 + k, sP + 8 + k))
    rds("ds_write_b128 v14, v[152:155]", "tw")
    cur_seg[0] = 2
    r("v_mov_b32 v14, 0x%x" % SCR)
    TQ = [152, 156, 244, 248, 16, 20, 64]
    for j in range(7):
        rds("ds_read_b128 %s, v14 offset:%d" % (vr(TQ[j], 4), 2048 * j), ("tot", j))
    for ch in range(2):
        r("v_mov_b32 v%d, 0" % CH[ch]['WC']); r("v_mov_b32 v%d, 0" % (CH[ch]['WC'] + 1))
    for j in range(7):
        rmulti("s_cmp_gt_u32 s%d, %d" % (sW_ID, j), "s_cselect_b64 %s, -1, 0" % sr(sMsk, 2))
        rwait_ds(("tot", j))
        for ch in range(2):
            R = CH[ch]
            r("v_mov_b32 v%d, v%d" % (R['Y'], TQ[j] + 2 * ch))
            r("v_mov_b32 v%d, v%d" % (R['Y'] + 1, TQ[j] + 2 * ch + 1))
            cfma(R['Y'], R['Y'] + 1, R['WC'], R['WC'] + 1, R['MU'] + 12, R['MU'] + 13)
            r("v_cndmask_b32 v%d, v%d, v%d, %s" % (R['WC'], R['WC'], R['Y'], sr(sMsk, 2)))
            r("v_cndmask_b32 v%d, v%d, v%d, %s" % (R['WC'] + 1, R['WC'] + 1, R['Y'] + 1, sr(sMsk, 2)))
    for ch in range(2):
        R = CH[ch]
        cfma(R['CW'], R['CW'] + 1, R['PL'], R['PL'] + 1, R['WC'], R['WC'] + 1)
        for i, key in enumerate(['L1', 'L2', 'L3', 'MU']):
            cfma(R['H'] + 2 * i, R['H'] + 2 * i + 1, R[key], R[key] + 1, R['CW'], R['CW'] + 1)
    for i in range(4):
        r("v_cvt_pk_bf16_f32 v%d, v%d, v%d" % (244 + 2 * i, CH[0]['H'] + 2 * i, CH[1]['H'] + 2 * i))
        r("v_cvt_pk_bf16_f32 v%d, -v%d, -v%d" % (245 + 2 * i, CH[0]['H'] + 2 * i + 1, CH[1]['H'] + 2 * i + 1))
    cur_seg[0] = 3
    r("s_lshl_b32 s%d, s%d, 11" % (sA_, sW_ID))
    r("s_add_u32 s%d, s%d, %d" % (sA_, sA_, SCR))
    r("v_lshlrev_b32 v14, 5, v%d" % vL)
    r("v_add_u32 v14, s%d, v14" % sA_)
    rds("ds_write_b128 v14, v[244:247]", "hw")
    rds("ds_write_b128 v14, v[248:251] offset:16", "hw")
    r("v_lshlrev_b32 v15, 3, v%d" % vL)
    r("v_add_u32 v15, s%d, v15" % sA_)
    rwait_ds("hw")
    for j in range(4):
        rds("ds_read_b64 %s, v15 offset:%d" % (vr(152 + 2 * j, 2), 512 * j), ("hr", j))
    r("v_lshlrev_b32 v14, 16, v%d" % vHI)
    r("v_lshl_add_u32 v14, v%d, 4, v14" % vR)
    r("s_lshr_b32 s%d, s2, 2" % sA_)
    r("s_lshl_b32 s%d, s%d, 10" % (sA_, sA_))
    r("s_lshr_b32 s%d, s2, 1" % sB_)
    r("s_and_b32 s%d, s%d, 1" % (sB_, sB_))
    r("s_lshl_b32 s%d, s%d, 9" % (sB_, sB_))
    r("s_add_u32 s%d, s%d, s%d" % (sA_, sA_, sB_))
    r("s_and_b32 s%d, s2, 1" % sB_)
    r("s_lshl_b32 s%d, s%d, 3" % (sB_, sB_))
    r("s_add_u32 s%d, s%d, s%d" % (sA_, sA_, sB_))
    r("s_lshl_b32 s%d, s%d, 19" % (sB_, sW_ID))
    r("s_add_u32 s%d, s%d, s%d" % (sA_, sA_, sB_))
    r("s_add_u32 s%d, s%d, 0x%x" % (sA_, sA_, HF))
    for j in range(4):
        r("s_add_u32 s%d, s%d, %d" % (sB_, sA_, j * 131072))
        rwait_ds(("hr", j))
        rvmem("buffer_store_dwordx2 %s, v14, %s, s%d offen" % (vr(152 + 2 * j, 2), sr(SRD_WS, 4), sB_), "Hst")
    def weave(seg, n):
        for _ in range(n):
            if segs[seg]:
                segs[seg].pop(0)()
    weave(0, 100)
    q_dma(1)
    drain_all()
    weave(0, 10000)
    q_dma(2)
    FQ = POOL + 16
    def q_reads(ks, st):
        f = FQ + 20 * st
        kb.ds("ds_read_b128 %s, v%d" % (vr(f, 4), vPA + ks), ("x", st))
        for b_ in range(4):
            for jj in range(2):
                kb.ds("ds_read_b64_tr_b16 %s, v%d offset:%d" % (vr(f + 4 + 4 * b_ + 2 * jj, 2), vPW + b_, 4096 * ks + 1024 * jj), ("w", st, b_))
    def tile_pieces():
        def f():
            dma_tile()
        pending.append(f)
    kb.wait_vm(("q", 0))
    e("s_waitcnt lgkmcnt(0)")
    e("s_barrier")
    kb.lg = []
    q_reads(0, 0)
    win = {1: (0, 3), 2: (4, 5), 3: (6, 7)}
    for j in range(8):
        for ks in range(4):
            cur = ks & 1
            if ks < 3:
                q_reads(ks + 1, cur ^ 1)
            elif j < 7:
                drain_all()
                for sg, (lo, hi_) in win.items():
                    if hi_ == j:
                        weave(sg, 10000)
                kb.wait_ds_all()
                kb.wait_vm(("q", j + 1))
                e("s_barrier")
                if j + 3 <= 7:
                    q_dma(j + 3)
                elif j == 5:
                    e("s_cmp_eq_u32 s%d, 0" % sGRP)
                    e("s_cbranch_scc1 L_k2_nt0")
                    dma_tile()
                    kb.label("L_k2_nt0")
                elif j == 6:
                    e("s_cmp_eq_u32 s%d, 0" % sGRP)
                    e("s_cbranch_scc0 L_k2_nt17")
                    dma_tile()
                    kb.label("L_k2_nt17")
                d = QB[(j + 1) % 3] - QB[j % 3]
                for r in list(range(vPA, vPA + 4)) + list(range(vPW, vPW + 4)):
                    if d > 0:
                        e("v_add_u32 v%d, 0x%x, v%d" % (r, d, r))
                    else:
                        e("v_subrev_u32 v%d, 0x%x, v%d" % (r, -d, r))
                q_reads(0, 0)
            f = FQ + 20 * cur
            for b_ in range(4):
                kb.wait_ds(("x", cur)); kb.wait_ds(("w", cur, b_))
                acc = vr(O + 16 * b_, 16)
                e("v_mfma_f32_32x32x16_bf16 %s, %s, %s, %s" % (acc, vr(f + 4 + 4 * b_, 4), vr(f, 4), "0" if (j == 0 and ks == 0) else acc))
                drain()
                jj_ = j + 1 if (ks == 3 and j < 7) else j
                for sg, (lo, hi_) in win.items():
                    if lo <= jj_ <= hi_ and segs[sg]:
                        done_slots = (16 * j + 4 * ks + b_ + 1) - (16 * lo - 4 if lo else 0)
                        tot_slots = (16 * hi_ + 12 if hi_ < 7 else 128) - (16 * lo - 4 if lo else 0)
                        left = max(tot_slots - done_slots + 1, 1)
                        weave(sg, -(-len(segs[sg]) // left))
    weave(3, 10000)
    assert not any(segs.values())
    e("s_waitcnt vmcnt(4)")
    e("s_barrier")
    dma_tile()
    kb.nop(10)
    for k in range(32):
        e("v_cvt_pk_bf16_f32 v%d, v%d, v%d" % (Q + k, O + 2 * k, O + 2 * k + 1))
    e("s_cmp_eq_u32 s%d, 0" % sGRP)
    e("s_cbranch_scc1 L_k2_noqst")
    e("s_lshl_b32 s%d, s%d, 13" % (sT2, sWQ))
    e("s_add_u32 s%d, s%d, %d" % (sT2, sT2, QST))
    e("v_add_u32 v13, s%d, v%d" % (sT2, vL16))
    for k in range(8):
        e("ds_write_b128 v13, %s offset:%d" % (vr(Q + 4 * k, 4), 1024 * k))
    kb.label("L_k2_noqst")
    reset_state()
    kb.label("L_k2_prodone")
    kb.lg = []
    for f in range(16):
        kb.ds("ds_read_b128 %s, v%d offset:%d" % (vr(POOL + 4 * f, 4), vF, 1024 * f), ("K", f))
    ENTRY_LG = list(kb.lg)
    kb.stamp(1)

    rare_blocks = []
    def sync_block(kind):
        kb.wait_all()
        e("s_barrier")
        if kind in ("B", "A2"):
            e("s_xor_b32 s%d, s%d, 0x8000" % (sF, sF))
        elif kind == "A1":
            e("s_xor_b32 s%d, s%d, 0x8000" % (sF, sF))
        elif kind == "A1m":
            e("s_xor_b32 s%d, s%d, 0x8000" % (sF, sF))
            e("s_cmp_eq_u32 s%d, 1" % sCnt)
            e("s_cselect_b32 s%d, %d, s%d" % (sF, AREG, sF))
        e("v_add_u32 v%d, s%d, v%d" % (vF, sF, vL16))

    sDK, sDV = 62 + 1, 51
    def iter_body(kind, masked):
        sync_pre = kind == "B"
        dma = (kind in ("B", "A2")) and not masked
        assert kb.lg == ENTRY_LG, kb.lg
        if not masked: kb.stamp(2, cond=(sCnt, STC))
        if kind == "B":
            e("s_setprio 0")
        for f in range(16):
            u, s = f >> 3, f & 7
            kb.wait_ds(("K", f))
            e("v_mfma_f32_32x32x16_bf16 %s, %s, %s, %s" % (vr(S + 16 * u, 16), vr(POOL + 4 * f, 4), vr(Q + 4 * s, 4), vr(CI, 16) if s == 0 else vr(S + 16 * u, 16)))
            s4, dt = f >> 2, f & 3
            kb.ds("ds_read_b128 %s, v%d offset:%d" % (vr(POOL + 4 * f, 4), vF, 16384 + 1024 * (dt * 4 + s4)), ("V", f))
        if not masked: kb.stamp(3, cond=(sCnt, STC))
        if sync_pre:
            sync_block(kind)
        if not masked: kb.stamp(4, cond=(sCnt, STC))
        e("s_setprio 3")
        lr = kb.newlabel("rare"); lx = kb.newlabel("exp")
        if masked:
            e("v_add_u32 v%d, s%d, v%d" % (vThr, sD, vRm))
            kb.nop(12)
            for b in range(8):
                for k in range(4):
                    idx = 4 * b + k; u, r = idx >> 4, idx & 15
                    c = 32 * u + (r & 3) + 8 * (r >> 2)
                    e("v_cmp_gt_i32 %s, %d, v%d" % (sr(sCm + 2 * k, 2), c, vThr))
                for k in range(4):
                    idx = 4 * b + k
                    e("v_cndmask_b32 v%d, v%d, v%d, %s" % (S + idx, S + idx, vNeg, sr(sCm + 2 * k, 2)))
        e("s_cmp_lg_u32 s%d, 0" % sFirst)
        e("s_cbranch_scc1 %s" % lr)
        kb.label(lx)
        rare_blocks.append((lr, lx))
        NT = 6
        pend_l = []
        for k in range(32):
            e("v_exp_f32 v%d, v%d" % (ET + k % NT, S + k))
            if k >= 2 and (k & 1) == 0:
                j = (k - 2) >> 1
                e("v_cvt_pk_bf16_f32 v%d, v%d, v%d" % (P + j, ET + (k - 2) % NT, ET + (k - 1) % NT))
                if (j & 3) == 3:
                    pend_l.append(j >> 2)
            elif pend_l and (k & 1) == 1 and k >= 3:
                pass
            if pend_l and (k & 1) == 1:
                h = pend_l[0]
                if k >= 8 * h + 11:
                    pend_l.pop(0)
                    e("v_mfma_f32_16x16x32_bf16 %s, %s, %s, %s" % (vr(LT, 4), vr(ONES, 4), vr(P + 4 * h, 4), "0" if h == 0 else vr(LT, 4)))
        e("s_nop 0")
        e("v_cvt_pk_bf16_f32 v%d, v%d, v%d" % (P + 15, ET + 30 % NT, ET + 31 % NT))
        e("s_nop 1")
        assert not pend_l, pend_l
        e("v_mfma_f32_16x16x32_bf16 %s, %s, %s, %s" % (vr(LT, 4), vr(ONES, 4), vr(P + 12, 4), vr(LT, 4)))
        kb.nop(8)
        e("v_max_f32 v%d, v%d, v%d" % (vT2, LT, LT + 1))
        e("v_cmp_nge_f32 vcc, s%d, v%d" % (sThr, vT2))
        e("s_cbranch_vccnz %s" % lr)
        e("v_add_f32 v%d, v%d, v%d" % (LA, LA, LT))
        e("v_add_f32 v%d, v%d, v%d" % (LA + 1, LA + 1, LT + 1))
        e("s_setprio %d" % (int(os.environ.get("BPRIO", "1")) if kind == "B" else int(os.environ.get("APRIO", "0"))))
        if not masked: kb.stamp(5, cond=(sCnt, STC))
        if not sync_pre:
            sync_block(kind)
        if not masked: kb.stamp(6, cond=(sCnt, STC))
        if dma:
            e("s_lshl_b32 s%d, s%d, 14" % (sT, sNext))
            e("s_add_u32 s%d, s%d, s%d" % (sDK, sT, sKb))
            e("s_add_u32 s%d, s%d, s%d" % (sDV, sT, sVb))
            e("s_mov_b32 m0, s%d" % sMK)
            e("s_add_u32 s%d, s%d, 1" % (sNext, sNext))
        for k in range(16):
            s4, dt = k >> 2, k & 3
            kb.wait_ds(("V", k))
            e("v_mfma_f32_32x32x16_bf16 %s, %s, %s, %s" % (vr(O + 16 * dt, 16), vr(POOL + 4 * k, 4), vr(P + 4 * s4, 4), vr(O + 16 * dt, 16)))
            kb.ds("ds_read_b128 %s, v%d offset:%d" % (vr(POOL + 4 * k, 4), vF, 1024 * k), ("K", k))
            if dma and (k & 1) == 0:
                n = k >> 1
                e("buffer_load_dwordx4 v%d, %s, s%d offen offset:%d lds" % (vDMA, sr(SRD_WS, 4), sDK if n < 4 else sDV, 1024 * (n & 3)))
                if n == 3:
                    e("s_mov_b32 m0, s%d" % sMV)
        if dma:
            e("s_xor_b32 s%d, s%d, 0x8000" % (sMK, sMK))
            e("s_xor_b32 s%d, s%d, 0x8000" % (sMV, sMV))
        if not masked: kb.stamp(7, cond=(sCnt, STC))
        assert kb.lg == ENTRY_LG, kb.lg

    def loop(setup, kind, masked, may_be_zero):
        setup()
        lab = kb.newlabel("loop"); done = kb.newlabel("loopdone")
        if may_be_zero:
            e("s_cmp_lt_i32 s%d, 1" % sCnt)
            e("s_cbranch_scc1 %s" % done)
        kb.label(lab)
        iter_body(kind, masked)
        if masked:
            e("s_sub_u32 s%d, s%d, 64" % (sD, sD))
        e("s_sub_u32 s%d, s%d, 1" % (sCnt, sCnt))
        e("s_cmp_lg_u32 s%d, 0" % sCnt)
        e("s_cbranch_scc1 %s" % lab)
        kb.label(done)

    def l_to_rows(dst):
        e("v_and_b32 v13, 15, v%d" % vL)
        e("v_lshlrev_b32 v13, 2, v13")
        e("ds_bpermute_b32 v14, v13, v%d" % LA)
        e("ds_bpermute_b32 v15, v13, v%d" % (LA + 1))
        e("v_and_b32 v13, 16, v%d" % vL)
        e("v_cmp_ne_u32 vcc, 0, v13")
        kb.wait_ds_all()
        e("s_nop 1")
        e("v_cndmask_b32 v%d, v14, v15, vcc" % dst)

    def ctx_base(high):
        if high:
            e("s_sub_u32 s%d, 15, s%d" % (sT, sI))
        else:
            e("s_mov_b32 s%d, s%d" % (sT, sI))
        e("s_lshl_b32 s%d, s%d, 2" % (sT, sT))
        e("s_add_u32 s%d, s%d, s%d" % (sT, sT, sWQ))
        e("s_lshl_b32 s%d, s%d, 5" % (sT, sT))
        e("s_add_u32 s%d, s%d, s%d" % (sT, sT, sH))
        e("s_lshl_b32 s%d, s%d, 13" % (sT, sT))
        e("s_add_u32 s%d, s%d, 0x%x" % (sCtx, sT, CF))
        e("s_add_u32 s%d, s%d, 4096" % (sCtx + 1, sCtx))

    e("s_cmp_eq_u32 s%d, 0" % sGRP)
    e("s_cbranch_scc0 L_k2_groupB")
    loop(lambda: e("s_lshl_b32 s%d, s%d, 1" % (sCnt, sI)), "A1", False, True)
    def m1():
        e("s_mov_b32 s%d, 2" % sCnt)
        e("s_lshl_b32 s%d, s%d, 5" % (sD, sWQ))
    loop(m1, "A1m", True, False)
    e("s_lshl_b32 s%d, s%d, 13" % (sT2, sWQ))
    e("s_add_u32 s%d, s%d, %d" % (sT2, sT2, QST))
    e("v_add_u32 v13, s%d, v%d" % (sT2, vL16))
    for k in range(8):
        kb.ds("ds_read_b128 %s, v13 offset:%d" % (vr(Q + 4 * k, 4), 1024 * k), ("Qh", k))
    ctx_base(False)
    l_to_rows(vT)
    e("v_rcp_f32 v%d, v%d" % (vT, vT))
    e("s_nop 0")
    for s in range(8):
        t = S + 8 * (s & 3)
        for k in range(8):
            e("v_mul_f32 v%d, v%d, v%d" % (t + k, O + 8 * s + k, vT))
        for k in range(4):
            e("v_cvt_pk_bf16_f32 v%d, v%d, v%d" % (t + k, t + 2 * k, t + 2 * k + 1))
        e("buffer_store_dwordx4 %s, v%d, %s, s%d offen offset:%d sc1" % (vr(t, 4), vL16, sr(SRD_WS, 4), sCtx + (s >> 2), 1024 * (s & 3)))
    reset_state()
    kb.lg = list(ENTRY_LG)
    def n2():
        e("s_lshl_b32 s%d, s%d, 1" % (sT, sI))
        e("s_sub_u32 s%d, 13, s%d" % (sCnt, sT))
    loop(n2, "A2", False, True)
    def m2():
        e("s_lshl_b32 s%d, s%d, 5" % (sD, sWQ))
        e("s_sub_u32 s%d, s%d, 64" % (sT, sD))
        e("s_cmp_eq_u32 s%d, 7" % sI)
        e("s_cselect_b32 s%d, 1, 2" % sCnt)
        e("s_cselect_b32 s%d, s%d, s%d" % (sD, sT, sD))
    loop(m2, "A2", True, False)
    e("s_branch L_k2_merge")
    kb.label("L_k2_groupB")
    kb.lg = list(ENTRY_LG)
    loop(lambda: e("s_mov_b32 s%d, 15" % sCnt), "B", False, False)
    def mB():
        e("s_sub_u32 s%d, 7, s%d" % (sT, sI))
        e("s_lshl_b32 s%d, s%d, 7" % (sT, sT))
        e("s_lshl_b32 s%d, s%d, 5" % (sD, sWQ))
        e("s_add_u32 s%d, s%d, s%d" % (sD, sD, sT))
        e("s_add_u32 s%d, s%d, 64" % (sD, sD))
        e("s_mov_b32 s%d, 2" % sCnt)
    loop(mB, "B", True, False)
    kb.label("L_k2_merge")
    kb.wait_ds_all()
    ctx_base(True)
    vLs = ET
    l_to_rows(vLs)
    e("v_cmp_lt_f32 vcc, 0, v%d" % vLs)
    e("v_mov_b32 v13, 0x%x" % f32bits(-1e30))
    MST = 8704
    e("s_mul_i32 s%d, s%d, %d" % (sT, sW_ID, MST))
    e("v_cndmask_b32 v%d, v13, v%d, vcc" % (vM, vM))
    e("v_add_u32 v14, s%d, v%d" % (sT, vL16))
    e("s_xor_b32 s%d, s%d, 4" % (sT2, sW_ID))
    e("s_mul_i32 s%d, s%d, %d" % (sT2, sT2, MST))
    e("v_add_u32 v15, s%d, v%d" % (sT2, vL16))
    e("v_lshlrev_b32 v%d, 2, v%d" % (vThr, vL))
    e("v_add_u32 v%d, s%d, v%d" % (vRm, sT, vThr))
    e("v_add_u32 v%d, s%d, v%d" % (vThr, sT2, vThr))
    e("ds_write_b32 v%d, v%d offset:8192" % (vRm, vM))
    e("ds_write_b32 v%d, v%d offset:8448" % (vRm, vLs))
    def merge_side(keep):
        give = 32 - keep
        for q in range(8):
            e("ds_write_b128 v14, %s offset:%d" % (vr(O + give + 4 * q, 4), 1024 * q))
        e("s_waitcnt lgkmcnt(0)")
        e("s_barrier")
        e("ds_read_b32 v%d, v%d offset:8192" % (S, vThr))
        e("ds_read_b32 v%d, v%d offset:8448" % (S + 1, vThr))
        for q in range(8):
            e("ds_read_b128 %s, v15 offset:%d" % (vr(POOL + 4 * q, 4), 1024 * q))
        e("s_waitcnt lgkmcnt(8)")
        e("v_max_f32 v%d, v%d, v%d" % (vT, vM, S))
        e("v_sub_f32 v%d, v%d, v%d" % (S + 2, vM, vT))
        e("v_sub_f32 v%d, v%d, v%d" % (S + 3, S, vT))
        e("v_exp_f32 v%d, v%d" % (S + 2, S + 2))
        e("v_exp_f32 v%d, v%d" % (S + 3, S + 3))
        e("s_nop 0")
        e("v_mul_f32 v%d, v%d, v%d" % (vT, vLs, S + 2))
        e("v_fma_f32 v%d, v%d, v%d, v%d" % (vT, S + 1, S + 3, vT))
        e("v_rcp_f32 v%d, v%d" % (vT, vT))
        e("s_nop 0")
        e("v_mul_f32 v%d, v%d, v%d" % (S + 2, S + 2, vT))
        e("v_mul_f32 v%d, v%d, v%d" % (S + 3, S + 3, vT))
        e("s_waitcnt lgkmcnt(0)")
        for s in range(4):
            t = S + 8 + 8 * (s & 1)
            for k in range(8):
                e("v_mul_f32 v%d, v%d, v%d" % (t + k, O + keep + 8 * s + k, S + 2))
                e("v_fma_f32 v%d, v%d, v%d, v%d" % (t + k, POOL + 8 * s + k, S + 3, t + k))
            for k in range(4):
                e("v_cvt_pk_bf16_f32 v%d, v%d, v%d" % (t + k, t + 2 * k, t + 2 * k + 1))
            e("buffer_store_dwordx4 %s, v%d, %s, s%d offen offset:%d sc1" % (vr(t, 4), vL16, sr(SRD_WS, 4), sCtx + (keep >> 5), 1024 * s))
    e("s_cmp_eq_u32 s%d, 0" % sGRP)
    e("s_cbranch_scc0 L_k2_mergeB")
    merge_side(0)
    e("s_branch L_k2_scan")
    kb.label("L_k2_mergeB")
    merge_side(32)
    kb.label("L_k2_scan")
    kb.stamp(8)

    kb.stamp(9)
    kb.dump_stamps([0, 1, 2, 4, 5, 6, 7, 9], sW_ID, int(os.environ.get('STWG', '100')))
    kb.wgtime_end(SRD_WS, 1)
    e("s_branch L_k2_end")

    for lr, lx in rare_blocks:
        kb.label(lr)
        kb.nop(12)
        e("v_max3_f32 v%d, v%d, v%d, v%d" % (vT, S, S + 1, S + 2))
        for k in range(3, 31, 2):
            e("v_max3_f32 v%d, v%d, v%d, v%d" % (vT, vT, S + k, S + k + 1))
        e("v_max_f32 v%d, v%d, v%d" % (vT, vT, S + 31))
        e("v_mov_b32 v%d, v%d" % (vT2, vT))
        e("s_nop 1")
        e("v_permlane32_swap_b32 v%d, v%d" % (vT, vT2))
        e("v_max_f32 v%d, v%d, v%d" % (vT, vT, vT2))
        e("v_max_f32 v%d, s%d, v%d" % (vT, sFloor, vT))
        e("v_mov_b32 v13, 0x%x" % f32bits(-1e30))
        e("v_cmp_lt_f32 vcc, v13, v%d" % vT)
        e("s_mov_b32 s%d, 0" % sFirst)
        e("s_mov_b32 s%d, 0" % sFloor)
        e("v_cndmask_b32 v%d, 0, v%d, vcc" % (vT, vT))
        e("v_max_f32 v13, 0, v%d" % vT)
        e("v_exp_f32 v13, -v13")
        e("v_add_f32 v%d, v%d, v%d" % (vM, vM, vT))
        e("v_mul_f32 v13, s%d, v13" % sKeep)
        e("s_mov_b32 s%d, 1.0" % sKeep)
        e("v_mov_b32 v14, v13")
        e("v_mov_b32 v15, v13")
        for k in range(16):
            e("v_sub_f32 v%d, 0, v%d" % (CI + k, vM))
        e("v_permlane16_swap_b32 v14, v15")
        e("v_mul_f32 v%d, v%d, v13" % (LA, LA))
        e("v_mul_f32 v%d, v%d, v15" % (LA + 1, LA + 1))
        for k in range(32):
            e("v_sub_f32 v%d, v%d, v%d" % (S + k, S + k, vT))
        for k in range(64):
            e("v_mul_f32 v%d, v%d, v13" % (O + k, O + k))
        e("s_branch %s" % lx)
    kb.label("L_k2_end")
    return kb.text()
```

```python
from asmlib import *
from layout import *
import os

def gen_k1():
    kb = KB("k1")
    e = kb.e
    sW_ID, sM, sH = 3, 4, 5
    SRD_CKV, SRD_X, SRD_W1, SRD_WQ, SRD_XB, SRD_BM, SRD_WS = 32, 36, 40, 44, 48, 52, 56
    sA, sW, sMA, sMW, sCnt, sT, sT2 = 60, 61, 62, 63, 64, 65, 66
    sA2, sW2 = 67, 68
    sGX, sGB = 69, 70
    sGT_, sGC = 71, 72
    sEp = 73
    vL, vR, vHI, vI16, vG4 = 1, 2, 3, 4, 5
    vOffA = 8
    vOffW = 12
    vGB = 13
    vL16 = 14
    vGst = 15
    vA = 16
    vW = 20
    vPA = 24
    vA2 = 28
    vW2 = 22
    TMP = 32
    FA = 64
    FW = 96
    vGacc = 112
    ACC = 128

    e("s_cmp_ge_u32 s2, 256")
    e("s_cbranch_scc1 L_k1_end")
    kb.stamp(0)
    kb.wgtime_begin()
    e("s_load_dwordx16 s[8:23], s[0:1], 0")
    e("s_load_dwordx4 s[24:27], s[0:1], %d" % KA['bre'])
    e("s_load_dwordx2 s[28:29], s[0:1], %d" % KA['ws'])
    e("s_load_dwordx4 s[76:79], s[0:1], %d" % KA['cre'])
    e("v_and_b32 v%d, 63, v0" % vL)
    e("v_lshrrev_b32 v2, 6, v0")
    e("s_nop 0")
    e("v_readfirstlane_b32 s%d, v2" % sW_ID)
    e("v_and_b32 v%d, 31, v%d" % (vR, vL))
    e("v_lshrrev_b32 v%d, 5, v%d" % (vHI, vL))
    e("v_and_b32 v%d, 15, v%d" % (vI16, vL))
    e("v_lshrrev_b32 v%d, 4, v%d" % (vG4, vL))
    e("v_lshlrev_b32 v%d, 4, v%d" % (vL16, vL))
    e("s_and_b32 s%d, s2, 7" % sT)
    e("s_lshl_b32 s%d, s%d, 2" % (sT, sT))
    e("s_lshr_b32 s%d, s2, 3" % sT2)
    e("s_and_b32 s%d, s%d, 3" % (sT2, sT2))
    e("s_add_u32 s%d, s%d, s%d" % (sH, sT, sT2))
    e("s_lshr_b32 s%d, s2, 5" % sM)
    e("s_and_b32 s%d, s2, 15" % sGT_)
    e("s_lshr_b32 s%d, s2, 4" % sGC)
    e("v_lshrrev_b32 v32, 3, v%d" % vL)
    e("v_lshlrev_b32 v32, 10, v32")
    e("v_and_b32 v33, 7, v%d" % vL)
    e("v_xor_b32 v34, v33, v%d" % vG4)
    e("v_xor_b32 v35, 4, v34")
    e("v_lshl_add_u32 v%d, v34, 4, v32" % (vOffA + 0))
    e("v_lshl_add_u32 v%d, v35, 4, v32" % (vOffA + 1))
    e("v_add_u32 v%d, %d, v%d" % (vOffA + 2, 2 * 7168, vOffA + 0))
    e("v_add_u32 v%d, %d, v%d" % (vOffA + 3, 3 * 7168, vOffA + 1))
    e("s_and_b32 s%d, s%d, 1" % (sT, sW_ID))
    e("s_cmp_eq_u32 s%d, 1" % sT)
    e("s_cselect_b64 vcc, -1, 0")
    e("v_cndmask_b32 v%d, v%d, v%d, vcc" % (vGB, vOffA + 0, vOffA + 1))
    e("v_add_u32 v%d, %d, v%d" % (vOffA + 1, 7168, vOffA + 1))
    e("v_lshrrev_b32 v32, 2, v%d" % vL)
    e("v_and_b32 v32, 3, v32")
    e("v_xor_b32 v32, v32, v%d" % vG4)
    e("v_lshlrev_b32 v32, 6, v32")
    e("v_lshl_add_u32 v32, v%d, 13, v32" % vG4)
    e("v_and_b32 v33, 3, v%d" % vL)
    e("v_lshl_add_u32 v%d, v33, 4, v32" % vOffW)
    e("v_lshrrev_b32 v32, 1, v%d" % vR)
    e("v_and_b32 v32, 7, v32")
    for ks in range(4):
        e("v_add_u32 v33, %d, v%d" % (2 * ks, vHI))
        e("v_xor_b32 v33, v33, v32")
        e("v_lshlrev_b32 v33, 4, v33")
        e("v_lshl_add_u32 v%d, v%d, 7, v33" % (vPA + ks, vR))
    e("v_lshrrev_b32 v34, 2, v%d" % vI16)
    e("v_lshl_add_u32 v35, v%d, 3, v34" % vHI)
    e("v_lshlrev_b32 v35, 8, v35")
    e("v_and_b32 v36, 1, v%d" % vG4)
    e("v_lshl_add_u32 v35, v36, 5, v35")
    e("v_and_b32 v36, 3, v%d" % vI16)
    e("v_lshl_add_u32 v35, v36, 3, v35")
    e("s_lshr_b32 s%d, s%d, 1" % (sT, sW_ID))
    e("s_and_b32 s%d, s%d, 1" % (sT, sT))
    e("s_lshl_b32 s%d, s%d, 1" % (sT, sT))
    e("s_lshr_b32 s%d, s%d, 2" % (sT2, sW_ID))
    e("s_lshl_b32 s%d, s%d, 14" % (sT2, sT2))
    e("s_add_u32 s%d, s%d, 32768" % (sT2, sT2))
    for nb in range(2):
        e("v_add_u32 v36, %d, v34" % 0)
        e("v_xor_b32 v36, s%d, v36" % sT)
        if nb:
            e("v_xor_b32 v36, 1, v36")
        e("v_lshl_add_u32 v36, v36, 6, v35")
        e("v_add_u32 v%d, s%d, v36" % (vW + nb, sT2))
    e("s_lshr_b32 s%d, s%d, 2" % (sT, sW_ID))
    e("s_lshl_b32 s%d, s%d, 1" % (sT, sT))
    for nb in range(2):
        e("v_xor_b32 v36, s%d, v34" % sT)
        if nb:
            e("v_xor_b32 v36, 1, v36")
        e("v_lshl_add_u32 v36, v36, 6, v35")
        e("v_add_u32 v%d, 0x8000, v36" % (vW2 + nb))
    e("s_and_b32 s%d, s%d, 1" % (sT, sW_ID))
    e("s_lshl_b32 s%d, s%d, 14" % (sT, sT))
    e("s_and_b32 s%d, s%d, 3" % (sT2, sW_ID))
    e("s_lshl_b32 s%d, s%d, 13" % (sT2, sT2))
    for ks in range(4):
        e("v_add_u32 v%d, s%d, v%d" % (vA + ks, sT, vPA + ks))
        e("v_add_u32 v%d, s%d, v%d" % (vA2 + ks, sT2, vPA + ks))
    e("v_lshlrev_b32 v36, 4, v%d" % vHI)
    e("v_lshl_add_u32 v%d, v%d, 13, v36" % (vGst, vR))
    for i in range(128):
        e("v_mov_b32 v%d, 0" % (ACC + i))
    for i in range(16):
        e("v_mov_b32 v%d, 0" % (vGacc + i))
    e("s_waitcnt lgkmcnt(0)")
    kb.srd(SRD_X, 8, 2048 * 1024)
    kb.srd(SRD_CKV, 10, 2048 * 1024)
    kb.srd(SRD_WQ, 12, 512 * 8192)
    e("s_cmp_lt_u32 s%d, 4" % sW_ID)
    e("s_cselect_b32 s%d, s14, s16" % SRD_W1)
    e("s_cselect_b32 s%d, s15, s17" % (SRD_W1 + 1))
    e("s_mov_b32 s%d, 0x%x" % (SRD_W1 + 2, 512 * 8192))
    e("s_mov_b32 s%d, 0x00020000" % (SRD_W1 + 3))
    kb.srd(SRD_XB, 20, 2048 * 1024)
    e("s_and_b32 s%d, s%d, 1" % (sT, sGC))
    e("s_cmp_eq_u32 s%d, 0" % sT)
    e("s_cselect_b32 s%d, s24, s26" % SRD_BM)
    e("s_cselect_b32 s%d, s25, s27" % (SRD_BM + 1))
    e("s_mov_b32 s%d, 0x%x" % (SRD_BM + 2, 512 * 1024))
    e("s_mov_b32 s%d, 0x00020000" % (SRD_BM + 3))
    kb.srd(SRD_WS, 28, WS_BYTES)
    e("s_cmp_lt_u32 s%d, 4" % sW_ID)
    e("s_cbranch_scc1 L_k1_nocf")
    e("s_lshl_b32 s%d, s2, 2" % sT)
    e("s_add_u32 s%d, s%d, s%d" % (sT, sT, sW_ID))
    e("s_sub_u32 s%d, s%d, 4" % (sT, sT))
    e("s_lshl_b32 s75, s%d, 10" % sT)
    e("s_add_u32 s75, s75, 0x%x" % CFR)
    e("s_and_b32 s%d, s%d, 63" % (sT2, sT))
    e("s_lshl_b32 s%d, s%d, 4" % (sT2, sT2))
    e("s_lshr_b32 s%d, s%d, 6" % (sT, sT))
    e("s_lshl_b32 s%d, s%d, 15" % (sT, sT))
    e("s_add_u32 s%d, s%d, s%d" % (sT, sT, sT2))
    e("v_lshlrev_b32 v6, 3, v%d" % vHI)
    e("v_lshl_add_u32 v6, v%d, 10, v6" % vR)
    e("s_mov_b32 s28, s76"); e("s_mov_b32 s29, s77"); e("s_mov_b32 s30, 0x80000"); e("s_mov_b32 s31, 0x00020000")
    e("buffer_load_dwordx2 v[96:97], v6, s[28:31], s%d offen" % sT)
    e("s_mov_b32 s28, s78"); e("s_mov_b32 s29, s79")
    e("s_nop 0")
    e("buffer_load_dwordx2 v[98:99], v6, s[28:31], s%d offen" % sT)
    kb.label("L_k1_nocf")
    e("s_lshl_b32 s%d, s%d, 18" % (sA, sM))
    e("s_lshl_b32 s%d, s%d, 15" % (sT, sW_ID))
    e("s_add_u32 s%d, s%d, s%d" % (sA, sA, sT))
    e("s_mov_b32 s%d, s%d" % (sA2, sA))
    e("s_and_b32 s%d, s%d, 3" % (sT, sW_ID))
    e("s_lshl_b32 s%d, s%d, 17" % (sT, sT))
    e("s_lshl_b32 s%d, s%d, 8" % (sT2, sH))
    e("s_add_u32 s%d, s%d, s%d" % (sW, sT, sT2))
    e("s_lshl_b32 s%d, s%d, 16" % (sT, sW_ID))
    e("s_add_u32 s%d, s%d, s%d" % (sW2, sT, sT2))
    e("s_lshl_b32 s%d, s%d, 17" % (sGX, sGT_))
    e("s_lshl_b32 s%d, s%d, 14" % (sT, sW_ID))
    e("s_add_u32 s%d, s%d, s%d" % (sGX, sGX, sT))
    e("s_lshr_b32 s%d, s%d, 1" % (sT, sGC))
    e("s_lshl_b32 s%d, s%d, 16" % (sGB, sT))
    e("s_lshl_b32 s%d, s%d, 13" % (sT, sW_ID))
    e("s_add_u32 s%d, s%d, s%d" % (sGB, sGB, sT))
    e("s_lshl_b32 s%d, s%d, 12" % (sMA, sW_ID))
    e("s_add_u32 s%d, s%d, 32768" % (sMW, sMA))

    pending = []
    sDT = 74
    def drain(n=1):
        for _ in range(n):
            if pending:
                pending.pop(0)()
    def drain_all():
        while pending:
            pending.pop(0)()
    def pieces_p1(tag):
        out = []
        for n in range(4):
            def f(n=n):
                if n == 0:
                    e("s_mov_b32 m0, s%d" % sMA)
                    e("s_nop 0")
                kb.vmem("buffer_load_dwordx4 v%d, %s, s%d offen offset:%d lds" % (vOffA + n, sr(SRD_CKV, 4), sA, 1024 * n), tag)
            out.append(f)
        for n in range(4):
            def f(n=n):
                if n == 0:
                    e("s_mov_b32 m0, s%d" % sMW)
                e("s_add_u32 s%d, s%d, %d" % (sDT, sW, n * 31744))
                kb.vmem("buffer_load_dwordx4 v%d, %s, s%d offen offset:%d lds" % (vOffW, sr(SRD_W1, 4), sDT, 1024 * n), tag)
                if n == 3:
                    e("s_add_u32 s%d, s%d, 128" % (sA, sA))
                    e("s_add_u32 s%d, s%d, %d" % (sW, sW, 64 * 8192))
                    e("s_xor_b32 s%d, s%d, 0x10000" % (sMA, sMA))
                    e("s_xor_b32 s%d, s%d, 0x10000" % (sMW, sMW))
            out.append(f)
        return out
    PB = [0, 65536, 114688]
    def pieces_p2(tag, buf):
        out = []
        for n in range(4):
            def f(n=n):
                if n == 0:
                    e("s_lshl_b32 s%d, s%d, 12" % (sDT, sW_ID))
                    e("s_add_u32 s%d, s%d, %d" % (sDT, sDT, buf))
                    e("s_mov_b32 m0, s%d" % sDT)
                    e("s_nop 0")
                kb.vmem("buffer_load_dwordx4 v%d, %s, s%d offen offset:%d lds" % (vOffA + n, sr(SRD_X, 4), sA2, 1024 * n), tag)
            out.append(f)
        for n in range(2):
            def f(n=n):
                if n == 0:
                    e("s_lshl_b32 s%d, s%d, 11" % (sDT, sW_ID))
                    e("s_add_u32 s%d, s%d, %d" % (sDT, sDT, buf + 32768))
                    e("s_mov_b32 m0, s%d" % sDT)
                e("s_add_u32 s%d, s%d, %d" % (sDT, sW2, n * 31744))
                kb.vmem("buffer_load_dwordx4 v%d, %s, s%d offen offset:%d lds" % (vOffW, sr(SRD_WQ, 4), sDT, 1024 * n), tag)
                if n == 1:
                    e("s_add_u32 s%d, s%d, 128" % (sA2, sA2))
                    e("s_add_u32 s%d, s%d, %d" % (sW2, sW2, 64 * 8192))
            out.append(f)
        return out
    def dma_p1(tag, now=False):
        pending.extend(pieces_p1(tag))
        if now: drain_all()
    def dma_p2(j, now=False):
        pending.extend(pieces_p2(("p2", j), PB[j % 3]))
        if now: drain_all()
    def dma_g(didx, dbase, tag, now=False):
        for q in range(2):
            koff = (2 * didx + q) * 128
            for n in range(2):
                def f(n=n, q=q, koff=koff):
                    if n == 0:
                        e("s_lshl_b32 s%d, s%d, 11" % (sDT, sW_ID))
                        e("s_add_u32 s%d, s%d, %d" % (sDT, sDT, dbase + q * 24576))
                        e("s_mov_b32 m0, s%d" % sDT)
                    e("s_add_u32 s%d, s%d, %d" % (sDT, sGX, koff))
                    kb.vmem("buffer_load_dwordx4 v%d, %s, s%d offen offset:%d lds" % (vOffA + n, sr(SRD_XB, 4), sDT, 1024 * n), tag)
                pending.append(f)
            def f2(q=q, koff=koff):
                e("s_lshl_b32 s%d, s%d, 10" % (sDT, sW_ID))
                e("s_add_u32 s%d, s%d, %d" % (sDT, sDT, dbase + q * 24576 + 16384))
                e("s_mov_b32 m0, s%d" % sDT)
                e("s_add_u32 s%d, s%d, %d" % (sDT, sGB, koff))
                kb.vmem("buffer_load_dwordx4 v%d, %s, s%d offen lds" % (vGB, sr(SRD_BM, 4), sDT), tag)
            pending.append(f2)
        if now: drain_all()

    def g_half(d0, d1):
        areas = [FA, TMP]
        subs = [(d0, 0), (d0, 1), (d1, 0), (d1, 1)]
        e("s_and_b32 s%d, s%d, 3" % (sT, sW_ID))
        e("s_lshl_b32 s%d, s%d, 12" % (sT, sT))
        e("s_lshr_b32 s%d, s%d, 2" % (sT2, sW_ID))
        e("s_lshl_b32 s%d, s%d, 12" % (sT2, sT2))
        e("s_add_u32 s%d, s%d, 16384" % (sT2, sT2))
        def reads(si):
            d, q = subs[si]
            ar = areas[si & 1]
            for ks in range(4):
                e("v_add_u32 v6, s%d, v%d" % (sT, vPA + ks))
                e("v_add_u32 v7, s%d, v%d" % (sT2, vPA + ks))
                e("v_add_u32 v6, 0x%x, v6" % d)
                e("v_add_u32 v7, 0x%x, v7" % d)
                kb.ds("ds_read_b128 %s, v6 offset:%d" % (vr(ar + 8 * ks, 4), q * 24576), ("g", si, ks))
                kb.ds("ds_read_b128 %s, v7 offset:%d" % (vr(ar + 8 * ks + 4, 4), q * 24576), ("g", si, ks))
        def mf(si):
            ar = areas[si & 1]
            for ks in range(4):
                kb.wait_ds(("g", si, ks))
                e("v_mfma_f32_32x32x16_bf16 %s, %s, %s, %s" % (vr(vGacc, 16), vr(ar + 8 * ks, 4), vr(ar + 8 * ks + 4, 4), vr(vGacc, 16)))
        reads(0); reads(1); mf(0); reads(2); mf(1); reads(3); mf(2); mf(3)

    GS = 131072
    def dma_gsub(sub, tag, now=False, GS=GS):
        koff = sub * 128
        for n in range(2):
            def f(n=n):
                if n == 0:
                    e("s_lshl_b32 s%d, s%d, 11" % (sDT, sW_ID))
                    e("s_add_u32 s%d, s%d, %d" % (sDT, sDT, GS))
                    e("s_mov_b32 m0, s%d" % sDT)
                e("s_add_u32 s%d, s%d, %d" % (sDT, sGX, koff))
                kb.vmem("buffer_load_dwordx4 v%d, %s, s%d offen offset:%d lds" % (vOffA + n, sr(SRD_XB, 4), sDT, 1024 * n), tag)
            pending.append(f)
        def f2():
            e("s_lshl_b32 s%d, s%d, 10" % (sDT, sW_ID))
            e("s_add_u32 s%d, s%d, %d" % (sDT, sDT, GS + 16384))
            e("s_mov_b32 m0, s%d" % sDT)
            e("s_add_u32 s%d, s%d, %d" % (sDT, sGB, koff))
            kb.vmem("buffer_load_dwordx4 v%d, %s, s%d offen lds" % (vGB, sr(SRD_BM, 4), sDT), tag)
        pending.append(f2)
        if now: drain_all()
    def g_sub_compute(base, area):
        for ks in range(4):
            def f(ks=ks):
                e("v_add_u32 v6, s6, v%d" % (vPA + ks))
                e("v_add_u32 v7, s7, v%d" % (vPA + ks))
                if base >= 32768:
                    e("v_add_u32 v6, 0x%x, v6" % base)
                    e("v_add_u32 v7, 0x%x, v7" % base)
                off = base if base < 32768 else 0
                kb.ds("ds_read_b128 %s, v6 offset:%d" % (vr(area + 8 * ks, 4), off), ("gs", area, ks))
                kb.ds("ds_read_b128 %s, v7 offset:%d" % (vr(area + 8 * ks + 4, 4), off), ("gs", area, ks))
            pending.append(f)
        for ks in range(4):
            def f(ks=ks):
                kb.wait_ds(("gs", area, ks))
                e("v_mfma_f32_32x32x16_bf16 %s, %s, %s, %s" % (vr(vGacc, 16), vr(area + 8 * ks, 4), vr(area + 8 * ks + 4, 4), vr(vGacc, 16)))
            pending.append(f)

    class Cfg: pass
    def mkcfg(nA, va, vw, ktype):
        c = Cfg(); c.nA = nA; c.va = va; c.vw = vw; c.ktype = ktype; return c
    def frag_reads(cfg, ks, st):
        fa = FA + 16 * st; fw = FW + 8 * st
        kb.ds("ds_read_b128 %s, v%d" % (vr(fa, 4), cfg.va + ks), ("A", st, 0))
        for nb in range(2):
            for j in range(2):
                kb.ds("ds_read_b64_tr_b16 %s, v%d offset:%d" % (vr(fw + 4 * nb + 2 * j, 2), cfg.vw + nb, 4096 * ks + 1024 * j), ("W", st, nb))
        for rb in range(1, cfg.nA):
            kb.ds("ds_read_b128 %s, v%d offset:%d" % (vr(fa + 4 * rb, 4), cfg.va + ks, 4096 * rb), ("A", st, rb))
    def toggle(cfg):
        for ks in range(4):
            e("v_xor_b32 v%d, 0x10000, v%d" % (cfg.va + ks, cfg.va + ks))
        for nb in range(2):
            e("v_xor_b32 v%d, 0x10000, v%d" % (cfg.vw + nb, cfg.vw + nb))
    def mfmas(cfg, st, zero=False):
        fa = FA + 16 * st; fw = FW + 8 * st
        for rb in range(cfg.nA):
            for nb in range(2):
                kb.wait_ds(("A", st, rb)); kb.wait_ds(("W", st, nb))
                acc = vr(ACC + 16 * (2 * rb + nb), 16)
                a, b = vr(fa + 4 * rb, 4), vr(fw + 4 * nb, 4)
                if cfg.ktype:
                    a, b = b, a
                e("v_mfma_f32_32x32x16_bf16 %s, %s, %s, %s" % (acc, a, b, "0" if zero else acc))
                if cfg.nA == 2 or nb == 1 or os.environ.get("P1FAST"):
                    drain()
    def stage(cfg, need_tag, sync_action, next_reads, zero=False, allow_pending=False):
        for ks in range(4):
            cur = ks & 1
            if ks < 3:
                frag_reads(cfg, ks + 1, cur ^ 1)
            else:
                assert not pending or allow_pending, pending
                kb.wait_ds_all()
                if need_tag is None:
                    kb.wait_vm_all()
                else:
                    kb.wait_vm(need_tag)
                e("s_barrier")
                sync_action()
                next_reads()
            mfmas(cfg, cur, zero and ks == 0)

    hook = [None]
    def pack_store(acc, soff_sgpr, off0, tset, scale=None):
        for half in range(2):
            t = TMP + 4 * ((2 * tset + half) % 8)
            if scale is not None:
                for k in range(8):
                    e("v_mul_f32 v%d, s%d, v%d" % (acc + 8 * half + k, scale, acc + 8 * half + k))
            for k in range(4):
                e("v_cvt_pk_bf16_f32 v%d, v%d, v%d" % (t + k, acc + 8 * half + 2 * k, acc + 8 * half + 2 * k + 1))
            kb.vmem("buffer_store_dwordx4 %s, v%d, %s, s%d offen offset:%d" % (vr(t, 4), vL16, sr(SRD_WS, 4), soff_sgpr, off0 + 1024 * half), "st")
            if hook[0]: hook[0]()

    def wo_issue():
        e("s_mov_b32 s28, s18"); e("s_mov_b32 s29, s19"); e("s_mov_b32 s30, 0x400000"); e("s_mov_b32 s31, 0x00020000")
        e("v_lshrrev_b32 v32, 2, v%d" % vL)
        e("v_xor_b32 v32, v32, v%d" % vG4)
        e("v_and_b32 v32, 1, v32")
        e("v_lshlrev_b32 v32, 6, v32")
        e("v_lshrrev_b32 v33, 3, v%d" % vL)
        e("v_lshl_add_u32 v32, v33, 10, v32")
        e("v_and_b32 v33, 3, v%d" % vL)
        e("v_lshl_add_u32 v32, v33, 4, v32")
        e("v_add_u32 v33, 7168, v32")
        e("s_lshl_b32 s%d, s%d, 11" % (sT, sW_ID))
        e("s_add_u32 s%d, s%d, 49152" % (sT, sT))
        e("s_mov_b32 m0, s%d" % sT)
        e("s_lshl_b32 s%d, s2, 14" % sT2)
        e("s_lshl_b32 s%d, s%d, 7" % (sT, sW_ID))
        e("s_add_u32 s%d, s%d, s%d" % (sT2, sT2, sT))
        kb.vmem("buffer_load_dwordx4 v32, s[28:31], s%d offen lds" % sT2, "wo")
        kb.vmem("buffer_load_dwordx4 v33, s[28:31], s%d offen offset:1024 lds" % sT2, "wo")
    def wo_finish():
        kb.wait_vm("wo")
        e("v_lshrrev_b32 v34, 2, v%d" % vI16)
        e("v_lshl_add_u32 v34, v%d, 2, v34" % vHI)
        e("v_lshlrev_b32 v34, 7, v34")
        e("v_and_b32 v35, 1, v%d" % vG4)
        e("v_lshl_add_u32 v34, v35, 5, v34")
        e("v_and_b32 v35, 3, v%d" % vI16)
        e("v_lshl_add_u32 v34, v35, 3, v34")
        e("s_lshl_b32 s%d, s%d, 11" % (sT, sW_ID))
        e("s_add_u32 s%d, s%d, 49152" % (sT, sT))
        e("v_add_u32 v34, s%d, v34" % sT)
        e("v_lshrrev_b32 v35, 3, v%d" % vI16)
        e("v_lshl_add_u32 v32, v35, 6, v34")
        e("v_xor_b32 v35, 1, v35")
        e("v_lshl_add_u32 v33, v35, 6, v34")
        for nb in range(2):
            for jj in range(2):
                kb.ds("ds_read_b64_tr_b16 %s, v%d offset:%d" % (vr(40 + 4 * nb + 2 * jj, 2), 32 + nb, 1024 * jj), "wot")
        e("s_lshl_b32 s%d, s%d, 19" % (sT, sW_ID))
        e("s_lshl_b32 s%d, s2, 10" % sT2)
        e("s_add_u32 s%d, s%d, s%d" % (sT, sT, sT2))
        e("s_add_u32 s%d, s%d, 0x%x" % (sT, sT, WOF))
        e("s_add_u32 s%d, s%d, 0x40000" % (sT2, sT))
        kb.wait_ds("wot")
        kb.vmem("buffer_store_dwordx4 v[40:43], v%d, %s, s%d offen" % (vL16, sr(SRD_WS, 4), sT), "st")
        kb.vmem("buffer_store_dwordx4 v[44:47], v%d, %s, s%d offen" % (vL16, sr(SRD_WS, 4), sT2), "st")
    dma_p1("p1s0", now=True)
    dma_p1("p1", now=True)
    dma_gsub(0, "p1", now=True)
    e("s_and_b32 s6, s%d, 3" % sW_ID)
    e("s_lshl_b32 s6, s6, 12")
    e("s_lshr_b32 s7, s%d, 2" % sW_ID)
    e("s_lshl_b32 s7, s7, 12")
    e("s_add_u32 s7, s7, 16384")
    kb.stamp(1)
    kb.wait_vm("p1s0")
    e("s_barrier")
    kb.stamp(3)
    e("s_cmp_lt_u32 s%d, 4" % sW_ID)
    e("s_cbranch_scc1 L_k1_nocf2")
    e("v_swap_b32 v97, v98")
    e("buffer_store_dwordx4 v[96:99], v%d, %s, s75 offen" % (vL16, sr(SRD_WS, 4)))
    e("s_nop 1")
    kb.label("L_k1_nocf2")

    def body(ktype):
        c1 = mkcfg(4, vA, vW, ktype)
        c2 = mkcfg(2, vA2, vW2, True)
        kb.lg = []; kb.vm = ["p1"] * 11
        frag_reads(c1, 0, 0)
        for j in range(8):
            def act(j=j):
                if j <= 5:
                    dma_p1("p1")
                if j == 2 and os.environ.get("PFQ"):
                    def pf():
                        e("s_lshl_b32 s%d, s2, 3" % sDT)
                        e("s_add_u32 s%d, s%d, s%d" % (sDT, sDT, sW_ID))
                        e("s_lshl_b32 s%d, s%d, 10" % (sDT, sDT))
                        kb.vmem("buffer_load_dwordx4 %s, v%d, %s, s%d offen" % (vr(TMP, 4), vL16, sr(SRD_X, 4), sDT), "p1")
                        e("s_lshl_b32 s%d, s%d, 1" % (sDT, sDT))
                        for n in range(2):
                            kb.vmem("buffer_load_dwordx4 %s, v%d, %s, s%d offen offset:%d" % (vr(TMP, 4), vL16, sr(SRD_WQ, 4), sDT, 1024 * n), "p1")
                    pending.append(pf)
                if j == 6:
                    wo_issue()
                    dma_gsub(1, "g12", GS=0); dma_gsub(2, "g12", GS=24576)
                if j == 7:
                    dma_gsub(3, "g34", GS=65536); dma_gsub(4, "g34", GS=65536 + 24576)
                if j < 7:
                    toggle(c1)
            stage(c1, None, act, (lambda: frag_reads(c1, 0, 0)) if j < 7 else (lambda: None))
        kb.stamp(4)
        drain_all()
        g_sub_compute(GS, FA); g_sub_compute(0, TMP); g_sub_compute(24576, FA)
        ops = list(pending); del pending[:]
        order = ops[0:4] + ops[8:12] + ops[4:8] + ops[16:20] + ops[12:16] + ops[20:24]
        for f in order: f()
        kb.wait_ds_all()
        kb.wait_vm("g34")
        e("s_barrier")
        dma_gsub(5, "g567", now=True); dma_gsub(6, "g567", now=True, GS=0); dma_gsub(7, "g567", now=True, GS=24576)
        wo_finish()
        g_sub_compute(65536, FA); g_sub_compute(65536 + 24576, FA + 0)
        nst = [0]
        def after_store():
            nst[0] += 1
            drain(2)
            if nst[0] == 10:
                drain_all()
                kb.wait_ds_all()
                kb.wait_vm("g567")
                e("s_barrier")
                g_sub_compute(GS, FA); g_sub_compute(0, FA); g_sub_compute(24576, FA)
            if nst[0] > 10:
                drain(2)
        hook[0] = after_store
        e("s_lshl_b32 s%d, s%d, 19" % (sEp, sH))
        e("s_and_b32 s%d, s%d, 1" % (sT, sW_ID))
        e("s_lshr_b32 s%d, s%d, 1" % (sT2, sW_ID))
        e("s_and_b32 s%d, s%d, 1" % (sT2, sT2))
        if ktype:
            import k2
            e("s_mov_b32 s%d, 0x%x" % (sCnt, k2.f32bits(k2.QSCALE)))
            e("s_lshl_b32 s%d, s%d, 15" % (sT, sT))
            e("s_add_u32 s%d, s%d, s%d" % (sEp, sEp, sT))
            e("s_lshl_b32 s%d, s%d, 16" % (sT, sM))
            e("s_add_u32 s%d, s%d, s%d" % (sEp, sEp, sT))
            e("s_lshl_b32 s%d, s%d, 12" % (sT2, sT2))
            e("s_add_u32 s%d, s%d, s%d" % (sEp, sEp, sT2))
            e("s_add_u32 s%d, s%d, 0x%x" % (sEp, sEp, KF))
            for rb in range(4):
                e("s_add_u32 s%d, s%d, %d" % (sT, sEp, rb * 8192))
                for nb in range(2):
                    pack_store(ACC + 16 * (2 * rb + nb), sT, nb * 2048, 2 * rb + nb, scale=sCnt)
        else:
            e("s_lshl_b32 s%d, s%d, 15" % (sT, sT))
            e("s_add_u32 s%d, s%d, s%d" % (sEp, sEp, sT))
            e("s_lshl_b32 s%d, s%d, 16" % (sT, sM))
            e("s_add_u32 s%d, s%d, s%d" % (sEp, sEp, sT))
            e("s_lshl_b32 s%d, s%d, 13" % (sT2, sT2))
            e("s_add_u32 s%d, s%d, s%d" % (sEp, sEp, sT2))
            e("s_add_u32 s%d, s%d, 0x%x" % (sEp, sEp, VF))
            for rb in range(4):
                for nb in range(2):
                    e("s_add_u32 s%d, s%d, %d" % (sT, sEp, (rb >> 1) * 16384 + nb * 4096))
                    pack_store(ACC + 16 * (2 * rb + nb), sT, (rb & 1) * 2048, 2 * rb + nb)
        drain_all()
        hook[0] = None
        e("s_branch L_k1_phase2")

    e("s_cmp_lt_u32 s%d, 4" % sW_ID)
    e("s_cbranch_scc0 L_k1_vtype")
    body(True)
    lgA, vmA = list(kb.lg), list(kb.vm)
    kb.label("L_k1_vtype")
    body(False)
    assert kb.lg == lgA and kb.vm == vmA
    kb.label("L_k1_phase2")
    kb.stamp(5)
    kb.stamp(6)
    kb.nop(16)
    e("s_and_b32 s%d, s%d, 1" % (sT, sGC))
    e("s_lshl_b32 s%d, s%d, 22" % (sEp, sT))
    e("s_lshr_b32 s%d, s%d, 1" % (sT, sGC))
    e("s_lshl_b32 s%d, s%d, 19" % (sT, sT))
    e("s_add_u32 s%d, s%d, s%d" % (sEp, sEp, sT))
    e("s_lshr_b32 s%d, s%d, 2" % (sT, sW_ID))
    e("s_lshl_b32 s%d, s%d, 18" % (sT, sT))
    e("s_add_u32 s%d, s%d, s%d" % (sEp, sEp, sT))
    e("s_lshl_b32 s%d, s%d, 9" % (sT, sGT_))
    e("s_add_u32 s%d, s%d, s%d" % (sEp, sEp, sT))
    e("s_and_b32 s%d, s%d, 3" % (sT, sW_ID))
    e("s_lshl_b32 s%d, s%d, 7" % (sT, sT))
    e("s_add_u32 s%d, s%d, s%d" % (sEp, sEp, sT))
    e("s_add_u32 s%d, s%d, 0x%x" % (sEp, sEp, GT))
    for q in range(4):
        e("buffer_store_dwordx4 %s, v%d, %s, s%d offen offset:%d" % (vr(vGacc + 4 * q, 4), vGst, sr(SRD_WS, 4), sEp, 32 * q))
    kb.stamp(7)
    kb.dump_stamps([0,1,3,4,5,6,7,7], sW_ID, 100)
    kb.wgtime_end(SRD_WS, 0)
    kb.label("L_k1_end")
    return kb.text()
```

```python
from asmlib import *
from layout import *
import os

def gen_k3():
    kb = KB("k3")
    e = kb.e
    sW_ID, sQT, sNT = 3, 4, 5
    SRD_WS, SRD_XB, SRD_DSK, SRD_OUT = 32, 44, 48, 52
    sT, sT2, sCx0, sCx1, sWo0, sWo1, sH0, sH1, sC0, sC1, sMb, sOut = range(56, 68)
    vL, vR, vHI, vL16, vO = range(1, 6)
    XD, RING, ACC, ACC2 = 16, 32, 128, 192
    D = 6

    e("s_cmp_ge_u32 s2, 256")
    e("s_cbranch_scc1 L_k3_end")
    kb.stamp(0)
    kb.wgtime_begin()
    e("s_load_dwordx2 s[10:11], s[0:1], %d" % KA['xb'])
    e("s_load_dwordx4 s[16:19], s[0:1], %d" % KA['dskip'])
    e("s_load_dwordx2 s[28:29], s[0:1], %d" % KA['ws'])
    e("v_and_b32 v%d, 63, v0" % vL)
    e("v_lshrrev_b32 v2, 6, v0")
    e("s_nop 0")
    e("v_readfirstlane_b32 s%d, v2" % sW_ID)
    e("v_and_b32 v%d, 31, v%d" % (vR, vL))
    e("v_lshrrev_b32 v%d, 5, v%d" % (vHI, vL))
    e("v_lshlrev_b32 v%d, 4, v%d" % (vL16, vL))
    e("s_and_b32 s%d, s2, 7" % sT)
    e("s_lshl_b32 s%d, s%d, 2" % (sT, sT))
    e("s_lshr_b32 s%d, s2, 3" % sT2)
    e("s_and_b32 s%d, s%d, 3" % (sT2, sT2))
    e("s_add_u32 s%d, s%d, s%d" % (sQT, sT, sT2))
    e("s_lshr_b32 s%d, s2, 5" % sNT)
    e("s_lshl_b32 s%d, s%d, 14" % (sMb, sW_ID))
    e("v_lshlrev_b32 v13, 4, v%d" % vHI)
    e("v_lshl_add_u32 v%d, v%d, 12, v13" % (vO, vR))
    e("s_lshl_b32 s%d, s%d, 19" % (sT, sQT))
    e("s_lshl_b32 s%d, s%d, 15" % (sT2, sW_ID))
    e("s_add_u32 s%d, s%d, s%d" % (sT, sT, sT2))
    e("s_add_u32 s%d, s%d, 0x%x" % (sCx0, sT, CF))
    e("s_add_u32 s%d, s%d, 0x40000" % (sCx1, sCx0))
    e("s_lshl_b32 s%d, s%d, 19" % (sT, sNT))
    e("s_add_u32 s%d, s%d, s%d" % (sT, sT, sT2))
    e("s_add_u32 s%d, s%d, 0x%x" % (sWo0, sT, WOF))
    e("s_add_u32 s%d, s%d, 0x40000" % (sWo1, sWo0))
    e("s_lshl_b32 s%d, s%d, 17" % (sT, sQT))
    e("s_lshl_b32 s%d, s%d, 13" % (sT2, sW_ID))
    e("s_add_u32 s%d, s%d, s%d" % (sT, sT, sT2))
    e("s_add_u32 s%d, s%d, 0x%x" % (sH0, sT, HF))
    e("s_add_u32 s%d, s%d, 0x10000" % (sH1, sH0))
    e("s_lshl_b32 s%d, s%d, 17" % (sT, sNT))
    e("s_add_u32 s%d, s%d, s%d" % (sT, sT, sT2))
    e("s_add_u32 s%d, s%d, 0x%x" % (sC0, sT, CFR))
    e("s_add_u32 s%d, s%d, 0x10000" % (sC1, sC0))
    e("s_waitcnt lgkmcnt(0)")
    kb.srd(SRD_WS, 28, WS_BYTES)
    kb.srd(SRD_XB, 10, 2048 * 1024)
    kb.srd(SRD_DSK, 16, 1024)
    kb.srd(SRD_OUT, 18, 2048 * 4096)

    NS = 40
    def load(j):
        ssm = j < 8
        jj = j if ssm else j - 8
        bases = (sH0, sH1, sC0, sC1) if ssm else (sCx0, sCx1, sWo0, sWo1)
        for q in range(4):
            off = jj * 1024
            if off < 4096:
                kb.vmem("buffer_load_dwordx4 %s, v%d, %s, s%d offen offset:%d" % (vr(RING + 16 * (j % D) + 4 * q, 4), vL16, sr(SRD_WS, 4), bases[q], off), ("L", j))
            else:
                e("s_add_u32 s%d, s%d, %d" % (sT, bases[q], off & ~4095))
                kb.vmem("buffer_load_dwordx4 %s, v%d, %s, s%d offen offset:%d" % (vr(RING + 16 * (j % D) + 4 * q, 4), vL16, sr(SRD_WS, 4), sT, off & 4095), ("L", j))
    for j in range(D):
        load(j)
    e("s_lshl_b32 s%d, s%d, 6" % (sT, sQT))
    e("s_lshl_b32 s%d, s%d, 3" % (sT2, sW_ID))
    e("s_add_u32 s%d, s%d, s%d" % (sT, sT, sT2))
    e("s_lshl_b32 s%d, s%d, 12" % (sOut, sT))
    e("s_lshl_b32 s%d, s%d, 8" % (sT2, sNT))
    e("s_add_u32 s%d, s%d, s%d" % (sOut, sOut, sT2))
    e("s_add_u32 s68, s%d, 16384" % sOut)
    e("s_lshl_b32 s%d, s%d, 10" % (sT, sT))
    e("s_lshl_b32 s%d, s%d, 7" % (sT2, sNT))
    e("s_add_u32 s%d, s%d, s%d" % (sT, sT, sT2))
    e("v_and_b32 v6, 15, v%d" % vL)
    e("v_lshrrev_b32 v7, 4, v%d" % vL)
    e("v_lshlrev_b32 v13, 3, v6")
    e("v_lshl_add_u32 v14, v7, 10, v13")
    e("v_lshlrev_b32 v%d, 4, v6" % vO)
    e("v_lshl_add_u32 v%d, v7, 12, v%d" % (vO, vO))
    e("s_add_u32 s69, s%d, 4096" % sT)
    kb.vmem("buffer_load_dwordx2 %s, v14, %s, s%d offen" % (vr(XD, 2), sr(SRD_XB, 4), sT), "xd")
    kb.vmem("buffer_load_dwordx2 %s, v14, %s, s69 offen" % (vr(XD + 2, 2), sr(SRD_XB, 4)), "xd")
    kb.vmem("buffer_load_dwordx2 %s, v13, %s, s%d offen" % (vr(XD + 4, 2), sr(SRD_DSK, 4), sT2), "xd")
    e("v_lshlrev_b32 v15, 4, v%d" % vHI)
    e("v_xor_b32 v15, v15, v%d" % vL16)
    e("v_add_u32 v15, s%d, v15" % sMb)
    e("s_lshr_b32 s%d, s%d, 2" % (sT, sW_ID))
    e("s_lshl_b32 s%d, s%d, 13" % (sT, sT))
    e("s_and_b32 s%d, s%d, 3" % (sT2, sW_ID))
    e("s_lshl_b32 s%d, s%d, 3" % (sT2, sT2))
    e("v_lshrrev_b32 v8, 1, v6")
    e("v_lshlrev_b32 v8, 10, v8")
    e("v_and_b32 v9, 1, v6")
    e("v_lshl_add_u32 v8, v9, 9, v8")
    e("v_add_u32 v8, s%d, v8" % sT)
    for ee in range(2):
        e("v_add_u32 v9, s%d, v7" % sT2)
        if ee:
            e("v_add_u32 v9, 4, v9")
        e("v_xor_b32 v9, v9, v6")
        e("v_lshl_add_u32 v%d, v9, 4, v8" % (10 + 2 * ee))
        e("v_add_u32 v%d, 0x10000, v%d" % (11 + 2 * ee, 10 + 2 * ee))
    kb.stamp(1)

    def write_partials(acc):
        for q in range(16):
            e("v_xor_b32 v14, 0x%x, v15" % ((q & 7) << 5))
            e("ds_write_b128 v14, %s offset:%d" % (vr(acc + 4 * q, 4), 1024 * q))
    def reduce_finish(T, ssm):
        for p in range(8):
            for ee in range(2):
                e("ds_read_b128 %s, v%d offset:%d" % (vr(T + 8 * p + 4 * ee, 4), 10 + 2 * ee + (p >> 2), (p & 3) * 16384))
        for p in range(1, 8):
            e("s_waitcnt lgkmcnt(%d)" % (14 - 2 * p))
            for k in range(8):
                e("v_add_f32 v%d, v%d, v%d" % (T + k, T + k, T + 8 * p + k))
        if not ssm:
            for k in range(4):
                e("v_cvt_pk_bf16_f32 v%d, v%d, v%d" % (T + 8 + k, T + 2 * k, T + 2 * k + 1))
            for k in range(4):
                e("v_lshlrev_b32 v%d, 16, v%d" % (T + 2 * k, T + 8 + k))
                e("v_and_b32 v%d, 0xffff0000, v%d" % (T + 2 * k + 1, T + 8 + k))
        else:
            kb.wait_vm("xd")
            for ee in range(2):
                for k in range(2):
                    xx, dd = XD + 2 * ee + k, XD + 4 + k
                    t = T + 8
                    e("v_lshlrev_b32 v%d, 16, v%d" % (t, xx))
                    e("v_and_b32 v%d, 0xffff0000, v%d" % (t + 1, xx))
                    e("v_lshlrev_b32 v%d, 16, v%d" % (t + 2, dd))
                    e("v_and_b32 v%d, 0xffff0000, v%d" % (t + 3, dd))
                    e("v_mul_f32 v%d, v%d, v%d" % (t, t, t + 2))
                    e("v_mul_f32 v%d, v%d, v%d" % (t + 1, t + 1, t + 3))
                    e("v_cvt_pk_bf16_f32 v%d, v%d, v%d" % (t, t, t + 1))
                    e("v_and_b32 v%d, 0xffff0000, v%d" % (t + 1, t))
                    e("v_lshlrev_b32 v%d, 16, v%d" % (t, t))
                    o = T + 4 * ee + 2 * k
                    e("v_fma_f32 v%d, 2.0, v%d, v%d" % (o, o, t))
                    e("v_fma_f32 v%d, 2.0, v%d, v%d" % (o + 1, o + 1, t + 1))
        for ee in range(2):
            kb.vmem("buffer_store_dwordx4 %s, v%d, %s, s%d offen offset:%d sc1" % (vr(T + 4 * ee, 4), vO, sr(SRD_OUT, 4), 68 if ee else sOut, 2048 if ssm else 0), "ost")

    for j in range(NS):
        kb.wait_vm(("L", j))
        acc0 = ACC2 if j < 8 else ACC
        first = j in (0, 8)
        sl = RING + 16 * (j % D)
        for qb in range(2):
            for nb in range(2):
                acc = vr(acc0 + 16 * (2 * qb + nb), 16)
                e("v_mfma_f32_32x32x16_bf16 %s, %s, %s, %s" % (acc, vr(sl + 8 + 4 * nb, 4), vr(sl + 4 * qb, 4), "0" if first else acc))
        if j + D < NS:
            load(j + D)
        if j == 11:
            write_partials(ACC2)
            e("s_waitcnt lgkmcnt(0)")
        if j == 17:
            e("s_barrier")
            reduce_finish(ACC2, True)
            kb.stamp(2)
        if j == 27:
            e("s_barrier")
    kb.stamp(5)
    kb.nop(16)
    write_partials(ACC)
    e("s_waitcnt lgkmcnt(0)")
    e("s_barrier")
    kb.stamp(6)
    reduce_finish(ACC2, False)
    kb.stamp(7)
    kb.dump_stamps([0, 1, 2, 5, 6, 7, 7, 7], sW_ID, 100)
    kb.wgtime_end(SRD_WS, int(os.environ.get('K3SLOT', '2')))
    kb.label("L_k3_end")
    return kb.text()
```

```python
from asmlib import *
from layout import *
import os

def gen_part1(kb):
    e = kb.e
    sW_ID, sM, sH = 3, 4, 5
    SRD_CKV, SRD_X, SRD_W1, SRD_WQ, SRD_XB, SRD_BM, SRD_WS = 32, 36, 40, 44, 48, 52, 56
    sA, sW, sMA, sMW, sCnt, sT, sT2 = 60, 61, 62, 63, 64, 65, 66
    sA2, sW2 = 67, 68
    sGX, sGB = 69, 70
    sGT_, sGC = 71, 72
    sEp = 73
    vL, vR, vHI, vI16, vG4 = 1, 2, 3, 4, 5
    vOffA = 8
    vOffW = 12
    vGB = 13
    vL16 = 14
    vGst = 15
    vA = 16
    vW = 20
    vPA = 24
    vA2 = 28
    vW2 = 22
    TMP = 32
    FA = 64
    FW = 96
    vGacc = 112
    ACC = 128

    e("s_cmp_ge_u32 s2, 256")
    e("s_cbranch_scc1 L_k2_end")
    kb.stamp(0)
    kb.wgtime_begin()
    e("s_load_dwordx16 s[8:23], s[0:1], 0")
    e("s_load_dwordx4 s[24:27], s[0:1], %d" % KA['bre'])
    e("s_load_dwordx2 s[28:29], s[0:1], %d" % KA['ws'])
    e("s_load_dwordx4 s[76:79], s[0:1], %d" % KA['cre'])
    e("v_and_b32 v%d, 63, v0" % vL)
    e("v_lshrrev_b32 v2, 6, v0")
    e("s_nop 0")
    e("v_readfirstlane_b32 s%d, v2" % sW_ID)
    e("v_and_b32 v%d, 31, v%d" % (vR, vL))
    e("v_lshrrev_b32 v%d, 5, v%d" % (vHI, vL))
    e("v_and_b32 v%d, 15, v%d" % (vI16, vL))
    e("v_lshrrev_b32 v%d, 4, v%d" % (vG4, vL))
    e("v_lshlrev_b32 v%d, 4, v%d" % (vL16, vL))
    e("s_and_b32 s%d, s2, 7" % sT)
    e("s_lshl_b32 s%d, s%d, 2" % (sT, sT))
    e("s_lshr_b32 s%d, s2, 3" % sT2)
    e("s_and_b32 s%d, s%d, 3" % (sT2, sT2))
    e("s_add_u32 s%d, s%d, s%d" % (sH, sT, sT2))
    e("s_lshr_b32 s%d, s2, 5" % sM)
    e("s_and_b32 s%d, s2, 15" % sGT_)
    e("s_lshr_b32 s%d, s2, 4" % sGC)
    e("v_lshrrev_b32 v32, 3, v%d" % vL)
    e("v_lshlrev_b32 v32, 10, v32")
    e("v_and_b32 v33, 7, v%d" % vL)
    e("v_xor_b32 v34, v33, v%d" % vG4)
    e("v_xor_b32 v35, 4, v34")
    e("v_lshl_add_u32 v%d, v34, 4, v32" % (vOffA + 0))
    e("v_lshl_add_u32 v%d, v35, 4, v32" % (vOffA + 1))
    e("v_add_u32 v%d, %d, v%d" % (vOffA + 2, 2 * 7168, vOffA + 0))
    e("v_add_u32 v%d, %d, v%d" % (vOffA + 3, 3 * 7168, vOffA + 1))
    e("s_and_b32 s%d, s%d, 1" % (sT, sW_ID))
    e("s_cmp_eq_u32 s%d, 1" % sT)
    e("s_cselect_b64 vcc, -1, 0")
    e("v_cndmask_b32 v%d, v%d, v%d, vcc" % (vGB, vOffA + 0, vOffA + 1))
    e("v_add_u32 v%d, %d, v%d" % (vOffA + 1, 7168, vOffA + 1))
    e("v_lshrrev_b32 v32, 2, v%d" % vL)
    e("v_and_b32 v32, 3, v32")
    e("v_xor_b32 v32, v32, v%d" % vG4)
    e("v_lshlrev_b32 v32, 6, v32")
    e("v_lshl_add_u32 v32, v%d, 13, v32" % vG4)
    e("v_and_b32 v33, 3, v%d" % vL)
    e("v_lshl_add_u32 v%d, v33, 4, v32" % vOffW)
    e("v_lshrrev_b32 v32, 1, v%d" % vR)
    e("v_and_b32 v32, 7, v32")
    for ks in range(4):
        e("v_add_u32 v33, %d, v%d" % (2 * ks, vHI))
        e("v_xor_b32 v33, v33, v32")
        e("v_lshlrev_b32 v33, 4, v33")
        e("v_lshl_add_u32 v%d, v%d, 7, v33" % (vPA + ks, vR))
    e("v_lshrrev_b32 v34, 2, v%d" % vI16)
    e("v_lshl_add_u32 v35, v%d, 3, v34" % vHI)
    e("v_lshlrev_b32 v35, 8, v35")
    e("v_and_b32 v36, 1, v%d" % vG4)
    e("v_lshl_add_u32 v35, v36, 5, v35")
    e("v_and_b32 v36, 3, v%d" % vI16)
    e("v_lshl_add_u32 v35, v36, 3, v35")
    e("s_lshr_b32 s%d, s%d, 1" % (sT, sW_ID))
    e("s_and_b32 s%d, s%d, 1" % (sT, sT))
    e("s_lshl_b32 s%d, s%d, 1" % (sT, sT))
    e("s_lshr_b32 s%d, s%d, 2" % (sT2, sW_ID))
    e("s_lshl_b32 s%d, s%d, 14" % (sT2, sT2))
    e("s_add_u32 s%d, s%d, 32768" % (sT2, sT2))
    for nb in range(2):
        e("v_add_u32 v36, %d, v34" % 0)
        e("v_xor_b32 v36, s%d, v36" % sT)
        if nb:
            e("v_xor_b32 v36, 1, v36")
        e("v_lshl_add_u32 v36, v36, 6, v35")
        e("v_add_u32 v%d, s%d, v36" % (vW + nb, sT2))
    e("s_lshr_b32 s%d, s%d, 2" % (sT, sW_ID))
    e("s_lshl_b32 s%d, s%d, 1" % (sT, sT))
    for nb in range(2):
        e("v_xor_b32 v36, s%d, v34" % sT)
        if nb:
            e("v_xor_b32 v36, 1, v36")
        e("v_lshl_add_u32 v36, v36, 6, v35")
        e("v_add_u32 v%d, 0x8000, v36" % (vW2 + nb))
    e("s_and_b32 s%d, s%d, 1" % (sT, sW_ID))
    e("s_lshl_b32 s%d, s%d, 14" % (sT, sT))
    e("s_and_b32 s%d, s%d, 3" % (sT2, sW_ID))
    e("s_lshl_b32 s%d, s%d, 13" % (sT2, sT2))
    for ks in range(4):
        e("v_add_u32 v%d, s%d, v%d" % (vA + ks, sT, vPA + ks))
        e("v_add_u32 v%d, s%d, v%d" % (vA2 + ks, sT2, vPA + ks))
    e("v_lshlrev_b32 v36, 4, v%d" % vHI)
    e("v_lshl_add_u32 v%d, v%d, 13, v36" % (vGst, vR))
    for i in range(128):
        e("v_mov_b32 v%d, 0" % (ACC + i))
    for i in range(16):
        e("v_mov_b32 v%d, 0" % (vGacc + i))
    e("s_waitcnt lgkmcnt(0)")
    kb.srd(SRD_X, 8, 2048 * 1024)
    kb.srd(SRD_CKV, 10, 2048 * 1024)
    kb.srd(SRD_WQ, 12, 512 * 8192)
    e("s_cmp_lt_u32 s%d, 4" % sW_ID)
    e("s_cselect_b32 s%d, s14, s16" % SRD_W1)
    e("s_cselect_b32 s%d, s15, s17" % (SRD_W1 + 1))
    e("s_mov_b32 s%d, 0x%x" % (SRD_W1 + 2, 512 * 8192))
    e("s_mov_b32 s%d, 0x00020000" % (SRD_W1 + 3))
    kb.srd(SRD_XB, 20, 2048 * 1024)
    e("s_and_b32 s%d, s%d, 1" % (sT, sGC))
    e("s_cmp_eq_u32 s%d, 0" % sT)
    e("s_cselect_b32 s%d, s24, s26" % SRD_BM)
    e("s_cselect_b32 s%d, s25, s27" % (SRD_BM + 1))
    e("s_mov_b32 s%d, 0x%x" % (SRD_BM + 2, 512 * 1024))
    e("s_mov_b32 s%d, 0x00020000" % (SRD_BM + 3))
    kb.srd(SRD_WS, 28, WS_BYTES)
    e("s_cmp_lt_u32 s%d, 4" % sW_ID)
    e("s_cbranch_scc1 L_k1_nocf")
    e("s_lshl_b32 s%d, s2, 2" % sT)
    e("s_add_u32 s%d, s%d, s%d" % (sT, sT, sW_ID))
    e("s_sub_u32 s%d, s%d, 4" % (sT, sT))
    e("s_lshl_b32 s75, s%d, 10" % sT)
    e("s_add_u32 s75, s75, 0x%x" % CFR)
    e("s_and_b32 s%d, s%d, 63" % (sT2, sT))
    e("s_lshl_b32 s%d, s%d, 4" % (sT2, sT2))
    e("s_lshr_b32 s%d, s%d, 6" % (sT, sT))
    e("s_lshl_b32 s%d, s%d, 15" % (sT, sT))
    e("s_add_u32 s%d, s%d, s%d" % (sT, sT, sT2))
    e("v_lshlrev_b32 v6, 3, v%d" % vHI)
    e("v_lshl_add_u32 v6, v%d, 10, v6" % vR)
    e("s_mov_b32 s28, s76"); e("s_mov_b32 s29, s77"); e("s_mov_b32 s30, 0x80000"); e("s_mov_b32 s31, 0x00020000")
    e("buffer_load_dwordx2 v[96:97], v6, s[28:31], s%d offen" % sT)
    e("s_mov_b32 s28, s78"); e("s_mov_b32 s29, s79")
    e("s_nop 0")
    e("buffer_load_dwordx2 v[98:99], v6, s[28:31], s%d offen" % sT)
    kb.label("L_k1_nocf")
    e("s_lshl_b32 s%d, s%d, 18" % (sA, sM))
    e("s_lshl_b32 s%d, s%d, 15" % (sT, sW_ID))
    e("s_add_u32 s%d, s%d, s%d" % (sA, sA, sT))
    e("s_mov_b32 s%d, s%d" % (sA2, sA))
    e("s_and_b32 s%d, s%d, 3" % (sT, sW_ID))
    e("s_lshl_b32 s%d, s%d, 17" % (sT, sT))
    e("s_lshl_b32 s%d, s%d, 8" % (sT2, sH))
    e("s_add_u32 s%d, s%d, s%d" % (sW, sT, sT2))
    e("s_lshl_b32 s%d, s%d, 16" % (sT, sW_ID))
    e("s_add_u32 s%d, s%d, s%d" % (sW2, sT, sT2))
    e("s_lshl_b32 s%d, s%d, 17" % (sGX, sGT_))
    e("s_lshl_b32 s%d, s%d, 14" % (sT, sW_ID))
    e("s_add_u32 s%d, s%d, s%d" % (sGX, sGX, sT))
    e("s_lshr_b32 s%d, s%d, 1" % (sT, sGC))
    e("s_lshl_b32 s%d, s%d, 16" % (sGB, sT))
    e("s_lshl_b32 s%d, s%d, 13" % (sT, sW_ID))
    e("s_add_u32 s%d, s%d, s%d" % (sGB, sGB, sT))
    e("s_lshl_b32 s%d, s%d, 12" % (sMA, sW_ID))
    e("s_add_u32 s%d, s%d, 32768" % (sMW, sMA))

    pending = []
    sDT = 74
    def drain(n=1):
        for _ in range(n):
            if pending:
                pending.pop(0)()
    def drain_all():
        while pending:
            pending.pop(0)()
    def pieces_p1(tag):
        out = []
        for n in range(4):
            def f(n=n):
                if n == 0:
                    e("s_mov_b32 m0, s%d" % sMA)
                    e("s_nop 0")
                kb.vmem("buffer_load_dwordx4 v%d, %s, s%d offen offset:%d lds" % (vOffA + n, sr(SRD_CKV, 4), sA, 1024 * n), tag)
            out.append(f)
        for n in range(4):
            def f(n=n):
                if n == 0:
                    e("s_mov_b32 m0, s%d" % sMW)
                e("s_add_u32 s%d, s%d, %d" % (sDT, sW, n * 31744))
                kb.vmem("buffer_load_dwordx4 v%d, %s, s%d offen offset:%d lds" % (vOffW, sr(SRD_W1, 4), sDT, 1024 * n), tag)
                if n == 3:
                    e("s_add_u32 s%d, s%d, 128" % (sA, sA))
                    e("s_add_u32 s%d, s%d, %d" % (sW, sW, 64 * 8192))
                    e("s_xor_b32 s%d, s%d, 0x10000" % (sMA, sMA))
                    e("s_xor_b32 s%d, s%d, 0x10000" % (sMW, sMW))
            out.append(f)
        return out
    PB = [0, 65536, 114688]
    def pieces_p2(tag, buf):
        out = []
        for n in range(4):
            def f(n=n):
                if n == 0:
                    e("s_lshl_b32 s%d, s%d, 12" % (sDT, sW_ID))
                    e("s_add_u32 s%d, s%d, %d" % (sDT, sDT, buf))
                    e("s_mov_b32 m0, s%d" % sDT)
                    e("s_nop 0")
                kb.vmem("buffer_load_dwordx4 v%d, %s, s%d offen offset:%d lds" % (vOffA + n, sr(SRD_X, 4), sA2, 1024 * n), tag)
            out.append(f)
        for n in range(2):
            def f(n=n):
                if n == 0:
                    e("s_lshl_b32 s%d, s%d, 11" % (sDT, sW_ID))
                    e("s_add_u32 s%d, s%d, %d" % (sDT, sDT, buf + 32768))
                    e("s_mov_b32 m0, s%d" % sDT)
                e("s_add_u32 s%d, s%d, %d" % (sDT, sW2, n * 31744))
                kb.vmem("buffer_load_dwordx4 v%d, %s, s%d offen offset:%d lds" % (vOffW, sr(SRD_WQ, 4), sDT, 1024 * n), tag)
                if n == 1:
                    e("s_add_u32 s%d, s%d, 128" % (sA2, sA2))
                    e("s_add_u32 s%d, s%d, %d" % (sW2, sW2, 64 * 8192))
            out.append(f)
        return out
    def dma_p1(tag, now=False):
        pending.extend(pieces_p1(tag))
        if now: drain_all()
    def dma_p2(j, now=False):
        pending.extend(pieces_p2(("p2", j), PB[j % 3]))
        if now: drain_all()
    def dma_g(didx, dbase, tag, now=False):
        for q in range(2):
            koff = (2 * didx + q) * 128
            for n in range(2):
                def f(n=n, q=q, koff=koff):
                    if n == 0:
                        e("s_lshl_b32 s%d, s%d, 11" % (sDT, sW_ID))
                        e("s_add_u32 s%d, s%d, %d" % (sDT, sDT, dbase + q * 24576))
                        e("s_mov_b32 m0, s%d" % sDT)
                    e("s_add_u32 s%d, s%d, %d" % (sDT, sGX, koff))
                    kb.vmem("buffer_load_dwordx4 v%d, %s, s%d offen offset:%d lds" % (vOffA + n, sr(SRD_XB, 4), sDT, 1024 * n), tag)
                pending.append(f)
            def f2(q=q, koff=koff):
                e("s_lshl_b32 s%d, s%d, 10" % (sDT, sW_ID))
                e("s_add_u32 s%d, s%d, %d" % (sDT, sDT, dbase + q * 24576 + 16384))
                e("s_mov_b32 m0, s%d" % sDT)
                e("s_add_u32 s%d, s%d, %d" % (sDT, sGB, koff))
                kb.vmem("buffer_load_dwordx4 v%d, %s, s%d offen lds" % (vGB, sr(SRD_BM, 4), sDT), tag)
            pending.append(f2)
        if now: drain_all()

    def g_half(d0, d1):
        areas = [FA, TMP]
        subs = [(d0, 0), (d0, 1), (d1, 0), (d1, 1)]
        e("s_and_b32 s%d, s%d, 3" % (sT, sW_ID))
        e("s_lshl_b32 s%d, s%d, 12" % (sT, sT))
        e("s_lshr_b32 s%d, s%d, 2" % (sT2, sW_ID))
        e("s_lshl_b32 s%d, s%d, 12" % (sT2, sT2))
        e("s_add_u32 s%d, s%d, 16384" % (sT2, sT2))
        def reads(si):
            d, q = subs[si]
            ar = areas[si & 1]
            for ks in range(4):
                e("v_add_u32 v6, s%d, v%d" % (sT, vPA + ks))
                e("v_add_u32 v7, s%d, v%d" % (sT2, vPA + ks))
                e("v_add_u32 v6, 0x%x, v6" % d)
                e("v_add_u32 v7, 0x%x, v7" % d)
                kb.ds("ds_read_b128 %s, v6 offset:%d" % (vr(ar + 8 * ks, 4), q * 24576), ("g", si, ks))
                kb.ds("ds_read_b128 %s, v7 offset:%d" % (vr(ar + 8 * ks + 4, 4), q * 24576), ("g", si, ks))
        def mf(si):
            ar = areas[si & 1]
            for ks in range(4):
                kb.wait_ds(("g", si, ks))
                e("v_mfma_f32_32x32x16_bf16 %s, %s, %s, %s" % (vr(vGacc, 16), vr(ar + 8 * ks, 4), vr(ar + 8 * ks + 4, 4), vr(vGacc, 16)))
        reads(0); reads(1); mf(0); reads(2); mf(1); reads(3); mf(2); mf(3)

    GS = 131072
    def dma_gsub(sub, tag, now=False):
        koff = sub * 128
        for n in range(2):
            def f(n=n):
                if n == 0:
                    e("s_lshl_b32 s%d, s%d, 11" % (sDT, sW_ID))
                    e("s_add_u32 s%d, s%d, %d" % (sDT, sDT, GS))
                    e("s_mov_b32 m0, s%d" % sDT)
                e("s_add_u32 s%d, s%d, %d" % (sDT, sGX, koff))
                kb.vmem("buffer_load_dwordx4 v%d, %s, s%d offen offset:%d lds" % (vOffA + n, sr(SRD_XB, 4), sDT, 1024 * n), tag)
            pending.append(f)
        def f2():
            e("s_lshl_b32 s%d, s%d, 10" % (sDT, sW_ID))
            e("s_add_u32 s%d, s%d, %d" % (sDT, sDT, GS + 16384))
            e("s_mov_b32 m0, s%d" % sDT)
            e("s_add_u32 s%d, s%d, %d" % (sDT, sGB, koff))
            kb.vmem("buffer_load_dwordx4 v%d, %s, s%d offen lds" % (vGB, sr(SRD_BM, 4), sDT), tag)
        pending.append(f2)
        if now: drain_all()
    def g_sub_compute():
        for ks in range(4):
            def f(ks=ks):
                e("v_add_u32 v6, s6, v%d" % (vPA + ks))
                e("v_add_u32 v7, s7, v%d" % (vPA + ks))
                kb.ds("ds_read_b128 %s, v6" % vr(TMP + 8 * ks, 4), ("gs", ks))
                kb.ds("ds_read_b128 %s, v7" % vr(TMP + 8 * ks + 4, 4), ("gs", ks))
            pending.append(f)
        for ks in range(4):
            def f(ks=ks):
                kb.wait_ds(("gs", ks))
                e("v_mfma_f32_32x32x16_bf16 %s, %s, %s, %s" % (vr(vGacc, 16), vr(TMP + 8 * ks, 4), vr(TMP + 8 * ks + 4, 4), vr(vGacc, 16)))
            pending.append(f)

    class Cfg: pass
    def mkcfg(nA, va, vw, ktype):
        c = Cfg(); c.nA = nA; c.va = va; c.vw = vw; c.ktype = ktype; return c
    def frag_reads(cfg, ks, st):
        fa = FA + 16 * st; fw = FW + 8 * st
        kb.ds("ds_read_b128 %s, v%d" % (vr(fa, 4), cfg.va + ks), ("A", st, 0))
        for nb in range(2):
            for j in range(2):
                kb.ds("ds_read_b64_tr_b16 %s, v%d offset:%d" % (vr(fw + 4 * nb + 2 * j, 2), cfg.vw + nb, 4096 * ks + 1024 * j), ("W", st, nb))
        for rb in range(1, cfg.nA):
            kb.ds("ds_read_b128 %s, v%d offset:%d" % (vr(fa + 4 * rb, 4), cfg.va + ks, 4096 * rb), ("A", st, rb))
    def toggle(cfg):
        for ks in range(4):
            e("v_xor_b32 v%d, 0x10000, v%d" % (cfg.va + ks, cfg.va + ks))
        for nb in range(2):
            e("v_xor_b32 v%d, 0x10000, v%d" % (cfg.vw + nb, cfg.vw + nb))
    def mfmas(cfg, st, zero=False):
        fa = FA + 16 * st; fw = FW + 8 * st
        for rb in range(cfg.nA):
            for nb in range(2):
                kb.wait_ds(("A", st, rb)); kb.wait_ds(("W", st, nb))
                acc = vr(ACC + 16 * (2 * rb + nb), 16)
                a, b = vr(fa + 4 * rb, 4), vr(fw + 4 * nb, 4)
                if cfg.ktype:
                    a, b = b, a
                e("v_mfma_f32_32x32x16_bf16 %s, %s, %s, %s" % (acc, a, b, "0" if zero else acc))
                if cfg.nA == 2 or nb == 1 or os.environ.get("P1FAST"):
                    drain()
    def stage(cfg, need_tag, sync_action, next_reads, zero=False, allow_pending=False):
        for ks in range(4):
            cur = ks & 1
            if ks < 3:
                frag_reads(cfg, ks + 1, cur ^ 1)
            else:
                assert not pending or allow_pending, pending
                kb.wait_ds_all()
                if need_tag is None:
                    kb.wait_vm_all()
                else:
                    kb.wait_vm(need_tag)
                e("s_barrier")
                sync_action()
                next_reads()
            mfmas(cfg, cur, zero and ks == 0)

    def pack_store(acc, soff_sgpr, off0, tset, scale=None):
        for half in range(2):
            t = TMP + 4 * ((2 * tset + half) % 8)
            if scale is not None:
                for k in range(8):
                    e("v_mul_f32 v%d, s%d, v%d" % (acc + 8 * half + k, scale, acc + 8 * half + k))
            for k in range(4):
                e("v_cvt_pk_bf16_f32 v%d, v%d, v%d" % (t + k, acc + 8 * half + 2 * k, acc + 8 * half + 2 * k + 1))
            kb.vmem("buffer_store_dwordx4 %s, v%d, %s, s%d offen offset:%d" % (vr(t, 4), vL16, sr(SRD_WS, 4), soff_sgpr, off0 + 1024 * half), "st")

    def wo_issue():
        e("s_mov_b32 s28, s18"); e("s_mov_b32 s29, s19"); e("s_mov_b32 s30, 0x400000"); e("s_mov_b32 s31, 0x00020000")
        e("v_lshrrev_b32 v32, 2, v%d" % vL)
        e("v_xor_b32 v32, v32, v%d" % vG4)
        e("v_and_b32 v32, 1, v32")
        e("v_lshlrev_b32 v32, 6, v32")
        e("v_lshrrev_b32 v33, 3, v%d" % vL)
        e("v_lshl_add_u32 v32, v33, 10, v32")
        e("v_and_b32 v33, 3, v%d" % vL)
        e("v_lshl_add_u32 v32, v33, 4, v32")
        e("v_add_u32 v33, 7168, v32")
        e("s_lshl_b32 s%d, s%d, 11" % (sT, sW_ID))
        e("s_add_u32 s%d, s%d, 0" % (sT, sT))
        e("s_mov_b32 m0, s%d" % sT)
        e("s_lshl_b32 s%d, s2, 14" % sT2)
        e("s_lshl_b32 s%d, s%d, 7" % (sT, sW_ID))
        e("s_add_u32 s%d, s%d, s%d" % (sT2, sT2, sT))
        kb.vmem("buffer_load_dwordx4 v32, s[28:31], s%d offen lds" % sT2, "wo")
        kb.vmem("buffer_load_dwordx4 v33, s[28:31], s%d offen offset:1024 lds" % sT2, "wo")
    def wo_finish():
        kb.wait_vm("wo")
        e("v_lshrrev_b32 v34, 2, v%d" % vI16)
        e("v_lshl_add_u32 v34, v%d, 2, v34" % vHI)
        e("v_lshlrev_b32 v34, 7, v34")
        e("v_and_b32 v35, 1, v%d" % vG4)
        e("v_lshl_add_u32 v34, v35, 5, v34")
        e("v_and_b32 v35, 3, v%d" % vI16)
        e("v_lshl_add_u32 v34, v35, 3, v34")
        e("s_lshl_b32 s%d, s%d, 11" % (sT, sW_ID))
        e("s_add_u32 s%d, s%d, 0" % (sT, sT))
        e("v_add_u32 v34, s%d, v34" % sT)
        e("v_lshrrev_b32 v35, 3, v%d" % vI16)
        e("v_lshl_add_u32 v32, v35, 6, v34")
        e("v_xor_b32 v35, 1, v35")
        e("v_lshl_add_u32 v33, v35, 6, v34")
        for nb in range(2):
            for jj in range(2):
                kb.ds("ds_read_b64_tr_b16 %s, v%d offset:%d" % (vr(40 + 4 * nb + 2 * jj, 2), 32 + nb, 1024 * jj), "wot")
        e("s_lshl_b32 s%d, s%d, 19" % (sT, sW_ID))
        e("s_lshl_b32 s%d, s2, 10" % sT2)
        e("s_add_u32 s%d, s%d, s%d" % (sT, sT, sT2))
        e("s_add_u32 s%d, s%d, 0x%x" % (sT, sT, WOF))
        e("s_add_u32 s%d, s%d, 0x40000" % (sT2, sT))
        kb.wait_ds("wot")
        kb.vmem("buffer_store_dwordx4 v[40:43], v%d, %s, s%d offen" % (vL16, sr(SRD_WS, 4), sT), "st")
        kb.vmem("buffer_store_dwordx4 v[44:47], v%d, %s, s%d offen" % (vL16, sr(SRD_WS, 4), sT2), "st")
    dma_g(0, 65536, "g01", now=True)
    dma_g(1, 114688, "g01", now=True)
    dma_p1("p1s0", now=True)
    kb.wait_vm("g01")
    e("s_barrier")
    g_half(65536, 114688)
    kb.wait_ds_all()
    kb.wait_vm_all()
    e("s_barrier")
    e("s_cmp_lt_u32 s%d, 4" % sW_ID)
    e("s_cbranch_scc1 L_k1_nocf2")
    e("v_swap_b32 v97, v98")
    e("buffer_store_dwordx4 v[96:99], v%d, %s, s75 offen" % (vL16, sr(SRD_WS, 4)))
    e("s_nop 1")
    kb.label("L_k1_nocf2")
    dma_p1("p1", now=True)
    dma_gsub(4, "p1", now=True)
    e("s_and_b32 s6, s%d, 3" % sW_ID)
    e("s_lshl_b32 s6, s6, 12")
    e("s_add_u32 s6, s6, %d" % GS)
    e("s_lshr_b32 s7, s%d, 2" % sW_ID)
    e("s_lshl_b32 s7, s7, 12")
    e("s_add_u32 s7, s7, %d" % (GS + 16384))
    save_lg, save_vm = None, None

    def body(ktype):
        c1 = mkcfg(4, vA, vW, ktype)
        c2 = mkcfg(2, vA2, vW2, True)
        kb.lg = []; kb.vm = ["p1"] * 11
        frag_reads(c1, 0, 0)
        for j in range(8):
            def act(j=j):
                if j <= 5:
                    dma_p1("p1")
                if j in (1, 3, 5):
                    dma_gsub((j + 1) // 2 + 4, "p1")
                if j in (0, 2, 4, 6):
                    g_sub_compute()
                if j < 7:
                    toggle(c1)
            stage(c1, None, act, (lambda: frag_reads(c1, 0, 0)) if j < 7 else (lambda: None))
            drain_all()
        kb.nop(16)
        e("s_lshl_b32 s%d, s%d, 19" % (sEp, sH))
        e("s_and_b32 s%d, s%d, 1" % (sT, sW_ID))
        e("s_lshr_b32 s%d, s%d, 1" % (sT2, sW_ID))
        e("s_and_b32 s%d, s%d, 1" % (sT2, sT2))
        e("s_lshl_b32 s%d, s%d, 15" % (sT, sT))
        e("s_add_u32 s%d, s%d, s%d" % (sEp, sEp, sT))
        e("s_lshl_b32 s%d, s%d, 16" % (sT, sM))
        e("s_add_u32 s%d, s%d, s%d" % (sEp, sEp, sT))
        e("s_lshl_b32 s%d, s%d, %d" % (sT2, sT2, 12 if ktype else 13))
        e("s_add_u32 s%d, s%d, s%d" % (sEp, sEp, sT2))
        e("s_add_u32 s96, s%d, 0x%x" % (sEp, KF if ktype else VF))
        if ktype:
            import k2
            e("s_mov_b32 s%d, 0x%x" % (sCnt, k2.f32bits(k2.QSCALE)))
        for rb in range(4):
            for nb in range(2):
                acc = ACC + 16 * (2 * rb + nb)
                for half in range(2):
                    if ktype:
                        k = 4 * rb + 2 * nb + half
                    else:
                        k = 8 * (rb >> 1) + 4 * nb + 2 * (rb & 1) + half
                    if ktype:
                        for q in range(8):
                            e("v_mul_f32 v%d, s%d, v%d" % (acc + 8 * half + q, sCnt, acc + 8 * half + q))
                    for q in range(4):
                        e("v_cvt_pk_bf16_f32 v%d, v%d, v%d" % (16 + 4 * k + q, acc + 8 * half + 2 * q, acc + 8 * half + 2 * q + 1))
        for g in range(4):
            e("s_add_u32 s%d, s96, %d" % (92 + g, g * 8192 if ktype else (g >> 1) * 16384 + (g & 1) * 4096))
        e("s_branch L_k1_phase2")

    e("s_cmp_lt_u32 s%d, 4" % sW_ID)
    e("s_cbranch_scc0 L_k1_vtype")
    body(True)
    lgA, vmA = list(kb.lg), list(kb.vm)
    kb.label("L_k1_vtype")
    body(False)
    assert kb.lg == lgA and kb.vm == vmA
    kb.label("L_k1_phase2")
    e("s_and_b32 s%d, s%d, 1" % (sT, sGC))
    e("s_lshl_b32 s%d, s%d, 22" % (sEp, sT))
    e("s_lshr_b32 s%d, s%d, 1" % (sT, sGC))
    e("s_lshl_b32 s%d, s%d, 19" % (sT, sT))
    e("s_add_u32 s%d, s%d, s%d" % (sEp, sEp, sT))
    e("s_lshr_b32 s%d, s%d, 2" % (sT, sW_ID))
    e("s_lshl_b32 s%d, s%d, 18" % (sT, sT))
    e("s_add_u32 s%d, s%d, s%d" % (sEp, sEp, sT))
    e("s_lshl_b32 s%d, s%d, 9" % (sT, sGT_))
    e("s_add_u32 s%d, s%d, s%d" % (sEp, sEp, sT))
    e("s_and_b32 s%d, s%d, 3" % (sT, sW_ID))
    e("s_lshl_b32 s%d, s%d, 7" % (sT, sT))
    e("s_add_u32 s%d, s%d, s%d" % (sEp, sEp, sT))
    e("s_add_u32 s%d, s%d, 0x%x" % (sEp, sEp, GT))
    for q in range(4):
        e("buffer_store_dwordx4 %s, v%d, %s, s%d offen offset:%d sc1" % (vr(vGacc + 4 * q, 4), vGst, sr(SRD_WS, 4), sEp, 32 * q))
    kb.lg = []; kb.vm = []
```

```python
from asmlib import *
from layout import *
import struct, math

def f32bits(x):
    return struct.unpack("<I", struct.pack("<f", x))[0]

LOG2E = 1.4426950408889634
QSCALE = (128.0 ** -0.5) * LOG2E
SUM_T = 2.0 ** 64
import os
STC = int(os.environ.get('STC', '3'))

def gen_part2(kb):
    e = kb.e
    sW_ID, sWQ, sH, sI, sGRP = 3, 4, 5, 6, 7
    SRD_WS = 32
    sKb, sVb, sNext, sLeft, sMK, sMV, sThr, sCnt, sD, sT, sT2, sT3, sF, sFirst, sFloor = range(36, 51)
    sKeep = 30
    sCm = 52
    sLre, sLim, sLdt = 60, 61, 62
    sP = 64
    sCtx = 80
    vL, vR, vHI, vL16, vF, vDMA, vM, vT, vT2, vNeg, vThr, vRm = range(1, 13)
    Q, S, P, POOL, O, CI, ONES, LT, LA, ET = 16, 48, 80, 96, 160, 224, 240, 244, 248, 250
    BREG, AREG, QST = 65536, 0, 131072

    e("s_load_dwordx2 s[28:29], s[0:1], %d" % KA['ws'])
    e("s_load_dwordx4 s[8:11], s[0:1], %d" % KA['lre'])
    e("s_load_dwordx2 s[12:13], s[0:1], %d" % KA['logdt'])
    e("s_load_dwordx2 s[14:15], s[0:1], %d" % KA['x'])
    e("s_load_dwordx2 s[16:17], s[0:1], %d" % KA['wq'])
    e("v_and_b32 v%d, 63, v0" % vL)
    e("v_lshrrev_b32 v2, 6, v0")
    e("s_nop 0")
    e("v_readfirstlane_b32 s%d, v2" % sW_ID)
    e("v_and_b32 v%d, 31, v%d" % (vR, vL))
    e("v_lshrrev_b32 v%d, 5, v%d" % (vHI, vL))
    e("v_lshlrev_b32 v%d, 4, v%d" % (vL16, vL))
    e("v_lshlrev_b32 v14, 2, v%d" % vHI)
    e("v_sub_u32 v%d, v%d, v14" % (vRm, vR))
    e("v_mov_b32 v%d, 0xff800000" % vNeg)
    e("s_and_b32 s%d, s%d, 3" % (sWQ, sW_ID))
    e("s_lshr_b32 s%d, s%d, 2" % (sGRP, sW_ID))
    if os.environ.get("SWAPG"):
        e("s_xor_b32 s%d, s%d, 1" % (sGRP, sGRP))
    e("s_and_b32 s%d, s2, 7" % sT)
    e("s_lshl_b32 s%d, s%d, 2" % (sT, sT))
    e("s_lshr_b32 s%d, s2, 3" % sT2)
    e("s_and_b32 s%d, s%d, 3" % (sT2, sT2))
    e("s_add_u32 s%d, s%d, s%d" % (sH, sT, sT2))
    e("s_lshr_b32 s%d, s2, 5" % sI)
    e("s_mov_b32 s%d, 0x%x" % (sThr, f32bits(SUM_T)))
    e("v_and_b32 v13, 15, v%d" % vL)
    e("v_bfe_u32 v14, v%d, 4, 1" % vL)
    e("v_cmp_eq_u32 vcc, v13, v14")
    e("v_mov_b32 v15, 0x3f803f80")
    e("s_lshl_b32 s%d, s%d, 16" % (sT, sGRP))
    e("s_lshl_b32 s%d, s%d, 12" % (sT2, sWQ))
    for k in range(4):
        e("v_cndmask_b32 v%d, 0, v15, vcc" % (ONES + k))
    e("v_add_u32 v%d, s%d, v%d" % (vDMA, sT2, vL16))
    e("s_add_u32 s%d, s%d, s%d" % (sMK, sT, sT2))
    e("s_lshl_b32 s%d, s%d, 15" % (sT3, sGRP))
    e("s_add_u32 s%d, s%d, s%d" % (sMK, sMK, sT3))
    e("s_add_u32 s%d, s%d, 16384" % (sMV, sMK))
    e("s_lshl_b32 s%d, s%d, 19" % (sT, sH))
    e("s_add_u32 s%d, s%d, 0x%x" % (sKb, sT, KF))
    e("s_add_u32 s%d, s%d, 0x%x" % (sVb, sT, VF))
    e("s_lshl_b32 s%d, s%d, 1" % (sT, sI))
    e("s_sub_u32 s%d, 15, s%d" % (sT3, sT))
    e("s_cmp_eq_u32 s%d, 0" % sGRP)
    e("s_cselect_b32 s%d, 17, 0" % sNext)
    e("s_cselect_b32 s%d, s%d, 17" % (sLeft, sT3))
    e("s_mov_b32 s%d, 0x%x" % (sF, BREG + 0x8000))
    e("v_add_u32 v%d, s%d, v%d" % (vF, sF, vL16))
    e("s_waitcnt lgkmcnt(0)")
    kb.srd(SRD_WS, 28, WS_BYTES)
    SRD_X, SRD_WQ = 20, 24
    kb.srd(SRD_X, 14, 2048 * 1024)
    kb.srd(SRD_WQ, 16, 512 * 8192)
    e("s_lshl_b32 s%d, s2, 2" % sT)
    e("s_load_dword s%d, s[8:9], s%d" % (sLre, sT))
    e("s_load_dword s%d, s[10:11], s%d" % (sLim, sT))
    e("s_load_dword s%d, s[12:13], s%d" % (sLdt, sT))
    e("s_waitcnt lgkmcnt(0)")
    e("s_load_dwordx2 s[8:9], s[0:1], %d" % KA['dbg'])
    e("s_load_dwordx2 s[12:13], s[0:1], %d" % KA['wo'])
    SRD_DBG = 8
    def poll(off_expr_sgpr, target):
        lab, done = kb.newlabel("poll"), kb.newlabel("polld")
        e("v_mov_b32 v14, s%d" % off_expr_sgpr)
        e("s_mov_b32 s%d, 0" % sT3)
        kb.label(lab)
        e("buffer_load_dword v13, v14, %s, 0 offen sc0 sc1" % sr(SRD_DBG, 4))
        e("s_waitcnt vmcnt(0)")
        e("v_readfirstlane_b32 s%d, v13" % sT2)
        e("s_add_u32 s%d, s%d, 1" % (sT3, sT3))
        e("s_cmp_ge_u32 s%d, %d" % (sT2, target))
        e("s_cbranch_scc1 %s" % done)
        e("s_sleep 4")
        e("s_cmp_lt_u32 s%d, 0x200000" % sT3)
        e("s_cbranch_scc1 %s" % lab)
        kb.label(done)

    def dma_tile():
        lab = kb.newlabel("nodma")
        e("s_cmp_eq_u32 s%d, 0" % sLeft)
        e("s_cbranch_scc1 %s" % lab)
        e("s_lshl_b32 s%d, s%d, 14" % (sT, sNext))
        e("s_add_u32 s%d, s%d, s%d" % (sT2, sT, sKb))
        e("s_mov_b32 m0, s%d" % sMK)
        e("s_add_u32 s%d, s%d, s%d" % (sT, sT, sVb))
        for n in range(4):
            e("buffer_load_dwordx4 v%d, %s, s%d offen offset:%d lds" % (vDMA, sr(SRD_WS, 4), sT2, 1024 * n))
        e("s_mov_b32 m0, s%d" % sMV)
        e("s_sub_u32 s%d, s%d, 1" % (sLeft, sLeft))
        for n in range(4):
            e("buffer_load_dwordx4 v%d, %s, s%d offen offset:%d lds" % (vDMA, sr(SRD_WS, 4), sT, 1024 * n))
        e("s_add_u32 s%d, s%d, 1" % (sNext, sNext))
        kb.label(lab)
        e("s_xor_b32 s%d, s%d, 0x8000" % (sMK, sMK))
        e("s_xor_b32 s%d, s%d, 0x8000" % (sMV, sMV))

    def q_base(high):
        if high:
            e("s_sub_u32 s%d, 15, s%d" % (sT, sI))
        else:
            e("s_mov_b32 s%d, s%d" % (sT, sI))
        e("s_lshl_b32 s%d, s%d, 2" % (sT, sT))
        e("s_add_u32 s%d, s%d, s%d" % (sT, sT, sWQ))
        e("s_lshl_b32 s%d, s%d, 6" % (sT2, sH))
        e("s_add_u32 s%d, s%d, s%d" % (sT, sT, sT2))
        e("s_lshl_b32 s%d, s%d, 13" % (sT, sT))
        if QF:
            e("s_add_u32 s%d, s%d, 0x%x" % (sT, sT, QF))
    def q_load():
        e("s_add_u32 s%d, s%d, 4096" % (sT2, sT))
        for s in range(8):
            e("buffer_load_dwordx4 %s, v%d, %s, s%d offen offset:%d" % (vr(Q + 4 * s, 4), vL16, sr(SRD_WS, 4), sT if s < 4 else sT2, 1024 * (s & 3)))

    def reset_state():
        e("s_mov_b32 s%d, 0" % sKeep)
        for i in range(16):
            e("v_mov_b32 v%d, 0" % (CI + i))
        e("v_mov_b32 v%d, 0" % vM)
        e("v_mov_b32 v%d, 0" % LA); e("v_mov_b32 v%d, 0" % (LA + 1))
        e("s_mov_b32 s%d, 1" % sFirst)
        e("s_mov_b32 s%d, 0x%x" % (sFloor, f32bits(-3e38)))

    kb.stamp(2)
    QB = [0, 49152, 98304]
    SCR = 114688
    TOTS = 81920
    vOA, vOW, vPA, vPW = 224, 228, 229, 233
    sXo, sWo_, sDT = 18, 19, 63
    GQ = [152, 156, 244, 248]
    e("v_lshrrev_b32 v15, 4, v%d" % vL)
    e("v_lshrrev_b32 v13, 3, v%d" % vL)
    e("v_lshlrev_b32 v13, 10, v13")
    e("v_and_b32 v14, 7, v%d" % vL)
    e("v_xor_b32 v14, v14, v15")
    e("v_lshl_add_u32 v%d, v14, 4, v13" % (vOA + 0))
    e("v_xor_b32 v14, 4, v14")
    e("v_lshl_add_u32 v%d, v14, 4, v13" % (vOA + 1))
    e("v_add_u32 v%d, %d, v%d" % (vOA + 2, 2 * 7168, vOA + 0))
    e("v_add_u32 v%d, %d, v%d" % (vOA + 3, 3 * 7168, vOA + 1))
    e("v_add_u32 v%d, %d, v%d" % (vOA + 1, 7168, vOA + 1))
    e("v_lshrrev_b32 v13, 2, v%d" % vL)
    e("v_and_b32 v13, 3, v13")
    e("v_xor_b32 v13, v13, v15")
    e("v_lshlrev_b32 v13, 6, v13")
    e("v_lshl_add_u32 v13, v15, 13, v13")
    e("v_and_b32 v14, 3, v%d" % vL)
    e("v_lshl_add_u32 v%d, v14, 4, v13" % vOW)
    e("s_sub_u32 s%d, 15, s%d" % (sT, sI))
    e("s_cmp_eq_u32 s%d, 0" % sGRP)
    e("s_cselect_b32 s%d, s%d, s%d" % (sT, sI, sT))
    e("s_lshl_b32 s%d, s%d, 2" % (sT, sT))
    e("s_add_u32 s%d, s%d, s%d" % (sT, sT, sWQ))
    e("s_lshl_b32 s%d, s%d, 15" % (sXo, sT))
    e("s_lshl_b32 s%d, s%d, 16" % (sT, sW_ID))
    e("s_lshl_b32 s%d, s%d, 8" % (sT2, sH))
    e("s_add_u32 s%d, s%d, s%d" % (sWo_, sT, sT2))
    pending = []
    def drain(n=1):
        for _ in range(n):
            if pending:
                pending.pop(0)()
    def drain_all():
        while pending:
            pending.pop(0)()
    def q_dma(j):
        buf = QB[j % 3]; tag = ("q", j)
        for n in range(4):
            def f(n=n):
                if n == 0:
                    e("s_lshl_b32 s%d, s%d, 12" % (sDT, sW_ID))
                    e("s_add_u32 s%d, s%d, %d" % (sDT, sDT, buf))
                    e("s_mov_b32 m0, s%d" % sDT)
                e("s_add_u32 s%d, s%d, %d" % (sDT, sXo, 128 * j))
                kb.vmem("buffer_load_dwordx4 v%d, %s, s%d offen offset:%d lds" % (vOA + n, sr(SRD_X, 4), sDT, 1024 * n), tag)
            pending.append(f)
        for n in range(2):
            def f(n=n):
                if n == 0:
                    e("s_lshl_b32 s%d, s%d, 11" % (sDT, sW_ID))
                    e("s_add_u32 s%d, s%d, %d" % (sDT, sDT, buf + 32768))
                    e("s_mov_b32 m0, s%d" % sDT)
                e("s_add_u32 s%d, s%d, %d" % (sDT, sWo_, j * 64 * 8192 + n * 31744))
                kb.vmem("buffer_load_dwordx4 v%d, %s, s%d offen offset:%d lds" % (vOW, sr(SRD_WQ, 4), sDT, 1024 * n), tag)
            pending.append(f)
    q_dma(0)
    drain_all()
    e("v_lshrrev_b32 v13, 1, v%d" % vR)
    e("v_and_b32 v13, 7, v13")
    e("s_lshl_b32 s%d, s%d, 12" % (sT, sW_ID))
    for ks in range(4):
        e("v_add_u32 v14, %d, v%d" % (2 * ks, vHI))
        e("v_xor_b32 v14, v14, v13")
        e("v_lshlrev_b32 v14, 4, v14")
        e("v_lshl_add_u32 v14, v%d, 7, v14" % vR)
        e("v_add_u32 v%d, s%d, v14" % (vPA + ks, sT))
    e("v_and_b32 v13, 15, v%d" % vL)
    e("v_lshrrev_b32 v14, 2, v13")
    e("v_lshl_add_u32 v%d, v%d, 3, v14" % (vT, vHI))
    e("v_lshlrev_b32 v%d, 8, v%d" % (vT, vT))
    e("v_and_b32 v%d, 1, v15" % vT2)
    e("v_lshl_add_u32 v%d, v%d, 5, v%d" % (vT, vT2, vT))
    e("v_and_b32 v%d, 3, v13" % vT2)
    e("v_lshl_add_u32 v%d, v%d, 3, v%d" % (vT, vT2, vT))
    e("v_add_u32 v%d, 0x8000, v%d" % (vT, vT))
    for b_ in range(4):
        e("v_xor_b32 v%d, %d, v14" % (vT2, b_))
        e("v_lshl_add_u32 v%d, v%d, 6, v%d" % (vPW + b_, vT2, vT))

    segs = {0: [], 1: [], 2: [], 3: []}
    cur_seg = [0]
    def r(txt):
        segs[cur_seg[0]].append(lambda: e(txt))
    def rmulti(*txts):
        def f():
            for t in txts: e(t)
        segs[cur_seg[0]].append(f)
    def rds(txt, tag):
        segs[cur_seg[0]].append(lambda: kb.ds(txt, tag))
    def rwait_ds(tag):
        segs[cur_seg[0]].append(lambda: kb.wait_ds(tag))
    def rwait_vm(tag):
        segs[cur_seg[0]].append(lambda: kb.wait_vm(tag))
    def rvmem(txt, tag):
        segs[cur_seg[0]].append(lambda: kb.vmem(txt, tag))
    sA_, sB_, sMsk = sP + 12, sP + 13, sP + 14
    r("v_lshlrev_b32 v13, 4, v0")
    r("v_add_u32 v13, 0x%x, v13" % QST)
    for q_ in range(4):
        rds("ds_read_b128 %s, v13 offset:%d" % (vr(GQ[q_], 4), q_ * 8192), "G")
    r("s_lshl_b32 s%d, s%d, 16" % (sP + 0, sLre)); r("s_and_b32 s%d, s%d, 0xffff0000" % (sP + 1, sLre))
    r("s_lshl_b32 s%d, s%d, 16" % (sP + 2, sLim)); r("s_and_b32 s%d, s%d, 0xffff0000" % (sP + 3, sLim))
    r("s_lshl_b32 s%d, s%d, 16" % (sP + 4, sLdt)); r("s_and_b32 s%d, s%d, 0xffff0000" % (sP + 5, sLdt))
    r("s_mov_b32 s%d, 0x%x" % (sP + 6, f32bits(LOG2E)))
    r("s_mov_b32 s%d, 0x%x" % (sP + 7, f32bits(1.0 / (2 * math.pi))))
    r("v_cvt_f32_u32 v15, v%d" % vL)
    r("v_mul_f32 v15, 4.0, v15")
    def cmul(dr, di, ar, ai, br, bi, t):
        r("v_mul_f32 v%d, v%d, v%d" % (t, ai, bi))
        r("v_fma_f32 v%d, v%d, v%d, -v%d" % (dr, ar, br, t))
        r("v_mul_f32 v%d, v%d, v%d" % (t, ai, br))
        r("v_fma_f32 v%d, v%d, v%d, v%d" % (di, ar, bi, t))
    def cfma(dr, di, ar, ai, br, bi):
        r("v_fma_f32 v%d, v%d, v%d, v%d" % (dr, ar, br, dr))
        r("v_fma_f32 v%d, -v%d, v%d, v%d" % (dr, ai, bi, dr))
        r("v_fma_f32 v%d, v%d, v%d, v%d" % (di, ar, bi, di))
        r("v_fma_f32 v%d, v%d, v%d, v%d" % (di, ai, br, di))
    CH = []
    for ch in range(2):
        B = 16 + 48 * ch
        R = dict(lr=B, li=B + 1, dt=B + 2, a=B + 3, b=B + 4, t=B + 5, t2=B + 6, cr=B + 7, ci=B + 8,
                 L1=B + 9, L2=B + 11, L3=B + 13, MU=B + 15, PL=B + 29, H=B + 31,
                 X=B + 39, Y=B + 41, CW=B + 43, WC=B + 45)
        CH.append(R)
        r("v_mov_b32 v%d, s%d" % (R['lr'], sP + ch))
        r("v_mov_b32 v%d, s%d" % (R['li'], sP + 2 + ch))
        r("v_mov_b32 v%d, s%d" % (R['t'], sP + 4 + ch))
        r("v_mul_f32 v%d, s%d, v%d" % (R['t'], sP + 6, R['t']))
        r("v_exp_f32 v%d, v%d" % (R['t'], R['t']))
        r("s_nop 0")
        r("v_cvt_pk_bf16_f32 v%d, v%d, v%d" % (R['t'], R['t'], R['t']))
        r("v_lshlrev_b32 v%d, 16, v%d" % (R['dt'], R['t']))
        r("v_mul_f32 v%d, v%d, v%d" % (R['a'], R['dt'], R['lr']))
        r("v_mul_f32 v%d, v%d, v%d" % (R['b'], R['dt'], R['li']))
        r("v_mul_f32 v%d, s%d, v%d" % (R['a'], sP + 6, R['a']))
        r("v_mul_f32 v%d, s%d, v%d" % (R['b'], sP + 7, R['b']))
        def cexp(dr, di, va, vb):
            r("v_exp_f32 v%d, v%d" % (R['t'], va))
            r("v_fract_f32 v%d, v%d" % (R['t2'], vb))
            r("v_cos_f32 v%d, v%d" % (dr, R['t2']))
            r("v_sin_f32 v%d, v%d" % (di, R['t2']))
            r("s_nop 0")
            r("v_mul_f32 v%d, v%d, v%d" % (dr, dr, R['t']))
            r("v_mul_f32 v%d, v%d, v%d" % (di, di, R['t']))
        cexp(R['L1'], R['L1'] + 1, R['a'], R['b'])
        r("v_mul_f32 v%d, v15, v%d" % (R['X'], R['a']))
        r("v_mul_f32 v%d, v15, v%d" % (R['X'] + 1, R['b']))
        cexp(R['PL'], R['PL'] + 1, R['X'], R['X'] + 1)
        r("v_add_f32 v%d, -1.0, v%d" % (R['X'], R['L1']))
        r("v_mul_f32 v%d, v%d, v%d" % (R['t'], R['lr'], R['lr']))
        r("v_fma_f32 v%d, v%d, v%d, v%d" % (R['t'], R['li'], R['li'], R['t']))
        r("v_rcp_f32 v%d, v%d" % (R['t'], R['t']))
        r("v_mul_f32 v%d, v%d, v%d" % (R['cr'], R['X'], R['lr']))
        r("v_fma_f32 v%d, v%d, v%d, v%d" % (R['cr'], R['L1'] + 1, R['li'], R['cr']))
        r("v_mul_f32 v%d, v%d, v%d" % (R['ci'], R['L1'] + 1, R['lr']))
        r("v_fma_f32 v%d, -v%d, v%d, v%d" % (R['ci'], R['X'], R['li'], R['ci']))
        r("v_mul_f32 v%d, v%d, v%d" % (R['cr'], R['cr'], R['t']))
        r("v_mul_f32 v%d, v%d, v%d" % (R['ci'], R['ci'], R['t']))
        cmul(R['L2'], R['L2'] + 1, R['L1'], R['L1'] + 1, R['L1'], R['L1'] + 1, R['t'])
        cmul(R['L3'], R['L3'] + 1, R['L2'], R['L2'] + 1, R['L1'], R['L1'] + 1, R['t'])
        cmul(R['MU'], R['MU'] + 1, R['L2'], R['L2'] + 1, R['L2'], R['L2'] + 1, R['t'])
        for k in range(1, 7):
            a_ = R['MU'] + 2 * (k - 1)
            cmul(a_ + 2, a_ + 3, a_, a_ + 1, a_, a_ + 1, R['t'])
    cur_seg[0] = 1
    rwait_ds("G")
    for ch in range(2):
        R = CH[ch]
        gr, gi = GQ[2 * ch], GQ[2 * ch + 1]
        for i in range(4):
            hr, hi_ = R['H'] + 2 * i, R['H'] + 2 * i + 1
            cmul(hr, hi_, R['cr'], R['ci'], gr + i, gi + i, R['t'])
            if i:
                cfma(hr, hi_, R['L1'], R['L1'] + 1, hr - 2, hi_ - 2)
        r("v_mov_b32 v%d, v%d" % (R['X'], R['H'] + 6))
        r("v_mov_b32 v%d, v%d" % (R['X'] + 1, R['H'] + 7))
    def shifted(d, dst_key):
        r("v_subrev_u32 v14, %d, v%d" % (d, vL))
        r("v_and_b32 v14, 63, v14")
        r("v_lshlrev_b32 v14, 2, v14")
        for ch in range(2):
            R = CH[ch]
            for c in range(2):
                rds("ds_bpermute_b32 v%d, v14, v%d" % (R[dst_key] + c, R['X'] + c), "bp")
        r("v_cmp_le_u32 vcc, %d, v%d" % (d, vL))
        r("s_nop 1")
        rwait_ds("bp")
        for ch in range(2):
            R = CH[ch]
            for c in range(2):
                r("v_cndmask_b32 v%d, 0, v%d, vcc" % (R[dst_key] + c, R[dst_key] + c))
    for k in range(6):
        shifted(1 << k, 'Y')
        for ch in range(2):
            R = CH[ch]
            cfma(R['X'], R['X'] + 1, R['MU'] + 2 * k, R['MU'] + 2 * k + 1, R['Y'], R['Y'] + 1)
    shifted(1, 'CW')
    r("s_nop 1")
    for ch in range(2):
        for c in range(2):
            r("v_readlane_b32 s%d, v%d, 63" % (sP + 8 + 2 * ch + c, CH[ch]['X'] + c))
    r("s_lshl_b32 s%d, s%d, 4" % (sA_, sW_ID))
    r("s_add_u32 s%d, s%d, %d" % (sA_, sA_, TOTS))
    r("v_mov_b32 v14, s%d" % sA_)
    for k in range(4):
        r("v_mov_b32 v%d, s%d" % (152 + k, sP + 8 + k))
    rds("ds_write_b128 v14, v[152:155]", "tw")
    cur_seg[0] = 2
    r("v_mov_b32 v14, 0x%x" % TOTS)
    TQ = [152, 156, 244, 248, 16, 20, 64]
    for j in range(7):
        rds("ds_read_b128 %s, v14 offset:%d" % (vr(TQ[j], 4), 16 * j), ("tot", j))
    for ch in range(2):
        r("v_mov_b32 v%d, 0" % CH[ch]['WC']); r("v_mov_b32 v%d, 0" % (CH[ch]['WC'] + 1))
    for j in range(7):
        rmulti("s_cmp_gt_u32 s%d, %d" % (sW_ID, j), "s_cselect_b64 %s, -1, 0" % sr(sMsk, 2))
        rwait_ds(("tot", j))
        for ch in range(2):
            R = CH[ch]
            r("v_mov_b32 v%d, v%d" % (R['Y'], TQ[j] + 2 * ch))
            r("v_mov_b32 v%d, v%d" % (R['Y'] + 1, TQ[j] + 2 * ch + 1))
            cfma(R['Y'], R['Y'] + 1, R['WC'], R['WC'] + 1, R['MU'] + 12, R['MU'] + 13)
            r("v_cndmask_b32 v%d, v%d, v%d, %s" % (R['WC'], R['WC'], R['Y'], sr(sMsk, 2)))
            r("v_cndmask_b32 v%d, v%d, v%d, %s" % (R['WC'] + 1, R['WC'] + 1, R['Y'] + 1, sr(sMsk, 2)))
    for ch in range(2):
        R = CH[ch]
        cfma(R['CW'], R['CW'] + 1, R['PL'], R['PL'] + 1, R['WC'], R['WC'] + 1)
        for i, key in enumerate(['L1', 'L2', 'L3', 'MU']):
            cfma(R['H'] + 2 * i, R['H'] + 2 * i + 1, R[key], R[key] + 1, R['CW'], R['CW'] + 1)
    for i in range(4):
        r("v_cvt_pk_bf16_f32 v%d, v%d, v%d" % (244 + 2 * i, CH[0]['H'] + 2 * i, CH[1]['H'] + 2 * i))
        r("v_cvt_pk_bf16_f32 v%d, -v%d, -v%d" % (245 + 2 * i, CH[0]['H'] + 2 * i + 1, CH[1]['H'] + 2 * i + 1))
    cur_seg[0] = 3
    r("s_lshl_b32 s%d, s%d, 11" % (sA_, sW_ID))
    r("s_add_u32 s%d, s%d, %d" % (sA_, sA_, SCR))
    r("v_lshlrev_b32 v14, 5, v%d" % vL)
    r("v_add_u32 v14, s%d, v14" % sA_)
    rds("ds_write_b128 v14, v[244:247]", "hw")
    rds("ds_write_b128 v14, v[248:251] offset:16", "hw")
    r("v_lshlrev_b32 v15, 3, v%d" % vL)
    r("v_add_u32 v15, s%d, v15" % sA_)
    rwait_ds("hw")
    for j in range(4):
        rds("ds_read_b64 %s, v15 offset:%d" % (vr(152 + 2 * j, 2), 512 * j), ("hr", j))
    r("v_lshlrev_b32 v14, 16, v%d" % vHI)
    r("v_lshl_add_u32 v14, v%d, 4, v14" % vR)
    r("s_lshr_b32 s%d, s2, 2" % sA_)
    r("s_lshl_b32 s%d, s%d, 10" % (sA_, sA_))
    r("s_lshr_b32 s%d, s2, 1" % sB_)
    r("s_and_b32 s%d, s%d, 1" % (sB_, sB_))
    r("s_lshl_b32 s%d, s%d, 9" % (sB_, sB_))
    r("s_add_u32 s%d, s%d, s%d" % (sA_, sA_, sB_))
    r("s_and_b32 s%d, s2, 1" % sB_)
    r("s_lshl_b32 s%d, s%d, 3" % (sB_, sB_))
    r("s_add_u32 s%d, s%d, s%d" % (sA_, sA_, sB_))
    r("s_lshl_b32 s%d, s%d, 19" % (sB_, sW_ID))
    r("s_add_u32 s%d, s%d, s%d" % (sA_, sA_, sB_))
    r("s_add_u32 s%d, s%d, 0x%x" % (sA_, sA_, HF))
    for j in range(4):
        r("s_add_u32 s%d, s%d, %d" % (sB_, sA_, j * 131072))
        rwait_ds(("hr", j))
        rvmem("buffer_store_dwordx2 %s, v14, %s, s%d offen sc1" % (vr(152 + 2 * j, 2), sr(SRD_WS, 4), sB_), "Hst")
    def weave(seg, n):
        for _ in range(n):
            if segs[seg]:
                segs[seg].pop(0)()
    q_dma(1); q_dma(2)
    drain_all()
    BURST = int(os.environ.get("KVBURST", "16"))
    kvst = []
    for k_ in range(16):
        kvst.append(lambda k_=k_: kb.vmem("buffer_store_dwordx4 %s, v%d, %s, s%d offen offset:%d sc1" % (vr(16 + 4 * k_, 4), vL16, sr(SRD_WS, 4), 92 + (k_ >> 2), 1024 * (k_ & 3)), "kv"))
    for _ in range(BURST):
        kvst.pop(0)()
    e("s_waitcnt lgkmcnt(0)")
    e("s_mov_b32 s10, 256"); e("s_mov_b32 s11, 0x00020000")
    FQ = POOL + 16
    def q_reads(ks, st):
        f = FQ + 20 * st
        kb.ds("ds_read_b128 %s, v%d" % (vr(f, 4), vPA + ks), ("x", st))
        for b_ in range(4):
            for jj in range(2):
                kb.ds("ds_read_b64_tr_b16 %s, v%d offset:%d" % (vr(f + 4 + 4 * b_ + 2 * jj, 2), vPW + b_, 4096 * ks + 1024 * jj), ("w", st, b_))
    def tile_pieces():
        def f():
            dma_tile()
        pending.append(f)
    kb.wait_vm(("q", 0))
    e("s_waitcnt lgkmcnt(0)")
    e("s_barrier")
    kb.lg = []
    q_reads(0, 0)
    for j in range(8):
        for ks in range(4):
            cur = ks & 1
            if ks < 3:
                q_reads(ks + 1, cur ^ 1)
            elif j < 7:
                drain_all()
                kb.wait_ds_all()
                if j == 5:
                    kb.wait_vm_all()
                else:
                    kb.wait_vm(("q", j + 1))
                e("s_barrier")
                if j + 3 <= 7:
                    q_dma(j + 3)
                if j == 5:
                    assert not kvst and "kv" not in kb.vm
                    e("s_cmp_eq_u32 s%d, 0" % sW_ID)
                    e("s_cbranch_scc0 L_k2_nosig")
                    e("s_lshl_b32 s%d, s%d, 2" % (sT, sH))
                    e("v_mov_b32 v13, 1")
                    e("v_mov_b32 v14, s%d" % sT)
                    e("v_mov_b32 v15, 128")
                    e("s_mov_b64 exec, 1")
                    e("buffer_atomic_add v13, v14, %s, 0 offen sc1" % sr(SRD_DBG, 4))
                    e("buffer_atomic_add v13, v15, %s, 0 offen sc1" % sr(SRD_DBG, 4))
                    e("s_mov_b64 exec, -1")
                    kb.label("L_k2_nosig")
                d = QB[(j + 1) % 3] - QB[j % 3]
                for r in list(range(vPA, vPA + 4)) + list(range(vPW, vPW + 4)):
                    if d > 0:
                        e("v_add_u32 v%d, 0x%x, v%d" % (r, d, r))
                    else:
                        e("v_subrev_u32 v%d, 0x%x, v%d" % (r, -d, r))
                q_reads(0, 0)
            f = FQ + 20 * cur
            for b_ in range(4):
                kb.wait_ds(("x", cur)); kb.wait_ds(("w", cur, b_))
                acc = vr(O + 16 * b_, 16)
                e("v_mfma_f32_32x32x16_bf16 %s, %s, %s, %s" % (acc, vr(f + 4 + 4 * b_, 4), vr(f, 4), "0" if (j == 0 and ks == 0) else acc))
                drain()
                if kvst and b_ == 3:
                    kvst.pop(0)()
    kb.stamp(3)
    e("s_barrier")
    e("s_lshl_b32 s%d, s%d, 2" % (sT, sH))
    poll(sT, 8)
    dma_tile(); dma_tile()
    kb.nop(10)
    for k in range(32):
        e("v_cvt_pk_bf16_f32 v%d, v%d, v%d" % (Q + k, O + 2 * k, O + 2 * k + 1))
    e("s_cmp_eq_u32 s%d, 0" % sGRP)
    e("s_cbranch_scc1 L_k2_noqst")
    e("s_lshl_b32 s%d, s%d, 13" % (sT2, sWQ))
    e("s_add_u32 s%d, s%d, %d" % (sT2, sT2, QST))
    e("v_add_u32 v13, s%d, v%d" % (sT2, vL16))
    for k in range(8):
        e("ds_write_b128 v13, %s offset:%d" % (vr(Q + 4 * k, 4), 1024 * k))
    kb.label("L_k2_noqst")
    reset_state()
    e("s_waitcnt vmcnt(8)")
    e("s_barrier")
    kb.label("L_k2_prodone")
    kb.lg = []
    for f in range(16):
        kb.ds("ds_read_b128 %s, v%d offset:%d" % (vr(POOL + 4 * f, 4), vF, 1024 * f), ("K", f))
    ENTRY_LG = list(kb.lg)
    kb.stamp(1)

    rare_blocks = []
    def sync_block(kind):
        kb.wait_all()
        e("s_barrier")
        if kind in ("B", "A2"):
            e("s_xor_b32 s%d, s%d, 0x8000" % (sF, sF))
        elif kind == "A1":
            e("s_xor_b32 s%d, s%d, 0x8000" % (sF, sF))
        elif kind == "A1m":
            e("s_xor_b32 s%d, s%d, 0x8000" % (sF, sF))
            e("s_cmp_eq_u32 s%d, 1" % sCnt)
            e("s_cselect_b32 s%d, %d, s%d" % (sF, AREG, sF))
        e("v_add_u32 v%d, s%d, v%d" % (vF, sF, vL16))

    sDK, sDV = 62 + 1, 51
    def iter_body(kind, masked):
        sync_pre = kind == "B"
        dma = (kind in ("B", "A2")) and not masked
        assert kb.lg == ENTRY_LG, kb.lg
        if kind == "B":
            e("s_setprio 0")
        for f in range(16):
            u, s = f >> 3, f & 7
            kb.wait_ds(("K", f))
            e("v_mfma_f32_32x32x16_bf16 %s, %s, %s, %s" % (vr(S + 16 * u, 16), vr(POOL + 4 * f, 4), vr(Q + 4 * s, 4), vr(CI, 16) if s == 0 else vr(S + 16 * u, 16)))
            s4, dt = f >> 2, f & 3
            kb.ds("ds_read_b128 %s, v%d offset:%d" % (vr(POOL + 4 * f, 4), vF, 16384 + 1024 * (dt * 4 + s4)), ("V", f))
        if sync_pre:
            sync_block(kind)
        e("s_setprio 3")
        lr = kb.newlabel("rare"); lx = kb.newlabel("exp")
        if masked:
            e("v_add_u32 v%d, s%d, v%d" % (vThr, sD, vRm))
            kb.nop(12)
            for b in range(8):
                for k in range(4):
                    idx = 4 * b + k; u, r = idx >> 4, idx & 15
                    c = 32 * u + (r & 3) + 8 * (r >> 2)
                    e("v_cmp_gt_i32 %s, %d, v%d" % (sr(sCm + 2 * k, 2), c, vThr))
                for k in range(4):
                    idx = 4 * b + k
                    e("v_cndmask_b32 v%d, v%d, v%d, %s" % (S + idx, S + idx, vNeg, sr(sCm + 2 * k, 2)))
        e("s_cmp_lg_u32 s%d, 0" % sFirst)
        e("s_cbranch_scc1 %s" % lr)
        kb.label(lx)
        rare_blocks.append((lr, lx))
        NT = 6
        pend_l = []
        for k in range(32):
            e("v_exp_f32 v%d, v%d" % (ET + k % NT, S + k))
            if k >= 2 and (k & 1) == 0:
                j = (k - 2) >> 1
                e("v_cvt_pk_bf16_f32 v%d, v%d, v%d" % (P + j, ET + (k - 2) % NT, ET + (k - 1) % NT))
                if (j & 3) == 3:
                    pend_l.append(j >> 2)
            elif pend_l and (k & 1) == 1 and k >= 3:
                pass
            if pend_l and (k & 1) == 1:
                h = pend_l[0]
                if k >= 8 * h + 11:
                    pend_l.pop(0)
                    e("v_mfma_f32_16x16x32_bf16 %s, %s, %s, %s" % (vr(LT, 4), vr(ONES, 4), vr(P + 4 * h, 4), "0" if h == 0 else vr(LT, 4)))
        e("s_nop 0")
        e("v_cvt_pk_bf16_f32 v%d, v%d, v%d" % (P + 15, ET + 30 % NT, ET + 31 % NT))
        e("s_nop 1")
        assert not pend_l, pend_l
        e("v_mfma_f32_16x16x32_bf16 %s, %s, %s, %s" % (vr(LT, 4), vr(ONES, 4), vr(P + 12, 4), vr(LT, 4)))
        kb.nop(8)
        e("v_max_f32 v%d, v%d, v%d" % (vT2, LT, LT + 1))
        e("v_cmp_nge_f32 vcc, s%d, v%d" % (sThr, vT2))
        e("s_cbranch_vccnz %s" % lr)
        e("v_add_f32 v%d, v%d, v%d" % (LA, LA, LT))
        e("v_add_f32 v%d, v%d, v%d" % (LA + 1, LA + 1, LT + 1))
        e("s_setprio %d" % (int(os.environ.get("BPRIO", "1")) if kind == "B" else int(os.environ.get("APRIO", "0"))))
        if not sync_pre:
            sync_block(kind)
        if dma:
            e("s_lshl_b32 s%d, s%d, 14" % (sT, sNext))
            e("s_add_u32 s%d, s%d, s%d" % (sDK, sT, sKb))
            e("s_add_u32 s%d, s%d, s%d" % (sDV, sT, sVb))
            e("s_mov_b32 m0, s%d" % sMK)
            e("s_add_u32 s%d, s%d, 1" % (sNext, sNext))
        for k in range(16):
            s4, dt = k >> 2, k & 3
            kb.wait_ds(("V", k))
            e("v_mfma_f32_32x32x16_bf16 %s, %s, %s, %s" % (vr(O + 16 * dt, 16), vr(POOL + 4 * k, 4), vr(P + 4 * s4, 4), vr(O + 16 * dt, 16)))
            kb.ds("ds_read_b128 %s, v%d offset:%d" % (vr(POOL + 4 * k, 4), vF, 1024 * k), ("K", k))
            if dma and (k & 1) == 0:
                n = k >> 1
                e("buffer_load_dwordx4 v%d, %s, s%d offen offset:%d lds" % (vDMA, sr(SRD_WS, 4), sDK if n < 4 else sDV, 1024 * (n & 3)))
                if n == 3:
                    e("s_mov_b32 m0, s%d" % sMV)
        if dma:
            e("s_xor_b32 s%d, s%d, 0x8000" % (sMK, sMK))
            e("s_xor_b32 s%d, s%d, 0x8000" % (sMV, sMV))
        assert kb.lg == ENTRY_LG, kb.lg

    def loop(setup, kind, masked, may_be_zero):
        setup()
        lab = kb.newlabel("loop"); done = kb.newlabel("loopdone")
        if may_be_zero:
            e("s_cmp_lt_i32 s%d, 1" % sCnt)
            e("s_cbranch_scc1 %s" % done)
        kb.label(lab)
        iter_body(kind, masked)
        if masked:
            e("s_sub_u32 s%d, s%d, 64" % (sD, sD))
        e("s_sub_u32 s%d, s%d, 1" % (sCnt, sCnt))
        e("s_cmp_lg_u32 s%d, 0" % sCnt)
        e("s_cbranch_scc1 %s" % lab)
        kb.label(done)

    def l_to_rows(dst):
        e("v_and_b32 v13, 15, v%d" % vL)
        e("v_lshlrev_b32 v13, 2, v13")
        e("ds_bpermute_b32 v14, v13, v%d" % LA)
        e("ds_bpermute_b32 v15, v13, v%d" % (LA + 1))
        e("v_and_b32 v13, 16, v%d" % vL)
        e("v_cmp_ne_u32 vcc, 0, v13")
        kb.wait_ds_all()
        e("s_nop 1")
        e("v_cndmask_b32 v%d, v14, v15, vcc" % dst)

    def ctx_base(high):
        if high:
            e("s_sub_u32 s%d, 15, s%d" % (sT, sI))
        else:
            e("s_mov_b32 s%d, s%d" % (sT, sI))
        e("s_lshl_b32 s%d, s%d, 2" % (sT, sT))
        e("s_add_u32 s%d, s%d, s%d" % (sT, sT, sWQ))
        e("s_lshl_b32 s%d, s%d, 5" % (sT, sT))
        e("s_add_u32 s%d, s%d, s%d" % (sT, sT, sH))
        e("s_lshl_b32 s%d, s%d, 13" % (sT, sT))
        e("s_add_u32 s%d, s%d, 0x%x" % (sCtx, sT, CF))
        e("s_add_u32 s%d, s%d, 4096" % (sCtx + 1, sCtx))

    e("s_cmp_eq_u32 s%d, 0" % sGRP)
    e("s_cbranch_scc0 L_k2_groupB")
    loop(lambda: e("s_lshl_b32 s%d, s%d, 1" % (sCnt, sI)), "A1", False, True)
    def m1():
        e("s_mov_b32 s%d, 2" % sCnt)
        e("s_lshl_b32 s%d, s%d, 5" % (sD, sWQ))
    loop(m1, "A1m", True, False)
    e("s_mov_b32 s%d, 128" % sT)
    poll(sT, 256)
    e("s_lshl_b32 s%d, s%d, 13" % (sT2, sWQ))
    e("s_add_u32 s%d, s%d, %d" % (sT2, sT2, QST))
    e("v_add_u32 v13, s%d, v%d" % (sT2, vL16))
    for k in range(8):
        kb.ds("ds_read_b128 %s, v13 offset:%d" % (vr(Q + 4 * k, 4), 1024 * k), ("Qh", k))
    ctx_base(False)
    l_to_rows(vT)
    e("v_rcp_f32 v%d, v%d" % (vT, vT))
    e("s_nop 0")
    for s in range(8):
        t = S + 8 * (s & 3)
        for k in range(8):
            e("v_mul_f32 v%d, v%d, v%d" % (t + k, O + 8 * s + k, vT))
        for k in range(4):
            e("v_cvt_pk_bf16_f32 v%d, v%d, v%d" % (t + k, t + 2 * k, t + 2 * k + 1))
        e("buffer_store_dwordx4 %s, v%d, %s, s%d offen offset:%d sc1" % (vr(t, 4), vL16, sr(SRD_WS, 4), sCtx + (s >> 2), 1024 * (s & 3)))
    e("s_lshl_b32 s%d, s2, 14" % sT)
    e("s_and_b32 s%d, s%d, 1" % (sT2, sWQ))
    e("s_lshl_b32 s%d, s%d, 22" % (sT2, sT2))
    e("s_add_u32 s%d, s%d, s%d" % (sT, sT, sT2))
    e("s_lshr_b32 s%d, s%d, 1" % (sT2, sWQ))
    e("s_lshl_b32 s%d, s%d, 13" % (sT2, sT2))
    e("s_add_u32 s%d, s%d, s%d" % (sT, sT, sT2))
    e("s_add_u32 s%d, s%d, 0x%x" % (sT, sT, GT))
    e("s_lshl_b32 s%d, s%d, 13" % (sT2, sWQ))
    e("s_add_u32 s%d, s%d, %d" % (sT2, sT2, QST))
    e("s_mov_b32 m0, s%d" % sT2)
    e("s_add_u32 s%d, s%d, 4096" % (sT3, sT))
    for n in range(4):
        e("buffer_load_dwordx4 v%d, %s, s%d offen offset:%d lds" % (vL16, sr(SRD_WS, 4), sT, 1024 * n))
    e("s_add_u32 s%d, s%d, 4096" % (sT2, sT2))
    e("s_mov_b32 m0, s%d" % sT2)
    e("s_nop 0")
    for n in range(4):
        e("buffer_load_dwordx4 v%d, %s, s%d offen offset:%d lds" % (vL16, sr(SRD_WS, 4), sT3, 1024 * n))
    reset_state()
    kb.lg = list(ENTRY_LG)
    def n2():
        e("s_lshl_b32 s%d, s%d, 1" % (sT, sI))
        e("s_sub_u32 s%d, 13, s%d" % (sCnt, sT))
    loop(n2, "A2", False, True)
    def m2():
        e("s_lshl_b32 s%d, s%d, 5" % (sD, sWQ))
        e("s_sub_u32 s%d, s%d, 64" % (sT, sD))
        e("s_cmp_eq_u32 s%d, 7" % sI)
        e("s_cselect_b32 s%d, 1, 2" % sCnt)
        e("s_cselect_b32 s%d, s%d, s%d" % (sD, sT, sD))
    loop(m2, "A2", True, False)
    e("s_branch L_k2_merge")
    kb.label("L_k2_groupB")
    kb.lg = list(ENTRY_LG)
    loop(lambda: e("s_mov_b32 s%d, 15" % sCnt), "B", False, False)
    def mB():
        e("s_sub_u32 s%d, 7, s%d" % (sT, sI))
        e("s_lshl_b32 s%d, s%d, 7" % (sT, sT))
        e("s_lshl_b32 s%d, s%d, 5" % (sD, sWQ))
        e("s_add_u32 s%d, s%d, s%d" % (sD, sD, sT))
        e("s_add_u32 s%d, s%d, 64" % (sD, sD))
        e("s_mov_b32 s%d, 2" % sCnt)
    loop(mB, "B", True, False)
    kb.label("L_k2_merge")
    kb.wait_ds_all()
    e("s_mov_b32 s20, s12"); e("s_mov_b32 s21, s13"); e("s_mov_b32 s22, 0x400000"); e("s_mov_b32 s23, 0x00020000")
    e("v_lshrrev_b32 v13, 2, v%d" % vL)
    e("v_lshrrev_b32 v14, 4, v%d" % vL)
    e("v_xor_b32 v13, v13, v14")
    e("v_and_b32 v13, 1, v13")
    e("v_lshlrev_b32 v13, 6, v13")
    e("v_lshrrev_b32 v14, 3, v%d" % vL)
    e("v_lshl_add_u32 v13, v14, 10, v13")
    e("v_and_b32 v14, 3, v%d" % vL)
    e("v_lshl_add_u32 v13, v14, 4, v13")
    e("v_add_u32 v14, 7168, v13")
    e("s_lshl_b32 s%d, s%d, 11" % (sT, sW_ID))
    e("s_add_u32 s%d, s%d, 98304" % (sT, sT))
    e("s_mov_b32 m0, s%d" % sT)
    e("s_lshl_b32 s%d, s2, 14" % sT2)
    e("s_lshl_b32 s%d, s%d, 7" % (sT3, sW_ID))
    e("s_add_u32 s%d, s%d, s%d" % (sT2, sT2, sT3))
    e("buffer_load_dwordx4 v13, s[20:23], s%d offen lds" % sT2)
    e("buffer_load_dwordx4 v14, s[20:23], s%d offen offset:1024 lds" % sT2)
    ctx_base(True)
    vLs = ET
    l_to_rows(vLs)
    e("v_cmp_lt_f32 vcc, 0, v%d" % vLs)
    e("v_mov_b32 v13, 0x%x" % f32bits(-1e30))
    MST = 8704
    e("s_mul_i32 s%d, s%d, %d" % (sT, sW_ID, MST))
    e("v_cndmask_b32 v%d, v13, v%d, vcc" % (vM, vM))
    e("v_add_u32 v14, s%d, v%d" % (sT, vL16))
    e("s_xor_b32 s%d, s%d, 4" % (sT2, sW_ID))
    e("s_mul_i32 s%d, s%d, %d" % (sT2, sT2, MST))
    e("v_add_u32 v15, s%d, v%d" % (sT2, vL16))
    e("v_lshlrev_b32 v%d, 2, v%d" % (vThr, vL))
    e("v_add_u32 v%d, s%d, v%d" % (vRm, sT, vThr))
    e("v_add_u32 v%d, s%d, v%d" % (vThr, sT2, vThr))
    e("ds_write_b32 v%d, v%d offset:8192" % (vRm, vM))
    e("ds_write_b32 v%d, v%d offset:8448" % (vRm, vLs))
    def merge_side(keep):
        give = 32 - keep
        for q in range(8):
            e("ds_write_b128 v14, %s offset:%d" % (vr(O + give + 4 * q, 4), 1024 * q))
        e("s_waitcnt lgkmcnt(0)")
        e("s_barrier")
        e("ds_read_b32 v%d, v%d offset:8192" % (S, vThr))
        e("ds_read_b32 v%d, v%d offset:8448" % (S + 1, vThr))
        for q in range(8):
            e("ds_read_b128 %s, v15 offset:%d" % (vr(POOL + 4 * q, 4), 1024 * q))
        e("s_waitcnt lgkmcnt(8)")
        e("v_max_f32 v%d, v%d, v%d" % (vT, vM, S))
        e("v_sub_f32 v%d, v%d, v%d" % (S + 2, vM, vT))
        e("v_sub_f32 v%d, v%d, v%d" % (S + 3, S, vT))
        e("v_exp_f32 v%d, v%d" % (S + 2, S + 2))
        e("v_exp_f32 v%d, v%d" % (S + 3, S + 3))
        e("s_nop 0")
        e("v_mul_f32 v%d, v%d, v%d" % (vT, vLs, S + 2))
        e("v_fma_f32 v%d, v%d, v%d, v%d" % (vT, S + 1, S + 3, vT))
        e("v_rcp_f32 v%d, v%d" % (vT, vT))
        e("s_nop 0")
        e("v_mul_f32 v%d, v%d, v%d" % (S + 2, S + 2, vT))
        e("v_mul_f32 v%d, v%d, v%d" % (S + 3, S + 3, vT))
        e("s_waitcnt lgkmcnt(0)")
        for s in range(4):
            t = S + 8 + 8 * (s & 1)
            for k in range(8):
                e("v_mul_f32 v%d, v%d, v%d" % (t + k, O + keep + 8 * s + k, S + 2))
                e("v_fma_f32 v%d, v%d, v%d, v%d" % (t + k, POOL + 8 * s + k, S + 3, t + k))
            for k in range(4):
                e("v_cvt_pk_bf16_f32 v%d, v%d, v%d" % (t + k, t + 2 * k, t + 2 * k + 1))
            e("buffer_store_dwordx4 %s, v%d, %s, s%d offen offset:%d sc1" % (vr(t, 4), vL16, sr(SRD_WS, 4), sCtx + (keep >> 5), 1024 * s))
    e("s_cmp_eq_u32 s%d, 0" % sGRP)
    e("s_cbranch_scc0 L_k2_mergeB")
    merge_side(0)
    e("s_branch L_k2_scan")
    kb.label("L_k2_mergeB")
    merge_side(32)
    kb.label("L_k2_scan")
    kb.lg = []; kb.vm = []
    weave(0, 10000); weave(1, 10000)
    kb.wait_ds_all()
    e("s_barrier")
    weave(2, 10000); weave(3, 10000)
    e("s_waitcnt vmcnt(8)")
    e("v_and_b32 v13, 15, v%d" % vL)
    e("v_lshrrev_b32 v14, 2, v13")
    e("v_lshl_add_u32 v14, v%d, 2, v14" % vHI)
    e("v_lshlrev_b32 v14, 7, v14")
    e("v_bfe_u32 v%d, v%d, 4, 1" % (vT, vL))
    e("v_lshl_add_u32 v14, v%d, 5, v14" % vT)
    e("v_and_b32 v%d, 3, v13" % vT)
    e("v_lshl_add_u32 v14, v%d, 3, v14" % vT)
    e("s_lshl_b32 s%d, s%d, 11" % (sT, sW_ID))
    e("s_add_u32 s%d, s%d, 98304" % (sT, sT))
    e("v_add_u32 v14, s%d, v14" % sT)
    e("v_lshrrev_b32 v13, 3, v13")
    e("v_lshl_add_u32 v%d, v13, 6, v14" % vT)
    e("v_xor_b32 v13, 1, v13")
    e("v_lshl_add_u32 v%d, v13, 6, v14" % vT2)
    for nb in range(2):
        for jj in range(2):
            e("ds_read_b64_tr_b16 %s, v%d offset:%d" % (vr(224 + 4 * nb + 2 * jj, 2), (vT, vT2)[nb], 1024 * jj))
    e("s_lshl_b32 s%d, s%d, 19" % (sT, sW_ID))
    e("s_lshl_b32 s%d, s2, 10" % sT2)
    e("s_add_u32 s%d, s%d, s%d" % (sT, sT, sT2))
    e("s_add_u32 s%d, s%d, 0x%x" % (sT, sT, WOF))
    e("s_add_u32 s%d, s%d, 0x40000" % (sT2, sT))
    e("s_waitcnt lgkmcnt(0)")
    e("buffer_store_dwordx4 v[224:227], v%d, %s, s%d offen sc1" % (vL16, sr(SRD_WS, 4), sT))
    e("buffer_store_dwordx4 v[228:231], v%d, %s, s%d offen sc1" % (vL16, sr(SRD_WS, 4), sT2))

    kb.stamp(4)
    kb.dump_stamps([0, 2, 3, 1, 4, 4, 4, 4], sW_ID, int(os.environ.get('STWG', '100')))
    kb.wgtime_end(SRD_WS, 0)
    e("s_branch L_k2_end")

    for lr, lx in rare_blocks:
        kb.label(lr)
        kb.nop(12)
        e("v_max3_f32 v%d, v%d, v%d, v%d" % (vT, S, S + 1, S + 2))
        for k in range(3, 31, 2):
            e("v_max3_f32 v%d, v%d, v%d, v%d" % (vT, vT, S + k, S + k + 1))
        e("v_max_f32 v%d, v%d, v%d" % (vT, vT, S + 31))
        e("v_mov_b32 v%d, v%d" % (vT2, vT))
        e("s_nop 1")
        e("v_permlane32_swap_b32 v%d, v%d" % (vT, vT2))
        e("v_max_f32 v%d, v%d, v%d" % (vT, vT, vT2))
        e("v_max_f32 v%d, s%d, v%d" % (vT, sFloor, vT))
        e("v_mov_b32 v13, 0x%x" % f32bits(-1e30))
        e("v_cmp_lt_f32 vcc, v13, v%d" % vT)
        e("s_mov_b32 s%d, 0" % sFirst)
        e("s_mov_b32 s%d, 0" % sFloor)
        e("v_cndmask_b32 v%d, 0, v%d, vcc" % (vT, vT))
        e("v_max_f32 v13, 0, v%d" % vT)
        e("v_exp_f32 v13, -v13")
        e("v_add_f32 v%d, v%d, v%d" % (vM, vM, vT))
        e("v_mul_f32 v13, s%d, v13" % sKeep)
        e("s_mov_b32 s%d, 1.0" % sKeep)
        e("v_mov_b32 v14, v13")
        e("v_mov_b32 v15, v13")
        for k in range(16):
            e("v_sub_f32 v%d, 0, v%d" % (CI + k, vM))
        e("v_permlane16_swap_b32 v14, v15")
        e("v_mul_f32 v%d, v%d, v13" % (LA, LA))
        e("v_mul_f32 v%d, v%d, v15" % (LA + 1, LA + 1))
        for k in range(32):
            e("v_sub_f32 v%d, v%d, v%d" % (S + k, S + k, vT))
        for k in range(64):
            e("v_mul_f32 v%d, v%d, v13" % (O + k, O + k))
        e("s_branch %s" % lx)
    kb.label("L_k2_end")
```

```python
import sys
from asmlib import *
from layout import *
import k1
NAME = "concat_heads__compressed_kv_cla__ssm_conv_s5__prompt"
def build(which=("k1","k2","k3")):
    kernels = []
    if "k1" in which:
        kernels.append(("proj_kernel", k1.gen_k1(), 256, 102, (256,1,1), (512,1,1), 163840))
    if "k2" in which:
        import k2
        kernels.append(("attn_kernel", k2.gen_k2(), 256, 102, (256,1,1), (512,1,1), 163840))
    if "k12" in which:
        import m1, m2
        kb = KB("m")
        m1.gen_part1(kb); m2.gen_part2(kb)
        kernels.append(("projattn_kernel", kb.text(), 256, 102, (256,1,1), (512,1,1), 163840))
    if "k3" in which:
        import k3
        kernels.append(("outp_kernel", k3.gen_k3(), 256, 102, (256,1,1), (512,1,1), 163840))
    out = ["; generated by gen/gen.py"]
    for (n, b, vg, sg, g, bl, lds) in kernels:
        out.append("; @launch kernel=%s grid=(%d,%d,%d) block=(%d,%d,%d) lds=%d" % ((n,) + g + bl + (lds,)))
    out.append('.amdgcn_target "amdgcn-amd-amdhsa--gfx950"')
    out.append(".text")
    s = "\n".join(out) + "\n"
    for (n, b, vg, sg, g, bl, lds) in kernels:
        s += kernel_wrap(n, b, vg, sg)
    s += '.section .rodata,"a"\n'
    for (n, b, vg, sg, g, bl, lds) in kernels:
        s += kernel_desc(n, vg, sg)
    return s
if __name__ == "__main__":
    which = sys.argv[2].split(",") if len(sys.argv) > 2 else ("k1","k2","k3")
    open(sys.argv[1], "w").write(build(which))
```

```python
from asmlib import *
from layout import *
import os

def gen_k1():
    kb = KB("k1")
    e = kb.e
    sW_ID, sM, sH = 3, 4, 5
    SRD_CKV, SRD_X, SRD_W1, SRD_WQ, SRD_XB, SRD_BM, SRD_WS = 32, 36, 40, 44, 48, 52, 56
    sA, sW, sMA, sMW, sCnt, sT, sT2 = 60, 61, 62, 63, 64, 65, 66
    sA2, sW2 = 67, 68
    sGX, sGB = 69, 70
    sGT_, sGC = 71, 72
    sEp = 73
    vL, vR, vHI, vI16, vG4 = 1, 2, 3, 4, 5
    vOffA = 8
    vOffW = 12
    vGB = 13
    vL16 = 14
    vGst = 15
    vA = 16
    vW = 20
    vPA = 24
    vA2 = 28
    vW2 = 22
    TMP = 32
    FA = 64
    FW = 96
    vGacc = 112
    ACC = 128

    e("s_cmp_ge_u32 s2, 256")
    e("s_cbranch_scc1 L_k1_end")
    kb.stamp(0)
    kb.wgtime_begin()
    e("s_load_dwordx16 s[8:23], s[0:1], 0")
    e("s_load_dwordx4 s[24:27], s[0:1], %d" % KA['bre'])
    e("s_load_dwordx2 s[28:29], s[0:1], %d" % KA['ws'])
    e("s_load_dwordx4 s[76:79], s[0:1], %d" % KA['cre'])
    e("v_and_b32 v%d, 63, v0" % vL)
    e("v_lshrrev_b32 v2, 6, v0")
    e("s_nop 0")
    e("v_readfirstlane_b32 s%d, v2" % sW_ID)
    e("v_and_b32 v%d, 31, v%d" % (vR, vL))
    e("v_lshrrev_b32 v%d, 5, v%d" % (vHI, vL))
    e("v_and_b32 v%d, 15, v%d" % (vI16, vL))
    e("v_lshrrev_b32 v%d, 4, v%d" % (vG4, vL))
    e("v_lshlrev_b32 v%d, 4, v%d" % (vL16, vL))
    e("s_and_b32 s%d, s2, 7" % sT)
    e("s_lshl_b32 s%d, s%d, 2" % (sT, sT))
    e("s_lshr_b32 s%d, s2, 3" % sT2)
    e("s_and_b32 s%d, s%d, 3" % (sT2, sT2))
    e("s_add_u32 s%d, s%d, s%d" % (sH, sT, sT2))
    e("s_lshr_b32 s%d, s2, 5" % sM)
    e("s_and_b32 s%d, s2, 15" % sGT_)
    e("s_lshr_b32 s%d, s2, 4" % sGC)
    e("v_lshrrev_b32 v32, 3, v%d" % vL)
    e("v_lshlrev_b32 v32, 10, v32")
    e("v_and_b32 v33, 7, v%d" % vL)
    e("v_xor_b32 v34, v33, v%d" % vG4)
    e("v_xor_b32 v35, 4, v34")
    e("v_lshl_add_u32 v%d, v34, 4, v32" % (vOffA + 0))
    e("v_lshl_add_u32 v%d, v35, 4, v32" % (vOffA + 1))
    e("v_add_u32 v%d, %d, v%d" % (vOffA + 2, 2 * 7168, vOffA + 0))
    e("v_add_u32 v%d, %d, v%d" % (vOffA + 3, 3 * 7168, vOffA + 1))
    e("s_and_b32 s%d, s%d, 1" % (sT, sW_ID))
    e("s_cmp_eq_u32 s%d, 1" % sT)
    e("s_cselect_b64 vcc, -1, 0")
    e("v_cndmask_b32 v%d, v%d, v%d, vcc" % (vGB, vOffA + 0, vOffA + 1))
    e("v_add_u32 v%d, %d, v%d" % (vOffA + 1, 7168, vOffA + 1))
    e("v_lshrrev_b32 v32, 2, v%d" % vL)
    e("v_and_b32 v32, 3, v32")
    e("v_xor_b32 v32, v32, v%d" % vG4)
    e("v_lshlrev_b32 v32, 6, v32")
    e("v_lshl_add_u32 v32, v%d, 13, v32" % vG4)
    e("v_and_b32 v33, 3, v%d" % vL)
    e("v_lshl_add_u32 v%d, v33, 4, v32" % vOffW)
    e("v_lshrrev_b32 v32, 1, v%d" % vR)
    e("v_and_b32 v32, 7, v32")
    for ks in range(4):
        e("v_add_u32 v33, %d, v%d" % (2 * ks, vHI))
        e("v_xor_b32 v33, v33, v32")
        e("v_lshlrev_b32 v33, 4, v33")
        e("v_lshl_add_u32 v%d, v%d, 7, v33" % (vPA + ks, vR))
    e("v_lshrrev_b32 v34, 2, v%d" % vI16)
    e("v_lshl_add_u32 v35, v%d, 3, v34" % vHI)
    e("v_lshlrev_b32 v35, 8, v35")
    e("v_and_b32 v36, 1, v%d" % vG4)
    e("v_lshl_add_u32 v35, v36, 5, v35")
    e("v_and_b32 v36, 3, v%d" % vI16)
    e("v_lshl_add_u32 v35, v36, 3, v35")
    e("s_lshr_b32 s%d, s%d, 1" % (sT, sW_ID))
    e("s_and_b32 s%d, s%d, 1" % (sT, sT))
    e("s_lshl_b32 s%d, s%d, 1" % (sT, sT))
    e("s_lshr_b32 s%d, s%d, 2" % (sT2, sW_ID))
    e("s_lshl_b32 s%d, s%d, 14" % (sT2, sT2))
    e("s_add_u32 s%d, s%d, 32768" % (sT2, sT2))
    for nb in range(2):
        e("v_add_u32 v36, %d, v34" % 0)
        e("v_xor_b32 v36, s%d, v36" % sT)
        if nb:
            e("v_xor_b32 v36, 1, v36")
        e("v_lshl_add_u32 v36, v36, 6, v35")
        e("v_add_u32 v%d, s%d, v36" % (vW + nb, sT2))
    e("s_lshr_b32 s%d, s%d, 2" % (sT, sW_ID))
    e("s_lshl_b32 s%d, s%d, 1" % (sT, sT))
    for nb in range(2):
        e("v_xor_b32 v36, s%d, v34" % sT)
        if nb:
            e("v_xor_b32 v36, 1, v36")
        e("v_lshl_add_u32 v36, v36, 6, v35")
        e("v_add_u32 v%d, 0x8000, v36" % (vW2 + nb))
    e("s_and_b32 s%d, s%d, 1" % (sT, sW_ID))
    e("s_lshl_b32 s%d, s%d, 14" % (sT, sT))
    e("s_and_b32 s%d, s%d, 3" % (sT2, sW_ID))
    e("s_lshl_b32 s%d, s%d, 13" % (sT2, sT2))
    for ks in range(4):
        e("v_add_u32 v%d, s%d, v%d" % (vA + ks, sT, vPA + ks))
        e("v_add_u32 v%d, s%d, v%d" % (vA2 + ks, sT2, vPA + ks))
    e("v_lshlrev_b32 v36, 4, v%d" % vHI)
    e("v_lshl_add_u32 v%d, v%d, 13, v36" % (vGst, vR))
    for i in range(128):
        e("v_mov_b32 v%d, 0" % (ACC + i))
    for i in range(16):
        e("v_mov_b32 v%d, 0" % (vGacc + i))
    e("s_waitcnt lgkmcnt(0)")
    kb.srd(SRD_X, 8, 2048 * 1024)
    kb.srd(SRD_CKV, 10, 2048 * 1024)
    kb.srd(SRD_WQ, 12, 512 * 8192)
    e("s_cmp_lt_u32 s%d, 4" % sW_ID)
    e("s_cselect_b32 s%d, s14, s16" % SRD_W1)
    e("s_cselect_b32 s%d, s15, s17" % (SRD_W1 + 1))
    e("s_mov_b32 s%d, 0x%x" % (SRD_W1 + 2, 512 * 8192))
    e("s_mov_b32 s%d, 0x00020000" % (SRD_W1 + 3))
    kb.srd(SRD_XB, 20, 2048 * 1024)
    e("s_and_b32 s%d, s%d, 1" % (sT, sGC))
    e("s_cmp_eq_u32 s%d, 0" % sT)
    e("s_cselect_b32 s%d, s24, s26" % SRD_BM)
    e("s_cselect_b32 s%d, s25, s27" % (SRD_BM + 1))
    e("s_mov_b32 s%d, 0x%x" % (SRD_BM + 2, 512 * 1024))
    e("s_mov_b32 s%d, 0x00020000" % (SRD_BM + 3))
    kb.srd(SRD_WS, 28, WS_BYTES)
    e("s_cmp_lt_u32 s%d, 4" % sW_ID)
    e("s_cbranch_scc1 L_k1_nocf")
    e("s_lshl_b32 s%d, s2, 2" % sT)
    e("s_add_u32 s%d, s%d, s%d" % (sT, sT, sW_ID))
    e("s_sub_u32 s%d, s%d, 4" % (sT, sT))
    e("s_lshl_b32 s75, s%d, 10" % sT)
    e("s_add_u32 s75, s75, 0x%x" % CFR)
    e("s_and_b32 s%d, s%d, 63" % (sT2, sT))
    e("s_lshl_b32 s%d, s%d, 4" % (sT2, sT2))
    e("s_lshr_b32 s%d, s%d, 6" % (sT, sT))
    e("s_lshl_b32 s%d, s%d, 15" % (sT, sT))
    e("s_add_u32 s%d, s%d, s%d" % (sT, sT, sT2))
    e("v_lshlrev_b32 v6, 3, v%d" % vHI)
    e("v_lshl_add_u32 v6, v%d, 10, v6" % vR)
    e("s_mov_b32 s28, s76"); e("s_mov_b32 s29, s77"); e("s_mov_b32 s30, 0x80000"); e("s_mov_b32 s31, 0x00020000")
    e("buffer_load_dwordx2 v[96:97], v6, s[28:31], s%d offen" % sT)
    e("s_mov_b32 s28, s78"); e("s_mov_b32 s29, s79")
    e("s_nop 0")
    e("buffer_load_dwordx2 v[98:99], v6, s[28:31], s%d offen" % sT)
    kb.label("L_k1_nocf")
    e("s_lshl_b32 s%d, s%d, 18" % (sA, sM))
    e("s_lshl_b32 s%d, s%d, 15" % (sT, sW_ID))
    e("s_add_u32 s%d, s%d, s%d" % (sA, sA, sT))
    e("s_mov_b32 s%d, s%d" % (sA2, sA))
    e("s_and_b32 s%d, s%d, 3" % (sT, sW_ID))
    e("s_lshl_b32 s%d, s%d, 17" % (sT, sT))
    e("s_lshl_b32 s%d, s%d, 8" % (sT2, sH))
    e("s_add_u32 s%d, s%d, s%d" % (sW, sT, sT2))
    e("s_lshl_b32 s%d, s%d, 16" % (sT, sW_ID))
    e("s_add_u32 s%d, s%d, s%d" % (sW2, sT, sT2))
    e("s_lshl_b32 s%d, s%d, 17" % (sGX, sGT_))
    e("s_lshl_b32 s%d, s%d, 14" % (sT, sW_ID))
    e("s_add_u32 s%d, s%d, s%d" % (sGX, sGX, sT))
    e("s_lshr_b32 s%d, s%d, 1" % (sT, sGC))
    e("s_lshl_b32 s%d, s%d, 16" % (sGB, sT))
    e("s_lshl_b32 s%d, s%d, 13" % (sT, sW_ID))
    e("s_add_u32 s%d, s%d, s%d" % (sGB, sGB, sT))
    e("s_lshl_b32 s%d, s%d, 12" % (sMA, sW_ID))
    e("s_add_u32 s%d, s%d, 32768" % (sMW, sMA))

    pending = []
    sDT = 74
    def drain(n=1):
        for _ in range(n):
            if pending:
                pending.pop(0)()
    def drain_all():
        while pending:
            pending.pop(0)()
    def pieces_p1(tag):
        out = []
        for n in range(4):
            def f(n=n):
                if n == 0:
                    e("s_mov_b32 m0, s%d" % sMA)
                    e("s_nop 0")
                kb.vmem("buffer_load_dwordx4 v%d, %s, s%d offen offset:%d lds" % (vOffA + n, sr(SRD_CKV, 4), sA, 1024 * n), tag)
            out.append(f)
        for n in range(4):
            def f(n=n):
                if n == 0:
                    e("s_mov_b32 m0, s%d" % sMW)
                e("s_add_u32 s%d, s%d, %d" % (sDT, sW, n * 31744))
                kb.vmem("buffer_load_dwordx4 v%d, %s, s%d offen offset:%d lds" % (vOffW, sr(SRD_W1, 4), sDT, 1024 * n), tag)
                if n == 3:
                    e("s_add_u32 s%d, s%d, 128" % (sA, sA))
                    e("s_add_u32 s%d, s%d, %d" % (sW, sW, 64 * 8192))
                    e("s_xor_b32 s%d, s%d, 0x10000" % (sMA, sMA))
                    e("s_xor_b32 s%d, s%d, 0x10000" % (sMW, sMW))
            out.append(f)
        return out
    PB = [0, 65536, 114688]
    def pieces_p2(tag, buf):
        out = []
        for n in range(4):
            def f(n=n):
                if n == 0:
                    e("s_lshl_b32 s%d, s%d, 12" % (sDT, sW_ID))
                    e("s_add_u32 s%d, s%d, %d" % (sDT, sDT, buf))
                    e("s_mov_b32 m0, s%d" % sDT)
                    e("s_nop 0")
                kb.vmem("buffer_load_dwordx4 v%d, %s, s%d offen offset:%d lds" % (vOffA + n, sr(SRD_X, 4), sA2, 1024 * n), tag)
            out.append(f)
        for n in range(2):
            def f(n=n):
                if n == 0:
                    e("s_lshl_b32 s%d, s%d, 11" % (sDT, sW_ID))
                    e("s_add_u32 s%d, s%d, %d" % (sDT, sDT, buf + 32768))
                    e("s_mov_b32 m0, s%d" % sDT)
                e("s_add_u32 s%d, s%d, %d" % (sDT, sW2, n * 31744))
                kb.vmem("buffer_load_dwordx4 v%d, %s, s%d offen offset:%d lds" % (vOffW, sr(SRD_WQ, 4), sDT, 1024 * n), tag)
                if n == 1:
                    e("s_add_u32 s%d, s%d, 128" % (sA2, sA2))
                    e("s_add_u32 s%d, s%d, %d" % (sW2, sW2, 64 * 8192))
            out.append(f)
        return out
    def dma_p1(tag, now=False):
        pending.extend(pieces_p1(tag))
        if now: drain_all()
    def dma_p2(j, now=False):
        pending.extend(pieces_p2(("p2", j), PB[j % 3]))
        if now: drain_all()
    def dma_g(didx, dbase, tag, now=False):
        for q in range(2):
            koff = (2 * didx + q) * 128
            for n in range(2):
                def f(n=n, q=q, koff=koff):
                    if n == 0:
                        e("s_lshl_b32 s%d, s%d, 11" % (sDT, sW_ID))
                        e("s_add_u32 s%d, s%d, %d" % (sDT, sDT, dbase + q * 24576))
                        e("s_mov_b32 m0, s%d" % sDT)
                    e("s_add_u32 s%d, s%d, %d" % (sDT, sGX, koff))
                    kb.vmem("buffer_load_dwordx4 v%d, %s, s%d offen offset:%d lds" % (vOffA + n, sr(SRD_XB, 4), sDT, 1024 * n), tag)
                pending.append(f)
            def f2(q=q, koff=koff):
                e("s_lshl_b32 s%d, s%d, 10" % (sDT, sW_ID))
                e("s_add_u32 s%d, s%d, %d" % (sDT, sDT, dbase + q * 24576 + 16384))
                e("s_mov_b32 m0, s%d" % sDT)
                e("s_add_u32 s%d, s%d, %d" % (sDT, sGB, koff))
                kb.vmem("buffer_load_dwordx4 v%d, %s, s%d offen lds" % (vGB, sr(SRD_BM, 4), sDT), tag)
            pending.append(f2)
        if now: drain_all()

    def g_half(d0, d1):
        areas = [FA, TMP]
        subs = [(d0, 0), (d0, 1), (d1, 0), (d1, 1)]
        e("s_and_b32 s%d, s%d, 3" % (sT, sW_ID))
        e("s_lshl_b32 s%d, s%d, 12" % (sT, sT))
        e("s_lshr_b32 s%d, s%d, 2" % (sT2, sW_ID))
        e("s_lshl_b32 s%d, s%d, 12" % (sT2, sT2))
        e("s_add_u32 s%d, s%d, 16384" % (sT2, sT2))
        def reads(si):
            d, q = subs[si]
            ar = areas[si & 1]
            for ks in range(4):
                e("v_add_u32 v6, s%d, v%d" % (sT, vPA + ks))
                e("v_add_u32 v7, s%d, v%d" % (sT2, vPA + ks))
                e("v_add_u32 v6, 0x%x, v6" % d)
                e("v_add_u32 v7, 0x%x, v7" % d)
                kb.ds("ds_read_b128 %s, v6 offset:%d" % (vr(ar + 8 * ks, 4), q * 24576), ("g", si, ks))
                kb.ds("ds_read_b128 %s, v7 offset:%d" % (vr(ar + 8 * ks + 4, 4), q * 24576), ("g", si, ks))
        def mf(si):
            ar = areas[si & 1]
            for ks in range(4):
                kb.wait_ds(("g", si, ks))
                e("v_mfma_f32_32x32x16_bf16 %s, %s, %s, %s" % (vr(vGacc, 16), vr(ar + 8 * ks, 4), vr(ar + 8 * ks + 4, 4), vr(vGacc, 16)))
        reads(0); reads(1); mf(0); reads(2); mf(1); reads(3); mf(2); mf(3)

    GS = 131072
    def dma_gsub(sub, tag, now=False, GS=GS):
        koff = sub * 128
        for n in range(2):
            def f(n=n):
                if n == 0:
                    e("s_lshl_b32 s%d, s%d, 11" % (sDT, sW_ID))
                    e("s_add_u32 s%d, s%d, %d" % (sDT, sDT, GS))
                    e("s_mov_b32 m0, s%d" % sDT)
                e("s_add_u32 s%d, s%d, %d" % (sDT, sGX, koff))
                kb.vmem("buffer_load_dwordx4 v%d, %s, s%d offen offset:%d lds" % (vOffA + n, sr(SRD_XB, 4), sDT, 1024 * n), tag)
            pending.append(f)
        def f2():
            e("s_lshl_b32 s%d, s%d, 10" % (sDT, sW_ID))
            e("s_add_u32 s%d, s%d, %d" % (sDT, sDT, GS + 16384))
            e("s_mov_b32 m0, s%d" % sDT)
            e("s_add_u32 s%d, s%d, %d" % (sDT, sGB, koff))
            kb.vmem("buffer_load_dwordx4 v%d, %s, s%d offen lds" % (vGB, sr(SRD_BM, 4), sDT), tag)
        pending.append(f2)
        if now: drain_all()
    def g_sub_compute(base, area):
        for ks in range(4):
            def f(ks=ks):
                e("v_add_u32 v6, s6, v%d" % (vPA + ks))
                e("v_add_u32 v7, s7, v%d" % (vPA + ks))
                if base >= 32768:
                    e("v_add_u32 v6, 0x%x, v6" % base)
                    e("v_add_u32 v7, 0x%x, v7" % base)
                off = base if base < 32768 else 0
                kb.ds("ds_read_b128 %s, v6 offset:%d" % (vr(area + 8 * ks, 4), off), ("gs", area, ks))
                kb.ds("ds_read_b128 %s, v7 offset:%d" % (vr(area + 8 * ks + 4, 4), off), ("gs", area, ks))
            pending.append(f)
        for ks in range(4):
            def f(ks=ks):
                kb.wait_ds(("gs", area, ks))
                e("v_mfma_f32_32x32x16_bf16 %s, %s, %s, %s" % (vr(vGacc, 16), vr(area + 8 * ks, 4), vr(area + 8 * ks + 4, 4), vr(vGacc, 16)))
            pending.append(f)

    class Cfg: pass
    def mkcfg(nA, va, vw, ktype):
        c = Cfg(); c.nA = nA; c.va = va; c.vw = vw; c.ktype = ktype; return c
    def frag_reads(cfg, ks, st):
        fa = FA + 16 * st; fw = FW + 8 * st
        kb.ds("ds_read_b128 %s, v%d" % (vr(fa, 4), cfg.va + ks), ("A", st, 0))
        for nb in range(2):
            for j in range(2):
                kb.ds("ds_read_b64_tr_b16 %s, v%d offset:%d" % (vr(fw + 4 * nb + 2 * j, 2), cfg.vw + nb, 4096 * ks + 1024 * j), ("W", st, nb))
        for rb in range(1, cfg.nA):
            kb.ds("ds_read_b128 %s, v%d offset:%d" % (vr(fa + 4 * rb, 4), cfg.va + ks, 4096 * rb), ("A", st, rb))
    def toggle(cfg):
        for ks in range(4):
            e("v_xor_b32 v%d, 0x10000, v%d" % (cfg.va + ks, cfg.va + ks))
        for nb in range(2):
            e("v_xor_b32 v%d, 0x10000, v%d" % (cfg.vw + nb, cfg.vw + nb))
    def mfmas(cfg, st, zero=False):
        fa = FA + 16 * st; fw = FW + 8 * st
        for rb in range(cfg.nA):
            for nb in range(2):
                kb.wait_ds(("A", st, rb)); kb.wait_ds(("W", st, nb))
                acc = vr(ACC + 16 * (2 * rb + nb), 16)
                a, b = vr(fa + 4 * rb, 4), vr(fw + 4 * nb, 4)
                if cfg.ktype:
                    a, b = b, a
                e("v_mfma_f32_32x32x16_bf16 %s, %s, %s, %s" % (acc, a, b, "0" if zero else acc))
                if cfg.nA == 2 or nb == 1 or os.environ.get("P1FAST"):
                    drain()
    def stage(cfg, need_tag, sync_action, next_reads, zero=False, allow_pending=False):
        for ks in range(4):
            cur = ks & 1
            if ks < 3:
                frag_reads(cfg, ks + 1, cur ^ 1)
            else:
                assert not pending or allow_pending, pending
                kb.wait_ds_all()
                if need_tag is None:
                    kb.wait_vm_all()
                else:
                    kb.wait_vm(need_tag)
                e("s_barrier")
                sync_action()
                next_reads()
            mfmas(cfg, cur, zero and ks == 0)

    hook = [None]
    def pack_store(acc, soff_sgpr, off0, tset, scale=None):
        for half in range(2):
            t = TMP + 4 * ((2 * tset + half) % 8)
            if scale is not None:
                for k in range(8):
                    e("v_mul_f32 v%d, s%d, v%d" % (acc + 8 * half + k, scale, acc + 8 * half + k))
            for k in range(4):
                e("v_cvt_pk_bf16_f32 v%d, v%d, v%d" % (t + k, acc + 8 * half + 2 * k, acc + 8 * half + 2 * k + 1))
            kb.vmem("buffer_store_dwordx4 %s, v%d, %s, s%d offen offset:%d sc1" % (vr(t, 4), vL16, sr(SRD_WS, 4), soff_sgpr, off0 + 1024 * half), "st")
            if hook[0]: hook[0]()

    def wo_issue():
        e("s_mov_b32 s28, s18"); e("s_mov_b32 s29, s19"); e("s_mov_b32 s30, 0x400000"); e("s_mov_b32 s31, 0x00020000")
        e("v_lshrrev_b32 v32, 2, v%d" % vL)
        e("v_xor_b32 v32, v32, v%d" % vG4)
        e("v_and_b32 v32, 1, v32")
        e("v_lshlrev_b32 v32, 6, v32")
        e("v_lshrrev_b32 v33, 3, v%d" % vL)
        e("v_lshl_add_u32 v32, v33, 10, v32")
        e("v_and_b32 v33, 3, v%d" % vL)
        e("v_lshl_add_u32 v32, v33, 4, v32")
        e("v_add_u32 v33, 7168, v32")
        e("s_lshl_b32 s%d, s%d, 11" % (sT, sW_ID))
        e("s_add_u32 s%d, s%d, 49152" % (sT, sT))
        e("s_mov_b32 m0, s%d" % sT)
        e("s_lshl_b32 s%d, s2, 14" % sT2)
        e("s_lshl_b32 s%d, s%d, 7" % (sT, sW_ID))
        e("s_add_u32 s%d, s%d, s%d" % (sT2, sT2, sT))
        kb.vmem("buffer_load_dwordx4 v32, s[28:31], s%d offen lds" % sT2, "wo")
        kb.vmem("buffer_load_dwordx4 v33, s[28:31], s%d offen offset:1024 lds" % sT2, "wo")
    def wo_finish():
        kb.wait_vm("wo")
        e("v_lshrrev_b32 v34, 2, v%d" % vI16)
        e("v_lshl_add_u32 v34, v%d, 2, v34" % vHI)
        e("v_lshlrev_b32 v34, 7, v34")
        e("v_and_b32 v35, 1, v%d" % vG4)
        e("v_lshl_add_u32 v34, v35, 5, v34")
        e("v_and_b32 v35, 3, v%d" % vI16)
        e("v_lshl_add_u32 v34, v35, 3, v34")
        e("s_lshl_b32 s%d, s%d, 11" % (sT, sW_ID))
        e("s_add_u32 s%d, s%d, 49152" % (sT, sT))
        e("v_add_u32 v34, s%d, v34" % sT)
        e("v_lshrrev_b32 v35, 3, v%d" % vI16)
        e("v_lshl_add_u32 v32, v35, 6, v34")
        e("v_xor_b32 v35, 1, v35")
        e("v_lshl_add_u32 v33, v35, 6, v34")
        for nb in range(2):
            for jj in range(2):
                kb.ds("ds_read_b64_tr_b16 %s, v%d offset:%d" % (vr(40 + 4 * nb + 2 * jj, 2), 32 + nb, 1024 * jj), "wot")
        e("s_lshl_b32 s%d, s%d, 19" % (sT, sW_ID))
        e("s_lshl_b32 s%d, s2, 10" % sT2)
        e("s_add_u32 s%d, s%d, s%d" % (sT, sT, sT2))
        e("s_add_u32 s%d, s%d, 0x%x" % (sT, sT, WOF))
        e("s_add_u32 s%d, s%d, 0x40000" % (sT2, sT))
        kb.wait_ds("wot")
        kb.vmem("buffer_store_dwordx4 v[40:43], v%d, %s, s%d offen sc1" % (vL16, sr(SRD_WS, 4), sT), "st")
        kb.vmem("buffer_store_dwordx4 v[44:47], v%d, %s, s%d offen sc1" % (vL16, sr(SRD_WS, 4), sT2), "st")
    dma_p1("p1s0", now=True)
    dma_p1("p1", now=True)
    dma_gsub(0, "p1", now=True)
    e("s_and_b32 s6, s%d, 3" % sW_ID)
    e("s_lshl_b32 s6, s6, 12")
    e("s_lshr_b32 s7, s%d, 2" % sW_ID)
    e("s_lshl_b32 s7, s7, 12")
    e("s_add_u32 s7, s7, 16384")
    kb.stamp(1)
    kb.wait_vm("p1s0")
    e("s_barrier")
    kb.stamp(3)
    e("s_cmp_lt_u32 s%d, 4" % sW_ID)
    e("s_cbranch_scc1 L_k1_nocf2")
    e("v_swap_b32 v97, v98")
    e("buffer_store_dwordx4 v[96:99], v%d, %s, s75 offen sc1" % (vL16, sr(SRD_WS, 4)))
    e("s_nop 1")
    kb.label("L_k1_nocf2")

    def body(ktype):
        c1 = mkcfg(4, vA, vW, ktype)
        c2 = mkcfg(2, vA2, vW2, True)
        kb.lg = []; kb.vm = ["p1"] * 11
        frag_reads(c1, 0, 0)
        for j in range(8):
            def act(j=j):
                if j <= 5:
                    dma_p1("p1")
                if j == 2 and os.environ.get("PFQ"):
                    def pf():
                        e("s_lshl_b32 s%d, s2, 3" % sDT)
                        e("s_add_u32 s%d, s%d, s%d" % (sDT, sDT, sW_ID))
                        e("s_lshl_b32 s%d, s%d, 10" % (sDT, sDT))
                        kb.vmem("buffer_load_dwordx4 %s, v%d, %s, s%d offen" % (vr(TMP, 4), vL16, sr(SRD_X, 4), sDT), "p1")
                        e("s_lshl_b32 s%d, s%d, 1" % (sDT, sDT))
                        for n in range(2):
                            kb.vmem("buffer_load_dwordx4 %s, v%d, %s, s%d offen offset:%d" % (vr(TMP, 4), vL16, sr(SRD_WQ, 4), sDT, 1024 * n), "p1")
                    pending.append(pf)
                if j == 6:
                    wo_issue()
                    dma_gsub(1, "g12", GS=0); dma_gsub(2, "g12", GS=24576)
                if j == 7:
                    dma_gsub(3, "g34", GS=65536); dma_gsub(4, "g34", GS=65536 + 24576)
                if j < 7:
                    toggle(c1)
            stage(c1, None, act, (lambda: frag_reads(c1, 0, 0)) if j < 7 else (lambda: None))
        kb.stamp(4)
        drain_all()
        g_sub_compute(GS, FA); g_sub_compute(0, TMP); g_sub_compute(24576, FA)
        ops = list(pending); del pending[:]
        order = ops[0:4] + ops[8:12] + ops[4:8] + ops[16:20] + ops[12:16] + ops[20:24]
        for f in order: f()
        kb.wait_ds_all()
        kb.wait_vm("g34")
        e("s_barrier")
        dma_gsub(5, "g567", now=True); dma_gsub(6, "g567", now=True, GS=0); dma_gsub(7, "g567", now=True, GS=24576)
        wo_finish()
        g_sub_compute(65536, FA); g_sub_compute(65536 + 24576, FA + 0)
        nst = [0]
        def after_store():
            nst[0] += 1
            drain(2)
            if nst[0] == 10:
                drain_all()
                kb.wait_ds_all()
                kb.wait_vm("g567")
                e("s_barrier")
                g_sub_compute(GS, FA); g_sub_compute(0, FA); g_sub_compute(24576, FA)
            if nst[0] > 10:
                drain(2)
        hook[0] = after_store
        e("s_lshl_b32 s%d, s%d, 19" % (sEp, sH))
        e("s_and_b32 s%d, s%d, 1" % (sT, sW_ID))
        e("s_lshr_b32 s%d, s%d, 1" % (sT2, sW_ID))
        e("s_and_b32 s%d, s%d, 1" % (sT2, sT2))
        if ktype:
            import k2
            e("s_mov_b32 s%d, 0x%x" % (sCnt, k2.f32bits(k2.QSCALE)))
            e("s_lshl_b32 s%d, s%d, 15" % (sT, sT))
            e("s_add_u32 s%d, s%d, s%d" % (sEp, sEp, sT))
            e("s_lshl_b32 s%d, s%d, 16" % (sT, sM))
            e("s_add_u32 s%d, s%d, s%d" % (sEp, sEp, sT))
            e("s_lshl_b32 s%d, s%d, 12" % (sT2, sT2))
            e("s_add_u32 s%d, s%d, s%d" % (sEp, sEp, sT2))
            e("s_add_u32 s%d, s%d, 0x%x" % (sEp, sEp, KF))
            for rb in range(4):
                e("s_add_u32 s%d, s%d, %d" % (sT, sEp, rb * 8192))
                for nb in range(2):
                    pack_store(ACC + 16 * (2 * rb + nb), sT, nb * 2048, 2 * rb + nb, scale=sCnt)
        else:
            e("s_lshl_b32 s%d, s%d, 15" % (sT, sT))
            e("s_add_u32 s%d, s%d, s%d" % (sEp, sEp, sT))
            e("s_lshl_b32 s%d, s%d, 16" % (sT, sM))
            e("s_add_u32 s%d, s%d, s%d" % (sEp, sEp, sT))
            e("s_lshl_b32 s%d, s%d, 13" % (sT2, sT2))
            e("s_add_u32 s%d, s%d, s%d" % (sEp, sEp, sT2))
            e("s_add_u32 s%d, s%d, 0x%x" % (sEp, sEp, VF))
            for rb in range(4):
                for nb in range(2):
                    e("s_add_u32 s%d, s%d, %d" % (sT, sEp, (rb >> 1) * 16384 + nb * 4096))
                    pack_store(ACC + 16 * (2 * rb + nb), sT, (rb & 1) * 2048, 2 * rb + nb)
        drain_all()
        hook[0] = None
        e("s_branch L_k1_phase2")

    e("s_cmp_lt_u32 s%d, 4" % sW_ID)
    e("s_cbranch_scc0 L_k1_vtype")
    body(True)
    lgA, vmA = list(kb.lg), list(kb.vm)
    kb.label("L_k1_vtype")
    body(False)
    assert kb.lg == lgA and kb.vm == vmA
    kb.label("L_k1_phase2")
    kb.stamp(5)
    kb.stamp(6)
    kb.nop(16)
    e("s_and_b32 s%d, s%d, 1" % (sT, sGC))
    e("s_lshl_b32 s%d, s%d, 22" % (sEp, sT))
    e("s_lshr_b32 s%d, s%d, 1" % (sT, sGC))
    e("s_lshl_b32 s%d, s%d, 19" % (sT, sT))
    e("s_add_u32 s%d, s%d, s%d" % (sEp, sEp, sT))
    e("s_lshr_b32 s%d, s%d, 2" % (sT, sW_ID))
    e("s_lshl_b32 s%d, s%d, 18" % (sT, sT))
    e("s_add_u32 s%d, s%d, s%d" % (sEp, sEp, sT))
    e("s_lshl_b32 s%d, s%d, 9" % (sT, sGT_))
    e("s_add_u32 s%d, s%d, s%d" % (sEp, sEp, sT))
    e("s_and_b32 s%d, s%d, 3" % (sT, sW_ID))
    e("s_lshl_b32 s%d, s%d, 7" % (sT, sT))
    e("s_add_u32 s%d, s%d, s%d" % (sEp, sEp, sT))
    e("s_add_u32 s%d, s%d, 0x%x" % (sEp, sEp, GT))
    if not os.environ.get("GNEW"):
        for q in range(4):
            e("buffer_store_dwordx4 %s, v%d, %s, s%d offen offset:%d" % (vr(vGacc + 4 * q, 4), vGst, sr(SRD_WS, 4), sEp, 32 * q))
    else:
        e("s_lshl_b32 s%d, s%d, 12" % (sT, sW_ID))
        e("s_add_u32 s%d, s%d, 65536" % (sT, sT))
        e("v_lshrrev_b32 v32, 1, v%d" % vR)
        e("v_and_b32 v32, 7, v32")
        e("v_lshlrev_b32 v33, 7, v%d" % vR)
        e("v_add_u32 v33, s%d, v33" % sT)
        for q in range(4):
            e("v_add_u32 v34, %d, v%d" % (2 * q, vHI))
            e("v_xor_b32 v34, v34, v32")
            e("v_lshl_add_u32 v34, v34, 4, v33")
            e("ds_write_b128 v34, %s" % vr(vGacc + 4 * q, 4))
        e("v_lshrrev_b32 v35, 3, v%d" % vL)
        e("v_and_b32 v36, 7, v%d" % vL)
        e("v_xor_b32 v37, v36, v%d" % vG4)
        e("v_lshlrev_b32 v38, 7, v35")
        e("v_add_u32 v38, s%d, v38" % sT)
        e("v_lshl_add_u32 v39, v37, 4, v38")
        e("v_xor_b32 v37, 4, v37")
        e("v_lshl_add_u32 v40, v37, 4, v38")
        e("v_lshlrev_b32 v41, 4, v36")
        e("v_lshl_add_u32 v41, v35, 13, v41")
        e("s_waitcnt lgkmcnt(0)")
        for k in range(4):
            e("ds_read_b128 %s, v%d offset:%d" % (vr(FA + 4 * k, 4), 39 + (k & 1), 1024 * k))
        for k in range(4):
            e("s_add_u32 s%d, s%d, %d" % (sT2, sEp, k * 65536))
            e("s_waitcnt lgkmcnt(%d)" % (3 - k))
            e("buffer_store_dwordx4 %s, v41, %s, s%d offen sc1" % (vr(FA + 4 * k, 4), sr(SRD_WS, 4), sT2))
    kb.stamp(7)
    kb.dump_stamps([0,1,3,4,5,6,7,7], sW_ID, 100)
    kb.wgtime_end(SRD_WS, 0)
    kb.label("L_k1_end")
    return kb.text()
```
